```python
import torch

def _softmax(x, axis=-1):
    return torch.softmax(x, dim=axis)

def _gelu(x):
    return torch.nn.functional.gelu(x, approximate='tanh')

def _silu(x):
    return torch.nn.functional.silu(x)

def _sigmoid(x):
    return torch.sigmoid(x)

def _layernorm(x, axis=-1, eps=1e-05):
    m = x.mean(dim=axis, keepdim=True)
    v = x.var(dim=axis, keepdim=True, unbiased=False)
    return (x - m) / torch.sqrt(v + eps)

def _scatter_add(tgt, idx, src, axis=0):
    return tgt.clone().index_add_(axis, idx, src)

def _segment_sum(src, seg, n):
    out = torch.zeros((n,) + src.shape[1:], dtype=src.dtype)
    return out.index_add_(0, seg, src)

def _pad(x, pw):
    flat = tuple((v for pair in reversed(pw) for v in pair))
    return torch.nn.functional.pad(x, flat)
kernel_name = 'adaLN_cond__sliding_local_dilated__glu_gated_bilinear__prompt'

def setup_inputs():

    _w = lambda a: (lambda t: t.to(torch.bfloat16) if t.is_floating_point() else t)(torch.as_tensor(a))

    def _A_setup():
        B, S, D = (1, 2048, 512)
        return {'x': _w((lambda *s: torch.randn(*s, dtype=torch.bfloat16) * 0.05)(B, S, D)), 'wqkv': _w((lambda *s: torch.randn(*s, dtype=torch.bfloat16) * 0.05)(D, 3 * D)), 'wo': _w((lambda *s: torch.randn(*s, dtype=torch.bfloat16) * 0.05)(D, D))}
    _A_in = _A_setup()

    def _B_setup():
        B, S, D, F = (1, 2048, 512, 1792)
        return {'x': _w((lambda *s: torch.randn(*s, dtype=torch.bfloat16) * 0.05)(B, S, D)), 'w_gate': _w((lambda *s: torch.randn(*s, dtype=torch.bfloat16) * 0.8)(D, F) * D ** (-0.5)), 'w_up': _w((lambda *s: torch.randn(*s, dtype=torch.bfloat16) * 0.8)(D, F) * D ** (-0.5)), 'w_down': _w((lambda *s: torch.randn(*s, dtype=torch.bfloat16) * 0.8)(F, D) * F ** (-0.5))}
    _B_in = _B_setup()
    return {'A_x': _A_in['x'], 'A_wqkv': _A_in['wqkv'], 'A_wo': _A_in['wo'], 'B_x': _B_in['x'], 'B_w_gate': _B_in['w_gate'], 'B_w_up': _B_in['w_up'], 'B_w_down': _B_in['w_down'], 'c': _w((lambda *s: torch.randn(*s, dtype=torch.bfloat16) * 0.1)(1, 512) * 8.0), 'w_mod': _w((lambda *s: torch.randn(*s, dtype=torch.bfloat16) * 0.1)(512, 6 * 512) * 512 ** (-0.5) * 8.0)}

def reference(A_x, A_wqkv, A_wo, B_x, B_w_gate, B_w_up, B_w_down, c, w_mod):

    def _A_ref(x, wqkv, wo):
        B, S, D = x.shape
        H = 32
        Dh = D // H
        W, dil = (8, 2)
        qkv = (lambda x, *d: x.permute(*d))((x @ wqkv).reshape(B, S, 3, H, Dh), 2, 0, 3, 1, 4)
        q, k, v = (qkv[0], qkv[1], qkv[2])
        scale = Dh ** (-0.5)
        pos = torch.arange(S)
        off = torch.arange(W) * dil
        idx = pos[:, None] - off[None, :]
        mask = idx >= 0
        idx_c = torch.where(mask, idx, 0).reshape(-1)
        kg = k[:, :, idx_c, :].reshape(B, H, S, W, Dh)
        vg = v[:, :, idx_c, :].reshape(B, H, S, W, Dh)
        logits = torch.einsum('bhsd,bhswd->bhsw', q, kg) * scale
        logits = torch.where(mask[None, None, :, :], logits, -1000000000.0)
        attn = _softmax(logits, axis=-1)
        o = torch.einsum('bhsw,bhswd->bhsd', attn, vg)
        return (lambda x, *d: x.permute(*d))(o, 0, 2, 1, 3).reshape(B, S, D) @ wo

    def _B_ref(x, w_gate, w_up, w_down):
        g = torch.einsum('bsd,df->bsf', x, w_gate)
        u = torch.einsum('bsd,df->bsf', x, w_up)
        h = g * u
        return torch.einsum('bsf,fd->bsd', h, w_down)
    x = A_x
    mod = (_silu(c) @ w_mod).reshape(c.shape[0], 6, 1, -1)
    sa, ca, ga, sb, cb, gb = (mod[:, 0].clone(), mod[:, 1].clone(), mod[:, 2].clone(), mod[:, 3].clone(), mod[:, 4].clone(), mod[:, 5].clone())
    h = _layernorm(x, axis=-1) * (1 + ca) + sa
    x = x + ga * _A_ref(h, A_wqkv, A_wo)
    h = _layernorm(x, axis=-1) * (1 + cb) + sb
    x = x + gb * _B_ref(h, B_w_gate, B_w_up, B_w_down)
    return x
```

```python
import re

TRANS = ("v_exp_f32", "v_log_f32", "v_rcp_f32", "v_rsq_f32", "v_sqrt_f32", "v_sin_f32", "v_cos_f32")
REG_RE = re.compile(r"^(-|neg\()?(abs\()?([vas])(\d+)\)?\)?$")
RNG_RE = re.compile(r"^-?([vas])\[(\d+):(\d+)\]$")


def regs_of(op):
    op = op.strip()
    m = RNG_RE.match(op)
    if m:
        return [(m.group(1), i) for i in range(int(m.group(2)), int(m.group(3)) + 1)]
    m = REG_RE.match(op)
    if m:
        return [(m.group(3), int(m.group(4)))]
    if op == "vcc":
        return [("s", "vcc_lo"), ("s", "vcc_hi")]
    if op in ("vcc_lo", "vcc_hi", "m0"):
        return [("s", op)]
    if op == "exec":
        return [("s", "exec_lo"), ("s", "exec_hi")]
    return []


def split_ops(s):
    out, depth, cur = [], 0, ""
    for ch in s:
        if ch in "[(":
            depth += 1
        if ch in "])":
            depth -= 1
        if ch == "," and depth == 0:
            out.append(cur.strip()); cur = ""
        else:
            cur += ch
    if cur.strip():
        out.append(cur.strip())
    return out


class Ins:
    __slots__ = ("text", "op", "kind", "dst", "src", "srcA", "srcB", "srcC", "states", "dpp", "data", "passes", "lds")

    def __init__(self, text):
        self.text = text
        parts = text.split(None, 1)
        op = self.op = parts[0]
        rest = parts[1] if len(parts) > 1 else ""
        ops = split_ops(rest)
        mods = ""
        if ops:
            lp = ops[-1].split(None, 1)
            ops[-1] = lp[0]
            mods = lp[1] if len(lp) > 1 else ""
        self.dst, self.src, self.srcA, self.srcB, self.srcC, self.data = [], [], [], [], [], []
        self.states = 1
        self.dpp = ("_dpp" in op) or ("row_" in mods) or ("quad_perm" in mods) or ("wave_" in mods)
        self.passes = 0
        self.lds = False
        R = lambda i: regs_of(ops[i]) if i < len(ops) else []
        allsrc = lambda a: [r for i in range(a, len(ops)) for r in regs_of(ops[i])]
        if op.startswith("v_mfma"):
            self.kind = "mfma"
            self.dst = R(0); self.srcA = R(1); self.srcB = R(2); self.srcC = R(3)
            self.src = self.srcA + self.srcB + self.srcC
            self.passes = 8 if "32x32x16" in op else 4
        elif op.startswith("v_"):
            self.kind = "valu"
            if op.startswith("v_permlane") and "swap" in op:
                self.dst = R(0) + R(1); self.src = R(0) + R(1)
            elif op.startswith("v_cmp"):
                self.dst = R(0); self.src = allsrc(1)
            elif op.startswith(("v_add_co", "v_sub_co", "v_addc_co", "v_subb_co")):
                self.dst = R(0) + R(1); self.src = allsrc(2)
            elif op == "v_nop":
                pass
            else:
                self.dst = R(0); self.src = allsrc(1)
                if op.startswith(("v_fmac", "v_dot2c", "v_pk_fmac", "v_writelane")) or (self.dpp and op.startswith("v_mov")):
                    self.src = self.src + R(0)
                if self.dpp:
                    self.src = self.src + R(0)
        elif op.startswith("ds_"):
            self.kind = "ds"
            if op.startswith(("ds_read", "ds_bpermute", "ds_swizzle")):
                self.dst = R(0); self.src = allsrc(1)
            else:
                self.src = allsrc(0); self.data = allsrc(1)
        elif op.startswith(("buffer_", "global_")):
            self.kind = "vmem"
            if op.startswith(("buffer_inv", "buffer_wbl2")):
                pass
            elif "load" in op:
                if re.search(r"\blds\b", mods) or "load_lds" in op:
                    self.lds = True
                    self.src = allsrc(0) + [("s", "m0")]
                else:
                    self.dst = R(0); self.src = allsrc(1)
            elif op.startswith("buffer_store"):
                self.src = allsrc(0); self.data = R(0)
            elif op.startswith("global_store"):
                self.src = allsrc(0); self.data = R(1)
            elif "atomic" in op:
                self.src = allsrc(0)
                if "sc0" in mods:
                    self.dst = R(0)
        elif op.startswith(("s_load", "s_memtime", "s_memrealtime", "s_buffer_load")):
            self.kind = "smem"
            self.dst = R(0); self.src = allsrc(1)
        elif op == "s_nop":
            self.kind = "nop"; self.states = int(ops[0], 0) + 1
        elif op.startswith(("s_waitcnt", "s_barrier", "s_branch", "s_cbranch", "s_endpgm", "s_sleep", "s_setprio")):
            self.kind = "ctl"
        elif op.startswith(("s_cmp", "s_bitcmp")):
            self.kind = "salu"; self.src = allsrc(0)
        elif op.startswith("s_"):
            self.kind = "salu"
            self.dst = R(0); self.src = allsrc(1)
            if "saveexec" in op:
                self.dst = self.dst + regs_of("exec")
        else:
            raise ValueError("unknown op " + text)


def need_states(p, c):
    n = 0
    pd = set(p.dst)
    if p.kind == "valu":
        vd = {r for r in pd if r[0] in "va"}
        sd = {r for r in pd if r[0] == "s"}
        if c.kind == "mfma" and vd & set(c.src):
            n = max(n, 2)
        if c.kind == "valu":
            if vd & set(c.src):
                if c.dpp or c.op.startswith("v_permlane"):
                    n = max(n, 2)
                if c.op.startswith(("v_readlane", "v_readfirstlane")):
                    n = max(n, 1)
                if p.op.startswith(TRANS) and not c.op.startswith(TRANS):
                    n = max(n, 1)
                if p.op.startswith(TRANS):
                    n = max(n, 1)
            if p.op.startswith("v_dot2") and (vd & (set(c.src) | set(c.dst))):
                same = p.op == c.op
                if not same:
                    n = max(n, 3)
                else:
                    ops = split_ops(c.text.split(None, 1)[1])
                    ab = set(regs_of(ops[1]) + regs_of(ops[2].split()[0]))
                    if vd & ab:
                        n = max(n, 3)
            if sd & set(c.src):
                n = max(n, 4 if c.op.startswith(("v_readlane", "v_writelane")) else 2)
        if p.op.startswith("v_dot2") and c.kind in ("vmem", "ds", "mfma") and vd & set(c.src):
            n = max(n, 3)
        if c.kind == "vmem" and sd & set(c.src):
            n = max(n, 5)
        if c.kind in ("salu", "smem") and sd & set(c.src):
            n = max(n, 1)
    if p.kind == "mfma":
        big = {8: 12, 4: 8}[p.passes]
        ovl = {8: 10, 4: 6}[p.passes]
        war = {8: 7, 4: 3}[p.passes]
        if c.kind == "mfma":
            if pd & (set(c.srcA) | set(c.srcB)):
                n = max(n, big)
            if pd & set(c.srcC):
                if not (c.srcC == p.dst and c.passes == p.passes):
                    n = max(n, ovl)
            if pd & set(c.dst) and not (c.srcC == p.dst):
                n = max(n, ovl)
        elif c.kind == "valu":
            if pd & (set(c.src) | set(c.dst)):
                n = max(n, big)
            if set(p.srcC) & set(c.dst):
                n = max(n, war)
        elif c.kind in ("vmem", "ds"):
            if pd & (set(c.src) | set(c.dst)):
                n = max(n, big)
    if p.kind in ("vmem", "ds") and len(p.data) >= 3:
        if set(p.data) & set(c.dst):
            n = max(n, 2 if c.kind in ("valu", "mfma") else 1)
    if p.kind == "salu" and ("s", "m0") in pd and c.kind == "vmem" and c.lds:
        n = max(n, 1)
    if p.kind == "salu" and (("s", "exec_lo") in pd) and c.kind == "valu" and (c.dpp or c.op.startswith(("v_permlane", "v_readlane", "v_readfirstlane"))):
        n = max(n, 1)
    return n


class Emit:
    def __init__(self):
        self.out = []
        self.hist = []
        self.vm_issued = 0
        self.vm_done = 0
        self.lg_issued = 0
        self.lg_done = 0
        self.smem_pending = False
        self.pend = {}
        self.optional = 0
        self.nlab = 0
        self.nops = 0
        self.n_ins = 0
        self.hook = None
        self.in_cond = False

    def raw(self, text):
        self.out.append(text)

    def comment(self, t):
        self.out.append("    ; " + t)

    def label(self, name):
        self.out.append(name + ":")

    def newlabel(self, p="L"):
        self.nlab += 1
        return f"{p}_{self.nlab}"

    def _push(self, ins):
        self.n_ins += 1
        self.out.append(ins)
        self.hist.append(ins)
        if len(self.hist) > 80:
            self.hist.pop(0)

    def _hazard(self, c):
        dist = 0
        need = 0
        for p in reversed(self.hist):
            n = need_states(p, c)
            if n > dist:
                need = max(need, n - dist)
            dist += p.states
            if dist >= 20:
                break
        if need:
            self.nops += need
            self._push(Ins(f"s_nop {need - 1}"))

    def wait(self, vm=None, lg=None):
        parts = []
        if vm is not None and vm > self.vm_done:
            n = min(self.vm_issued - vm, 62)
            parts.append(f"vmcnt({n})")
            self.vm_done = self.vm_issued - n
        if lg is not None and (lg > self.lg_done):
            n = 0 if self.smem_pending else min(self.lg_issued - lg, 14)
            parts.append(f"lgkmcnt({n})")
            self.lg_done = self.lg_issued - n
            if n == 0:
                self.smem_pending = False
                self.pend = {r: t for r, t in self.pend.items() if t[0] != "sm"}
        if parts:
            self._push(Ins("s_waitcnt " + " ".join(parts)))

    def wait_all_vm(self):
        self.wait(vm=self.vm_issued)

    def wait_all_lg(self):
        if self.smem_pending or self.lg_issued > self.lg_done:
            self._push(Ins("s_waitcnt lgkmcnt(0)"))
            self.lg_done = self.lg_issued
            self.smem_pending = False
            self.pend = {r: t for r, t in self.pend.items() if t[0] != "sm"}

    def force_vm0(self):
        self._push(Ins("s_waitcnt vmcnt(0)"))
        self.vm_done = self.vm_issued

    def __call__(self, text, track=True):
        tok = None
        for line in text.split("\n"):
            line = line.split(";")[0].strip()
            if not line:
                continue
            tok = self._one(line, track) or tok
            if self.hook:
                self.hook()
        return tok

    def count(self):
        return sum(1 for o in self.out if isinstance(o, Ins))

    def _one(self, text, track=True):
        c = Ins(text)
        if not track:
            c.dst = []
        vm = lg = None
        sm = False
        for r in c.src + c.dst:
            t = self.pend.get(r)
            if t:
                if t[0] == "vm" and t[1] > self.vm_done:
                    vm = max(vm or 0, t[1])
                elif t[0] == "lg" and t[1] > self.lg_done:
                    lg = max(lg or 0, t[1])
                elif t[0] == "sm":
                    sm = True
        if sm:
            self.wait_all_lg()
        self.wait(vm, lg)
        self._hazard(c)
        self._push(c)
        tok = None
        if c.kind == "vmem":
            if self.optional:
                assert not c.dst, "optional loads to registers unsupported"
            else:
                self.vm_issued += 1
                tok = self.vm_issued
                for r in c.dst:
                    self.pend[r] = ("vm", tok)
        elif c.kind == "ds":
            if self.optional:
                self.lg_issued += 1
            else:
                self.lg_issued += 1
            tok = self.lg_issued
            for r in c.dst:
                self.pend[r] = ("lg", tok)
        elif c.kind == "smem":
            self.smem_pending = True
            self.lg_issued += 1
            for r in c.dst:
                self.pend[r] = ("sm", 0)
        else:
            for r in c.dst:
                self.pend.pop(r, None)
        return tok

    def begin_cond(self, allow_lg=False):
        self.cond_mark = len(self.out)
        self.cond_allow_lg = allow_lg
        self.in_cond = True

    def end_cond(self, label):
        inside = [o for o in self.out[self.cond_mark:] if isinstance(o, Ins)]
        for o in inside:
            if o.op == "s_waitcnt":
                assert "vmcnt" not in o.text and self.cond_allow_lg, "wait inside conditional block: " + o.text
        import copy
        ids = {id(o) for o in inside}
        newh = []
        for h in self.hist:
            if id(h) in ids:
                h = copy.copy(h)
                h.states = 0
            newh.append(h)
        self.hist = newh
        self.in_cond = False
        self.label(label)

    def fence_hazards(self, n=12):
        pass

    def text(self):
        lines = []
        for o in self.out:
            lines.append("    " + o.text if isinstance(o, Ins) else o)
        return "\n".join(lines) + "\n"


class RegAlloc:
    def __init__(self, kind, n, first=0):
        self.kind = kind
        self.free = [True] * n
        for i in range(first):
            self.free[i] = False
        self.hi = first
        self.names = {}

    def alloc(self, n=1, align=None, name=None):
        if align is None:
            align = 1 if n == 1 else (2 if n < 4 else 4)
        i = 0
        N = len(self.free)
        while i + n <= N:
            if all(self.free[i:i + n]):
                for j in range(i, i + n):
                    self.free[j] = False
                self.hi = max(self.hi, i + n)
                return Reg(self.kind, i, n)
            i += align
        raise RuntimeError(f"out of {self.kind} registers for {n} ({name})")

    def alloc_top(self, n):
        N = len(self.free)
        i = (N - n) // 4 * 4
        while i >= 0:
            if all(self.free[i:i + n]):
                for j in range(i, i + n):
                    self.free[j] = False
                self.hi = max(self.hi, i + n)
                return Reg(self.kind, i, n)
            i -= 4
        raise RuntimeError("out of registers (top)")

    def release(self, *regs):
        for r in regs:
            for j in range(r.i, r.i + r.n):
                assert not self.free[j], (r.kind, j)
                self.free[j] = True

    def nfree(self):
        return sum(self.free)


class Reg:
    def __init__(self, kind, i, n):
        self.kind, self.i, self.n = kind, i, n

    def __str__(self):
        return f"{self.kind}{self.i}" if self.n == 1 else f"{self.kind}[{self.i}:{self.i + self.n - 1}]"

    __repr__ = __str__

    def __format__(self, spec):
        return str(self)

    def __getitem__(self, k):
        if isinstance(k, slice):
            a = k.start or 0
            b = k.stop if k.stop is not None else self.n
            assert 0 <= a < b <= self.n, (a, b, self.n)
            return Reg(self.kind, self.i + a, b - a)
        assert 0 <= k < self.n, (k, self.n)
        return Reg(self.kind, self.i + k, 1)

    def sub(self, a, n):
        return self[a:a + n]
```

```python
import sys, math, argparse, struct
sys.path.insert(0, "gen")
from emit import *

NAME = "adaLN_cond__sliding_local_dilated__glu_gated_bilinear__prompt"

WS_E, WS_XID, WS_FLAGS, WS_G, WS_STATS = 0x0, 0x400, 0x1000, 0x10000, 0x80000
WS_O, WS_H2, WS_HH, WS_STAMP, WS_SIZE = 0x100000, 0x100000, 0x500000, 0xC00000, 0xD00000
GQ = 0x3000
GCOPY = 4 * GQ
NCOPY = 4
F_O, F_H, F_A, F_B = 0, 1, 2, 3
L_TBL2 = 0
L_PART = 1024
L_TBL = 2048
L_K = L_TBL
HB = 80 * 272
L_H0 = L_K + 80 * 144
L_V = L_H0
L_H1 = L_H0 + HB
L_RING = L_H1 + HB
L_END = 163840
L_RED = L_TBL
SLOTS = 5
WIN = 61440


def f2u(x):
    return struct.unpack("<I", struct.pack("<f", x))[0]


class Cfg:
    mimic = True
    stamps = None
    stop = None
    force_slow = False
    hh_sc1 = True
    preread = True
    spin = 1 << 16
    dma_every = 2
    pre_chunks = 4
    nx_first = 8
    nw_first = 0
    x_rate0 = 0.06
    x_rate = 1 / 12
    pre_rate = 1 / 14
    dma_hop1 = 8
    dma_hop2 = 8
    dma_hop3 = 8
    exp_nodma = False
    exp_skip = ''
    exp_nohh = False
    exp_noh2 = False
    act_fl = ' sc1'
    code_pf = True
    touch = 1
    tlb = 0
    touchq = 0
    mall_q = True
    t3 = 7
    n_pre = 15
    n_alpha, n_beta, n_gamma = 6, 8, 6
    lead_b = 12
    pauses = ()
    q_dma, q_dma0, q_stage = 0.5, 0, 0
    g_hi = (0.27, 0.3, 0.5)
    g_mix = (0.3, 0.15, 0.5)
    g_dma = (0.34, 0.4, 0.5)
    pre_tiles = 2
    pf_first = False
    dbg = False
    out_fl = ''
    nq_k = 1
    w_first = 24
    mallq_early = False
    np0 = 4
    n_rate = 0.12
    st_g2 = 14
    code_pf0 = True
    nx_pre = 4
    idle_pf = 0
    idle_off = 65536
    burst_a = False
    burst_b = True
    g_end = 0.4
    bg_early = 1
    bg_n = 20
    q_dma1 = 32
    uo_late = True
    hh_fast = 0
    wb_at = 0
    wb_who = 60
    h_full = True
    q_span = 2
    tq2 = 9
    q_hi, q_hi0 = 0.1, 0
    solo_reads = 0
    mall_pf = 2
    dma_p1 = 2
    dma_p3 = 3
    dma_p4 = 2
    dma_att = 0
    act_lead = 4
    dma_p2 = 0
    n_dir, n_stage = 8, 4
    stage_p1 = 0
    att_every = 20
    post_every = 0
    hi3, mix3 = 3, 3
    hi4, mix4 = 2, 2
    st_fa, st_ia, st_ca = 47, 50, 53
    st_fb, st_ib, st_cb = 74, 76, 78


class Lds:
    def __init__(self):
        self.free = []

    def add(self, a, n):
        for iv in self.free:
            assert a + n <= iv[0] or a >= iv[1], "double free"
        self.free.append([a, a + n])
        self.free.sort()
        m = []
        for iv in self.free:
            if m and m[-1][1] == iv[0]:
                m[-1][1] = iv[1]
            else:
                m.append(iv)
        self.free = m

    def alloc(self, n, span=0):
        for iv in self.free:
            a = iv[0]
            if iv[1] - a >= n:
                iv[0] += n
                if iv[0] == iv[1]:
                    self.free.remove(iv)
                return a
        return None


class Gate:
    is_open = False

    def open(self):
        self.is_open = True


class Mark:
    pass


class Skip:
    def __init__(self, n):
        self.n = n


class Unit:
    def __init__(self, name, size, dmas):
        self.name, self.size, self.dmas = name, size, dmas
        self.addr = None
        self.next = 0
        self.tok = None
        self.ready = False
        self.released = False


class Gen:
    def __init__(self, cfg):
        self.c = cfg
        self.e = Emit()
        self.V = RegAlloc("v", 256, first=1)
        self.A = RegAlloc("a", 256)
        self.S = RegAlloc("s", 102, first=44)
        self.lds = Lds()
        self.queue = []
        self.stamp_names = []
        self.nbar = 0
        self.cur_so = None
        self.dq = []
        self.log = []
        self.ool = []
        self.stq = []
        self.cur_so2 = None
        self.cur_m0 = None
        self.lname = 'L'

    def dma_prepare(self):
        while self.queue and self.queue[0].next >= len(self.queue[0].dmas):
            self.queue.pop(0)
        if not self.queue:
            return []
        u = self.queue[0]
        if u.addr is None:
            u.addr = self.lds.alloc(u.size)
            if u.addr is None:
                return []
        srd, vreg, soff, imm, loff = u.dmas[u.next]
        u.next += 1
        e = self.e
        L = []
        m0v = (str(getattr(u, "wreg", self.s_w1k)), u.addr + loff - imm)
        if m0v != self.cur_m0:
            L.append(lambda: e(f"s_add_u32 m0, {m0v[0]}, {m0v[1]}"))
            self.cur_m0 = m0v
        if soff and soff != self.cur_so:
            L.append(lambda: e(f"s_mov_b32 {self.s_so}, {soff}"))
            self.cur_so = soff
        so = self.s_so if soff else 0
        im = f" offset:{imm}" if imm else ""

        if (self.c.exp_nodma and getattr(self, "in_loop", False)) or u.name[0] in self.c.exp_skip:
            u.tok = u.tok or 0
            return [lambda: None]

        def ld():
            u.tok = e(f"buffer_load_dwordx4 {vreg}, {srd}, {so} offen{im} lds")
            u.pending_piece = False
        u.pending_piece = True
        L.append(ld)
        return L

    def stage_prepare(self):
        while self.stq and self.stq[0].next >= len(self.stq[0].dmas):
            self.stq.pop(0)
        if not self.stq:
            return []
        u = self.stq[0]
        srd, vreg, soff, imm, loff = u.dmas[u.next]
        r = self.A.alloc(4)
        u.sregs = getattr(u, "sregs", []) + [(r, loff)]
        u.next += 1
        e = self.e
        L = []
        if soff != self.cur_so2:
            L.append(lambda: e(f"s_mov_b32 {self.s_so2}, {soff}"))
            self.cur_so2 = soff
        im = f" offset:{imm}" if imm else ""
        L.append(lambda: e(f"buffer_load_dwordx4 {r}, {vreg}, {srd}, {self.s_so2} offen{im}"))
        return L

    def stage_step(self):
        self.dma_flush()
        L = self.stage_prepare()
        for f in L:
            f()
        return bool(L)

    def commit(self, units, v_w16):
        L = []
        for u in units:
            if u.addr is not None:
                continue
            assert u.next >= len(u.dmas), "commit of a unit that is not fully staged"
            u.addr = self.lds.alloc(u.size)
            if u.addr is None:
                break
            for r, loff in u.sregs:
                def w(u=u, r=r, loff=loff):
                    wi, o = divmod(u.addr + loff, WIN)
                    u.ltok = self.e(f"ds_write_b128 {v_w16[wi]}, {r} offset:{o}")
                    self.A.release(r)
                L.append(w)
            u.staged = True
        return L

    def dma_flush(self):
        while self.dq:
            self.dq.pop(0)()

    def dma_step(self):
        self.dma_flush()
        L = self.dma_prepare()
        for f in L:
            f()
        return bool(L)

    def dma_all(self, limit=10 ** 9):
        n = 0
        while n < limit and self.dma_step():
            n += 1
        return n

    def barrier(self, ready=(), release=(), lg=sys.maxsize, tag=""):
        e = self.e
        ready = [u for u in ready if not u.ready]
        late = 0
        for u in ready:
            if getattr(u, "staged", False):
                u.ready = True
                lg = max(lg or 0, u.ltok)
        ready = [u for u in ready if not u.ready]
        for u in ready:
            if getattr(u, "pending_piece", False):
                self.dma_flush()
            while u.next < len(u.dmas):
                assert self.dma_step(), f"LDS ring deadlock at unit {u.name}"
                late += 1
        self.stamp(f"b{self.nbar}a")
        if ready:
            tk = max(u.tok for u in ready)
            self.log.append(f"bar {self.nbar} {tag}: ready {ready[0].name}..{ready[-1].name} late={late} younger_vm={e.vm_issued - tk} ins={e.n_ins}")
            e.wait(vm=tk)
        self.stamp(f"b{self.nbar}v")
        if lg is not None:
            e.wait(lg=min(lg, e.lg_issued))
        e("s_barrier")
        self.stamp(f"b{self.nbar}e")
        self.nbar += 1
        for u in ready:
            u.ready = True
        for u in release:
            if not u.released:
                u.released = True
                self.lds.add(u.addr, u.size)

    def stamp(self, name):
        if self.c.stamps and (name in self.c.stamps or self.c.stamps == "all" and len(self.stamp_names) < 15 or name in ("t0", "end")):
            r = self.stamp_regs[len(self.stamp_names)]
            self.e(f"s_memtime {r}")
            self.stamp_names.append(name)

    def interleave(self, main, fill, ratio):
        acc = 0.0
        fill = list(fill)
        for m in main:
            m() if callable(m) else self.e(m)
            acc += ratio
            while acc >= 1.0 and fill:
                f = fill.pop(0)
                f() if callable(f) else self.e(f)
                acc -= 1.0
        return fill

    def bg_on(self, every, limit, stage=True):
        e = self.e
        st = dict(n=0, busy=False)

        def hook():
            if st["busy"] or e.in_cond or e.hist[-1].op.startswith(("s_cmp", "s_cbranch")):
                return
            st["n"] += 1
            if st["n"] >= every:
                st["n"] = 0
                st["busy"] = True
                lim = limit[0]
                if not (lim.next < len(lim.dmas) and self.dma_step()) and stage:
                    self.stage_step()
                st["busy"] = False
        e.hook = hook if every else None

    def bg_off(self):
        self.e.hook = None

    def bf16r(self, d, s):
        return [f"v_cvt_pk_bf16_f32 {d}, {s}, {s}", f"v_and_b32 {d}, 0xffff0000, {d}"]

    def poll(self, loads, checks, pre=None):
        e = self.e
        self.dma_flush()
        L = e.newlabel("Lpoll")
        e(f"s_mov_b32 {self.s_spin}, 0")
        e.label(L)
        e(f"s_add_u32 {self.s_spin}, {self.s_spin}, 1")
        e(f"s_cmp_gt_u32 {self.s_spin}, {self.c.spin}")
        e("s_cbranch_scc1 Lexit")
        for t in loads:
            e(t)
        e.force_vm0()
        for t in pre or []:
            e(t)
        if not checks:
            pass
        elif len(checks) == 1:
            e(f"v_cmp_ne_u32 vcc, {self.s_tag}, {checks[0]}")
        else:
            t = self.v_tmp
            e(f"v_xor_b32 {t}, {checks[0]}, {self.v_tag}")
            rest = list(checks[1:])
            for r in rest:
                e(f"v_xor_b32 {r}, {r}, {self.v_tag}")
            while len(rest) >= 2:
                e(f"v_or3_b32 {t}, {t}, {rest.pop()}, {rest.pop()}")
            if rest:
                e(f"v_or_b32 {t}, {t}, {rest.pop()}")
            e(f"v_cmp_ne_u32 vcc, 0, {t}")
        e(f"s_cbranch_vccnz {L}")

    def store2(self, fmt_list):
        e = self.e
        Ls, Lj = e.newlabel("Lslow"), e.newlabel("Ljoin")
        e(f"s_cmp_eq_u32 {self.s_mode}, 0")
        e(f"s_cbranch_scc1 {Ls}")
        save = (e.vm_issued, e.vm_done, list(e.hist))
        n0 = len(e.out)
        tok = None
        for t in fmt_list:
            tok = e(t.format(f="")) or tok
        for o in e.out[n0:]:
            assert o.op != "s_waitcnt", "operand of mode-dependent store not ready"
        e(f"s_branch {Lj}")
        e.label(Ls)
        e.vm_issued, e.vm_done, e.hist = save
        for t in fmt_list:
            e(t.format(f=" sc1"))
        e.label(Lj)
        return tok

    def flag_store(self, vaddr, off):
        e = self.e
        e("s_mov_b64 exec, 1")
        self.store2([f"buffer_store_dword {self.v_tag}, {vaddr}, s[36:39], 0 offen offset:{off}" + "{f}"])
        e("s_mov_b64 exec, -1")

    def loop_prologue(self, steps, PD=2):
        for i in range(min(PD, len(steps))):
            self._bar_for(steps, i, -1)
            steps[i]["tok"] = [self.e(r) for r in steps[i]["reads"]()][-1]

    def _bar_for(self, steps, i, cur):
        st = steps[i]
        need = [u for u in st["units"] if not u.ready]
        if st.get("bar") or need:
            if st.get("prebar"):
                st["prebar"]()
            k = i
            ready = []
            for k in range(i, min(i + st.get("span", 1), len(steps))):
                ready += [u for u in steps[k]["units"] if u not in ready]
            live = {id(u) for s2 in steps[cur + 1:] for u in s2["units"]}
            dead = [u for s2 in steps[:cur + 1] for u in s2["units"] if id(u) not in live] + st.get("release", [])
            self.barrier(ready=ready, release=dead, lg=st["lg"]() if st.get("lg") else None, tag=f"step{i}")
            if st.get("postbar"):
                st["postbar"]()

    def mfma_loop(self, steps, fill, rates, PD=2, rng=None, hi=None):
        e = self.e
        cnt = 0
        self.in_loop = True
        a, b = rng or (0, len(steps))
        hi = hi if hi is not None else []
        cred = [0.0, 0.0, 0.0]
        for i in range(a, b):
            st = steps[i]
            nxt = steps[i + PD] if i + PD < len(steps) else None
            rq = []
            nm = len(st["mfmas"])
            self.stamp(f"{getattr(self, 'lname', 'L')}{i}")
            for j, mf in enumerate(st["mfmas"]):
                if j == 0:
                    e.wait(lg=st["tok"])
                    for f in st.get("pre", []):
                        f()
                e(mf)
                cnt += 1
                n0 = e.n_ins
                if j == 0 and nxt:
                    self._bar_for(steps, i + PD, i)
                    rq = list(nxt["reads"]())
                while fill and (isinstance(fill[0], Mark) or (isinstance(fill[0], Gate) and fill[0].is_open)):
                    fill.pop(0)
                if fill and getattr(fill[0], "solo", False) and j < nm - 1 and e.n_ins == n0:
                    fill.pop(0)()
                    for _ in range(min(self.c.solo_reads, len(rq))):
                        nxt["tok"] = e(rq.pop(0))
                    continue
                k = math.ceil(len(rq) / (nm - j))
                for _ in range(k):
                    tk = e(rq.pop(0))
                    nxt["tok"] = tk
                budget = SLOTS - (1 if j == nm - 1 else 0)
                while hi and isinstance(hi[0], Gate) and hi[0].is_open:
                    hi.pop(0)
                hi_ok = bool(hi) and not isinstance(hi[0], Gate)
                hr, dr, sr = rates(i, hi_ok)
                cred[0] = min(cred[0] + hr, 1.9) if hi_ok else 0.0
                cred[1] = min(cred[1] + dr, 1.9)
                cred[2] = min(cred[2] + sr, 1.9)
                if hi_ok and cred[0] >= 0.999:
                    cred[0] -= 1.0
                    hi.pop(0)()
                elif not self.dq:
                    if cred[1] >= 0.999:
                        self.dq = self.dma_prepare()
                        if self.dq:
                            cred[1] -= 1.0
                    if not self.dq and cred[2] >= 0.999:
                        self.dq = self.stage_prepare()
                        if self.dq:
                            cred[2] -= 1.0
                while e.n_ins - n0 < budget and self.dq:
                    self.dq.pop(0)()
                while e.n_ins - n0 < budget and fill:
                    if isinstance(fill[0], Gate):
                        if not fill[0].is_open:
                            break
                        fill.pop(0)
                        continue
                    if isinstance(fill[0], Mark):
                        fill.pop(0)
                        continue
                    if isinstance(fill[0], Skip):
                        fill[0].n -= 1
                        if fill[0].n <= 0:
                            fill.pop(0)
                        break
                    if getattr(fill[0], "solo", False):
                        break
                    f = fill.pop(0)
                    f() if callable(f) else e(f)
        self.dma_flush()

    def opt_check(self, vaddr, off, reg):
        e = self.e
        box = {}

        def issue():
            box["tok"] = e(f"buffer_load_dword {reg}, {vaddr}, s[36:39], 0 offen offset:{off} sc1")

        def check():
            Ls, Lb = e.newlabel("Lretry"), e.newlabel("Lback")
            e(f"v_cmp_ne_u32 vcc, {self.s_tag}, {reg}")
            e(f"s_cbranch_vccnz {Ls}")
            e.label(Lb)
            self.ool.append(f"""{Ls}:
    s_mov_b32 {self.s_spin}, 0
{Ls}_1:
    s_add_u32 {self.s_spin}, {self.s_spin}, 1
    s_cmp_gt_u32 {self.s_spin}, {self.c.spin}
    s_cbranch_scc1 Lexit
    buffer_load_dword {reg}, {vaddr}, s[36:39], 0 offen offset:{off} sc1
    s_waitcnt vmcnt(0)
    v_cmp_ne_u32 vcc, {self.s_tag}, {reg}
    s_cbranch_vccnz {Ls}_1
    s_branch {Lb}
""")
        return issue, check

    def drain_to(self, fill, mark):
        if mark is not None and mark not in fill:
            return
        while fill:
            f = fill.pop(0)
            if f is mark:
                return
            if isinstance(f, Gate):
                assert f.is_open
            elif not isinstance(f, (Mark, Skip)):
                f() if callable(f) else self.e(f)

    def finish_stats(self, sm, sq, rho, nmr, n):
        L = [f"v_mul_f32 {sm}, 0x{f2u(1.0 / n):08x}, {sm}",
             f"v_mul_f32 {sq}, 0x{f2u(1.0 / n):08x}, {sq}",
             f"v_fma_f32 {sq}, -{sm}, {sm}, {sq}",
             f"v_max_f32 {sq}, 0, {sq}"]
        if self.c.mimic:
            L += self.bf16r(sq, sq)
            L += [f"v_add_f32 {sq}, 0x{f2u(1e-5):08x}, {sq}"]
            L += self.bf16r(sq, sq)
            L += [f"v_sqrt_f32 {sq}, {sq}"]
            L += self.bf16r(sm, sm)
            L += self.bf16r(sq, sq)
            L += [f"v_rcp_f32 {rho}, {sq}"]
        else:
            L += [f"v_add_f32 {sq}, 0x{f2u(1e-5):08x}, {sq}", f"v_rsq_f32 {rho}, {sq}"]
        L += [f"v_mul_f32_e64 {nmr}, -{sm}, {rho}"]
        return L

    def build(self):
        c, e, V, A, S = self.c, self.e, self.V, self.A, self.S
        global L_TBL, L_K, L_H0, L_V, L_H1, L_RING, L_RED
        if c.h_full:
            L_H0 = 2048
            L_H1 = L_H0 + HB
            L_V = L_H0 + 2 * HB
            L_K = L_V - 80 * 144
            L_TBL = L_H0 + 4 * HB
            L_RING = L_TBL + 4096
            L_RED = L_K
            LH = [L_H0 + k * HB for k in range(4)]
        else:
            LH = [L_H0, L_H1, L_H0, L_H1]
        X, WQ, WO, WG, WU, WD, WM, OUT, WS, CC = [f"s[{4 + 4 * i}:{7 + 4 * i}]" for i in range(10)]
        e("s_cmp_ge_u32 s2, 256")
        e("s_cbranch_scc1 Lexit")
        if c.stamps:
            self.stamp_regs = [S.alloc(2) for _ in range(min(14, len(c.stamps) + 2))]
            self.rt0, self.rt1 = S.alloc(2), S.alloc(2)
            e(f's_memrealtime {self.rt0}')
        self.stamp("t0")
        if c.dbg:
            self.d0, self.d1, self.dp = S.alloc(2), S.alloc(2), S.alloc(2)
            e(f"s_memtime {self.d0}\ns_memrealtime {self.d1}\ns_load_dwordx2 {self.dp}, s[0:1], 80")
        srds = {0: (0, 2048 * 1024), 6: (64, 512 * 6144), 9: (56, 1024), 8: (88, WS_SIZE), 1: (8, 512 * 3072), 2: (16, 512 * 1024),
                3: (32, 512 * 3584), 4: (40, 512 * 3584), 5: (48, 1792 * 1024), 7: (72, 2048 * 1024)}

        def srd_ptr(i):
            e(f"s_load_dwordx2 s[{4 + 4 * i}:{5 + 4 * i}], s[0:1], {srds[i][0]}")

        def srd_words(i):
            e(f"s_mov_b32 s{6 + 4 * i}, {srds[i][1]}")
            e(f"s_mov_b32 s{7 + 4 * i}, 0x20000")
        for i in (0, 6, 9, 8):
            srd_ptr(i)
        sa = lambda: S.alloc(1)
        s_w, s_tb, s_kh, s_g, s_m, s_hg, s_TB = [sa() for _ in range(7)]
        self.s_w1k, self.s_so, self.s_spin, self.s_tag, self.s_mode, self.s_so2 = [sa() for _ in range(6)]
        s_w1k, s_tag = self.s_w1k, self.s_tag
        t0, t1, t2, t3 = [sa() for _ in range(4)]
        s_idx, s_col0, s_flb, s_tile, s_hh = sa(), sa(), sa(), sa(), sa()
        v_l, v_t, v_hh = V.alloc(), V.alloc(), V.alloc()
        self.v_tmp = V.alloc()
        self.v_tag = V.alloc()
        u0, u1, u2, u3 = [V.alloc() for _ in range(4)]
        v_dq, v_dw, v_dd, v_dA = [V.alloc() for _ in range(4)]
        v_fl, v_l16, v_trn = V.alloc(), V.alloc(), V.alloc()
        a_dummy = A.alloc_top(4)
        v_c, v_wm, v_x = V.alloc(), V.alloc(), V.alloc()
        e(f"""s_and_b32 {t3}, s2, 7
        s_lshr_b32 {s_idx}, s2, 3
        s_lshr_b32 {t0}, {s_idx}, 3
        s_lshl_b32 {t0}, {t0}, 6
        s_lshl_b32 {t1}, {t3}, 8
        s_add_u32 {t0}, {t0}, {t1}
        s_sub_u32 {t0}, {t0}, 16
        v_lshrrev_b32 {u2}, 6, v0
        v_mul_u32_u24 {u0}, 20, {u2}
        v_bfe_u32 {u1}, v0, 4, 2
        v_add3_u32 {u0}, {u0}, {u1}, {t0}
        v_and_b32 {u1}, 15, v0
        v_lshlrev_b32 {u0}, 10, {u0}
        v_lshl_add_u32 {v_x}, {u1}, 4, {u0}""")
        srd_words(0)
        pre2 = f"""s_min_u32 {t0}, {s_idx}, 23
        s_lshr_b32 {t1}, {t0}, 2
        s_lshl_b32 {t1}, {t1}, 3
        s_add_u32 {s_col0}, {t1}, {t3}
        s_and_b32 {t0}, {t0}, 3
        s_lshl_b32 {t0}, {t0}, 7
        v_lshrrev_b32 {u0}, 3, v0
        v_add_u32 {u0}, {t0}, {u0}
        v_lshlrev_b32 {v_c}, 1, {u0}
        v_mul_u32_u24 {v_wm}, 6144, {u0}
        v_and_b32 {u1}, 7, v0
        v_lshlrev_b32 {u1}, 4, {u1}
        s_lshl_b32 {t0}, {s_col0}, 7
        v_add3_u32 {v_wm}, {v_wm}, {u1}, {t0}"""
        pre3 = f"""v_readfirstlane_b32 {s_w}, {u2}
        v_and_b32 {v_l}, 63, v0
        v_and_b32 {v_t}, 31, v0
        v_lshrrev_b32 {v_hh}, 5, {v_l}
        s_lshr_b32 {t0}, {s_idx}, 4
        s_lshl_b32 {s_g}, {t3}, 1
        s_add_u32 {s_g}, {s_g}, {t0}
        s_and_b32 {s_m}, {s_idx}, 15
        s_and_b32 {s_hg}, {s_m}, 7
        s_and_b32 {s_tb}, {s_w}, 1
        s_lshr_b32 {s_kh}, {s_w}, 1
        s_lshl_b32 {s_w1k}, {s_w}, 10
        s_lshl_b32 {s_TB}, {s_g}, 2
        s_lshr_b32 {t0}, {s_m}, 3
        s_lshl_b32 {t0}, {t0}, 1
        s_add_u32 {s_TB}, {s_TB}, {t0}
        s_add_u32 {s_TB}, {s_TB}, {s_tb}"""
        cv = V.alloc(4)
        wmv = V.alloc(16)
        XN = [[None] * 4 for _ in range(5)]
        xn_all = V.alloc_top(184)
        for i in range(5):
            for ch in range(4):
                XN[i][ch] = xn_all.sub((((ch + 3) % 4) * 5 + i) * 8, 8)
        def lines(srd, n, base_code, stride=128):
            return base_code + [f"v_mul_u32_u24 {u0}, {stride}, {v_l}", f"v_cmp_le_u32 vcc, {n}, {v_l}", f"v_add_u32 {u0}, {t0}, {u0}",
                                f"v_cndmask_b32 {u0}, {u0}, -1, vcc",
                                lambda: e(f"buffer_load_dword {a_dummy[0]}, {u0}, {srd}, 0 offen", track=False)]

        def mall(srd, n):
            return lines(srd, n, [f"s_lshl_b32 {t0}, s2, 2", f"s_add_u32 {t0}, {t0}, {s_w}", f"s_mul_i32 {t0}, {t0}, {n * 128}"])

        def touch3(srd, rows, pitch):
            return lines(srd, rows, [f"s_lshl_b32 {t0}, {s_idx}, 2", f"s_add_u32 {t0}, {t0}, {s_w}", f"s_mul_i32 {t0}, {t0}, {rows * pitch}",
                                     f"s_add_u32 {t0}, {t0}, 384"], stride=pitch)

        def run(L):
            for t in L:
                t() if callable(t) else e(t)
        xld = []
        for i in range(5):
            for ch in range(4):
                t = f"buffer_load_dwordx4 {XN[i][ch].sub(4, 4)}, {v_x}, {X}, 0 offen offset:{256 * ch}"
                if ch == 3 and i < 4:
                    t += f"\nv_add_u32 {v_x}, 4096, {v_x}"
                xld.append(t)
        e.wait_all_lg()
        self.stamp("ka")
        if c.touch:
            srd_words(6)
            e(f"""v_and_b32 {u1}, 63, v0
            v_mul_u32_u24 {u0}, 20, {u2}
            v_add3_u32 {u0}, {u0}, {u1}, {t0}
            v_lshlrev_b32 {u0}, 10, {u0}
            s_and_b32 {t1}, {s_idx}, 7
            s_lshl_b32 {t1}, {t1}, 7
            v_cmp_lt_u32 vcc, 19, {u1}
            v_add_u32 {u0}, {t1}, {u0}
            s_min_u32 {t0}, {s_idx}, 23
            v_cndmask_b32 {u0}, {u0}, -1, vcc""")
            e(f"buffer_load_dword {a_dummy[0]}, {u0}, {X}, 0 offen", track=False)
        if c.code_pf0:
            e(f"""s_getpc_b64 vcc
            v_and_b32 {u1}, 63, v0
            v_lshlrev_b32 {u1}, 6, {u1}""")
            e(f"global_load_dword {a_dummy[0]}, {u1}, vcc", track=False)
        for t in xld[:c.nx_pre]:
            e(t)
        xld2 = xld[c.nx_pre:c.nx_first]
        xld = xld[c.nx_first:]
        srd_words(6); srd_words(9)
        e(pre2)
        for i in range(4):
            e(f"buffer_load_ushort {cv[i]}, {v_c}, {CC}, 0 offen offset:{64 * i}")
        wld = [(f"s_mov_b32 {self.s_so}, {i * 32 * 6144}\n" if i else "") +
               f"buffer_load_dwordx4 {wmv.sub(4 * i, 4)}, {v_wm}, {WM}, {self.s_so if i else 0} offen" for i in range(4)]
        if c.w_first:
            e(f"""s_cmp_ge_u32 {s_idx}, {c.w_first}
            s_cselect_b32 s30, 0, s30""")
            run(wld)
        self.stamp("wis")
        e(f"s_load_dword {s_tag}, s[36:37], {WS_E}")
        for i in (1, 2, 3, 4, 5, 7):
            srd_ptr(i)
        for i in (8, 1, 2, 3, 4, 5, 7):
            srd_words(i)
        e(pre3)
        if c.tlb:
            e(f"v_lshlrev_b32 {u0}, 21, {v_l}")
            for srd in (WQ, WS, WO, WG, WU, WD, OUT):
                e(f"buffer_load_dword {a_dummy[0]}, {u0}, {srd}, 0 offen offset:2048", track=False)
        s_st = sa()
        e(f"""s_lshl_b32 {t0}, {s_TB}, 12
        s_lshr_b32 {t1}, {s_hg}, 1
        s_lshl_b32 {t1}, {t1}, 10
        s_add_u32 {t0}, {t0}, {t1}
        s_and_b32 {t1}, {s_hg}, 1
        s_lshl_b32 {t1}, {t1}, 3
        s_add_u32 {t0}, {t0}, {t1}
        s_lshl_b32 {t1}, {s_kh}, 2
        s_add_u32 {t0}, {t0}, {t1}
        s_add_u32 {s_st}, {t0}, {WS_STATS}
        v_lshlrev_b32 {v_l16}, 4, {v_l}
        v_mov_b32 {u3}, -1""")
        tok_init = e(f"buffer_store_dword {u3}, {v_l16}, {WS}, {s_st} offen sc1")
        late_ops = []
        if c.code_pf:
            pc = 's[0:1]'
            e(f"""s_getpc_b64 {pc}
            s_lshl_b32 {t0}, {s_idx}, 2
            s_add_u32 {t0}, {t0}, {s_w}
            s_mul_i32 {t0}, {t0}, 320
            v_mul_u32_u24 {u0}, 5, {v_l}
            v_add_u32 {u0}, {t0}, {u0}
            v_and_b32 {u0}, -4, {u0}
            v_min_u32 {u0}, Lcode_end-Lcode_pf-4, {u0}""")
            e.label("Lcode_pf")
            e(f"global_load_dword {a_dummy[0]}, {u0}, {pc}", track=False)
        if c.mall_q:
            if c.mallq_early:
                run(mall(WQ, 12))
            else:
                late_ops += mall(WQ, 12)
        self.lds.add(L_RING, L_END - L_RING)
        UQ = [Unit(f"q{u}", 12288, [(WQ, v_dq, u * 32 * 3072, mt * 1024, mt * 1024) for mt in range(3)]) for u in range(16)]
        s_w3k = sa()
        for u in UQ:
            u.wreg = s_w3k
        UO = [Unit(f"o{s}", 4096, [(WO, v_dw, s * 16 * 1024, 0, 0)]) for s in range(16)]
        UA = [Unit(f"a{u}", 8192 + 64, [(WG, v_dA, u * 32 * 3584, 0, 0), (WU, v_dA, u * 32 * 3584, 0, 4096 + 32)]) for u in range(16)]
        UB = [Unit(f"b{u}", 8192 + 64, [(WG, v_dA, u * 32 * 3584, 128, 0), (WU, v_dA, u * 32 * 3584, 128, 4096 + 32)]) for u in range(16)]
        fbA = [8 * mm + cb for mm in range(7) for cb in range(4)]
        fbB = [8 * mm + 4 + cb for mm in range(7) for cb in range(4)]
        fbs = fbA + fbB
        UD = [Unit(f"d{k}", 4096, [(WD, v_dd, fb * 16 * 1024, 0, 0)]) for k, fb in enumerate(fbs)]
        UG = UA + UB
        staged = UG[c.n_dir:c.n_dir + c.n_stage]
        self.stq = list(staged)
        self.queue = UQ + UO + UG[:c.n_dir] + UG[c.n_dir + c.n_stage:] + UD
        v_r8, v_b64 = V.alloc(), V.alloc()
        addr_code = f"""v_lshlrev_b32 {v_r8}, 2, {v_hh}
        v_bfe_u32 {u0}, {v_l}, 2, 2
        v_add_u32 {v_r8}, {v_r8}, {u0}
        v_bfe_u32 {u0}, {v_l}, 4, 1
        v_lshlrev_b32 {u0}, 6, {u0}
        v_and_b32 {u1}, 3, {v_l}
        v_lshlrev_b32 {u1}, 4, {u1}
        v_add_u32 {v_b64}, {u0}, {u1}
        s_lshl_b32 {t0}, {s_w}, 3
        v_add_u32 {u0}, {t0}, {v_r8}
        v_mul_u32_u24 {u1}, 3072, {u0}
        s_lshl_b32 {t2}, {s_hg}, 7
        v_add3_u32 {v_dq}, {u1}, {v_b64}, {t2}
        v_mul_u32_u24 {v_dA}, 3584, {u0}
        s_lshl_b32 {t0}, {s_kh}, 8
        s_lshl_b32 {t1}, {s_tb}, 3
        s_add_u32 {t0}, {t0}, {t1}
        v_add_u32 {u0}, {t0}, {v_r8}
        v_lshlrev_b32 {u0}, 10, {u0}
        v_add3_u32 {v_dw}, {u0}, {v_b64}, {t2}
        s_mul_i32 {t0}, {s_kh}, {56 * 16}
        s_add_u32 {t0}, {t0}, {t1}
        v_add_u32 {u0}, {t0}, {v_r8}
        v_lshlrev_b32 {u0}, 10, {u0}
        v_add3_u32 {v_dd}, {u0}, {v_b64}, {t2}
        s_lshl_b32 {t3}, {s_m}, 8
        v_add3_u32 {v_dA}, {v_dA}, {v_b64}, {t3}"""
        addr_code += f"""
        s_mul_i32 {s_w3k}, {s_w}, 3072
        v_and_b32 {u0}, 3, {v_l}
        v_lshlrev_b32 {u0}, 3, {u0}
        v_bfe_u32 {u1}, {v_l}, 2, 2
        v_lshlrev_b32 {u1}, 6, {u1}
        v_add_u32 {u0}, {u0}, {u1}
        v_bfe_u32 {u1}, {v_l}, 4, 1
        v_lshlrev_b32 {u1}, 5, {u1}
        v_add_u32 {v_trn}, {u0}, {u1}
        s_lshl_b32 {t0}, {s_g}, 11
        s_and_b32 {t1}, {s_TB}, 3
        s_lshl_b32 {t1}, {t1}, 7
        s_add_u32 {t0}, {t0}, {t1}
        s_add_u32 {s_flb}, {t0}, {WS_FLAGS}
        s_lshl_b32 {t1}, {s_hg}, 3
        s_lshl_b32 {t2}, {s_kh}, 2
        s_add_u32 {t1}, {t1}, {t2}
        s_add_u32 {t1}, {t1}, {s_flb}
        v_mov_b32 {v_fl}, {t1}"""
        al = [l.strip() for l in addr_code.split("\n")]
        run(al)
        parked = {}

        def park(name, reg):
            parked[name] = A.alloc(1)
            e(f"v_accvgpr_write_b32 {parked[name]}, {reg}")

        def unpark(name, reg, keep=False):
            t = f"v_accvgpr_read_b32 {reg}, {parked[name]}"
            return t

        def addr_of(L, name):
            run(L[:-1])
            park(name, u0)
        addr_of(mall(WO, 4), "m4"); addr_of(mall(WG, 14), "m14"); addr_of(touch3(WO, 4, 1024), "t3o"); addr_of(touch3(WD, 14, 1024), "t3d")
        addr_of(touch3(WQ, 12, 1024), "t3q")
        e(f"""s_lshr_b32 {t0}, {s_idx}, 3
        s_lshl_b32 {t0}, {t0}, 2
        s_add_u32 {t0}, {t0}, {s_w}
        s_mul_i32 {t0}, {t0}, {48 * 1024}
        s_add_u32 {t0}, {t0}, {256 * 3072}
        s_lshl_b32 {t1}, {s_hg}, 7
        s_add_u32 {t0}, {t0}, {t1}
        v_lshlrev_b32 {u0}, 10, {v_l}
        v_cmp_le_u32 vcc, 48, {v_l}
        v_add_u32 {u0}, {t0}, {u0}
        v_cndmask_b32 {u0}, {u0}, -1, vcc""")
        park("tq2", u0)
        w0, w1 = v_r8, v_b64
        e(f"""s_lshl_b32 {t0}, {s_TB}, 5
        v_add_u32 {u0}, {t0}, {v_t}
        v_lshlrev_b32 {u0}, 10, {u0}
        s_lshl_b32 {t0}, {s_hg}, 7
        s_lshl_b32 {t1}, {s_kh}, 6
        s_add_u32 {t0}, {t0}, {t1}
        v_lshlrev_b32 {u1}, 4, {v_hh}
        v_add3_u32 {u0}, {u0}, {u1}, {t0}""")
        park("xres", u0)
        e(f"""s_lshl_b32 {t0}, {s_TB}, 5
        s_lshl_b32 {t1}, {s_hg}, 2
        s_add_u32 {t0}, {t0}, {t1}
        s_lshl_b32 {t1}, {s_kh}, 1
        s_add_u32 {t0}, {t0}, {t1}
        s_lshl_b32 {t0}, {t0}, 10
        s_add_u32 {s_tile}, {t0}, {WS_O}
        v_lshlrev_b32 {u0}, 10, {v_hh}
        v_lshlrev_b32 {u1}, 4, {v_t}
        v_add3_u32 {u0}, {u0}, {u1}, {s_tile}""")
        park("o", u0)
        e(f"""s_lshl_b32 {t0}, {s_g}, 11
        s_add_u32 {t0}, {t0}, {WS_FLAGS}
        s_lshl_b32 {t1}, {s_w}, 9
        s_add_u32 {t0}, {t0}, {t1}
        v_lshl_add_u32 {u0}, {v_l}, 3, {t0}""")
        park("fpre", u0)
        e(f"""s_lshl_b32 {t0}, {s_g}, 2
        s_add_u32 {t0}, {t0}, {s_w}
        s_mul_i32 {t0}, {t0}, 112
        s_lshl_b32 {t1}, {s_m}, 3
        s_add_u32 {t0}, {t0}, {t1}
        s_lshl_b32 {t0}, {t0}, 10
        s_add_u32 {s_hh}, {t0}, {WS_HH}
        s_cmp_ge_u32 {s_m}, 14
        s_cselect_b32 {s_hh}, 0x40000000, {s_hh}
        v_lshlrev_b32 {u0}, 7, {v_l}""")
        park("l128", u0)
        e(f"""s_lshl_b32 {t0}, {s_tb}, 5
        s_add_u32 {t0}, {t0}, 16
        v_add_u32 {u1}, {t0}, {v_t}
        v_mul_u32_u24 {u2}, 144, {u1}
        v_mul_u32_u24 {u1}, 272, {u1}
        v_lshlrev_b32 {u0}, 4, {v_hh}
        s_lshl_b32 {t1}, {s_kh}, 7
        s_lshl_b32 {t2}, {s_kh}, 6
        v_add3_u32 {w0}, {u0}, {u1}, {t1}
        v_add3_u32 {w1}, {u0}, {u2}, {t2}""")
        park("vw", w0); park("kw", w1)
        e(f"v_add_u32 {w0}, {u0}, {u1}")
        park("hm", w0)
        e(f"""v_lshlrev_b32 {u3}, 6, {v_hh}
        v_add3_u32 {w0}, {u3}, {u1}, {t1}
        v_subrev_u32 {w0}, {14 * 272}, {w0}
        v_lshlrev_b32 {u3}, 5, {v_hh}
        v_add3_u32 {w1}, {u3}, {u2}, {t2}
        v_subrev_u32 {w1}, {14 * 144}, {w1}""")
        park("vr", w0); park("kr", w1)
        e(f"""v_and_b32 {u1}, 15, {v_l}
        s_lshl_b32 {t0}, {s_tb}, 7
        s_add_u32 {t0}, {t0}, 144
        s_lshl_b32 {t1}, {t2}, {s_tb}
        v_mul_u32_u24 {u2}, {t0}, {u1}
        v_add3_u32 {w0}, {u0}, {u2}, {t1}
        v_mul_u32_u24 {u2}, 272, {u1}
        v_add_u32 {w1}, {u0}, {u2}""")
        park("kh", w0); park("hhalo", w1)
        e(f"""v_lshlrev_b32 {w0}, 5, {u1}
        v_lshrrev_b32 {u2}, 4, {v_l}
        s_mul_i32 {t0}, {s_w}, 20
        v_add_u32 {u2}, {t0}, {u2}
        v_mul_u32_u24 {u2}, 272, {u2}
        v_lshl_add_u32 {w1}, {u1}, 4, {u2}""")
        park("cst", w0); park("hw", w1)
        e(f"""v_mul_u32_u24 {u0}, 3072, {v_hh}
        s_lshl_b32 {t0}, {s_kh}, 8
        v_add3_u32 {w0}, {v_trn}, {u0}, {t0}""")
        park("wq", w0)
        e(f"""s_and_b32 {t0}, s2, {NCOPY - 1}
        s_mul_i32 {t0}, {t0}, {GCOPY}
        s_add_u32 {t0}, {t0}, {WS_G}
        v_lshl_add_u32 {w0}, v0, 4, {t0}
        s_lshl_b32 {t2}, {s_w}, 11
        s_lshl_b32 {t1}, {s_hg}, 8
        s_add_u32 {t1}, {t1}, {t0}
        s_add_u32 {t1}, {t1}, {t2}
        s_add_u32 {t1}, {t1}, 4096
        v_lshl_add_u32 {w1}, {u1}, 4, {t1}""")
        park("g1", w0); park("g2", w1)
        e(f"""s_lshl_b32 {t0}, {s_g}, 6
        v_lshl_add_u32 {w0}, {u1}, 2, {t0}""")
        park("gx", w0)
        V.release(v_r8, v_b64, v_c)
        run(xld2)
        late_ops2 = [lambda: run(late_ops)]
        self.stamp("iss")
        st = V.alloc(16)
        rm = V.alloc(4)

        def unpack_acc(i):
            L = []
            o = 8 * (i & 1)
            for ch in range(4):
                r = XN[i][ch]
                for j in range(3):
                    L.append(f"v_lshlrev_b32 {r[2 * j]}, 16, {r[4 + j]}")
                    L.append(f"v_and_b32 {r[2 * j + 1]}, 0xffff0000, {r[4 + j]}")
                L.append(f"v_lshlrev_b32 {r[6]}, 16, {r[7]}")
                L.append(f"v_and_b32 {r[7]}, 0xffff0000, {r[7]}")
                for j in range(4):
                    sm, sq = st.sub(o + 2 * (j & 1), 2), st.sub(o + 4 + 2 * (j & 1), 2)
                    p = r.sub(2 * j, 2)
                    if ch == 0 and j < 2:
                        L.append(f"v_pk_add_f32 {sm}, {p}, {r.sub(2 * j + 4, 2)}")
                        L.append(f"v_pk_mul_f32 {sq}, {p}, {p}")
                    else:
                        if ch:
                            L.append(f"v_pk_add_f32 {sm}, {sm}, {p}")
                        L.append(f"v_pk_fma_f32 {sq}, {p}, {p}, {sq}")
            return L

        def reduce_norm(i):
            o = 8 * (i & 1)
            sm, sq = st[o], st[o + 4]
            L = [f"v_pk_add_f32 {st.sub(o, 2)}, {st.sub(o, 2)}, {st.sub(o + 2, 2)}",
                 f"v_pk_add_f32 {st.sub(o + 4, 2)}, {st.sub(o + 4, 2)}, {st.sub(o + 6, 2)}",
                 f"v_add_f32 {sm}, {sm}, {st[o + 1]}", f"v_add_f32 {sq}, {sq}, {st[o + 5]}"]
            for ror in (8, 4, 2, 1):
                L.append(f"v_add_f32_dpp {sm}, {sm}, {sm} row_ror:{ror} row_mask:0xf bank_mask:0xf")
                L.append(f"v_add_f32_dpp {sq}, {sq}, {sq} row_ror:{ror} row_mask:0xf bank_mask:0xf")
            pr = rm.sub(2 * (i & 1), 2)
            L += self.finish_stats(sm, sq, pr[0], pr[1], 512)
            for ch in range(4):
                for j in range(4):
                    p = XN[i][ch].sub(2 * j, 2)
                    L.append(f"v_pk_fma_f32 {p}, {p}, {pr}, {pr} op_sel:[0,0,1] op_sel_hi:[1,0,1]")
            return L

        def ln_stage(i):
            a, b = (unpack_acc(i) if i < 5 else []), (reduce_norm(i - 1) if i else [])
            m = []
            while a or b:
                if a: m.append(a.pop(0))
                if a: m.append(a.pop(0))
                if b: m.append(b.pop(0))
            return m
        sv = xn_all.sub(160, 8)
        P = []
        P += [f"v_lshlrev_b32 {cv[i]}, 16, {cv[i]}" for i in range(4)]
        P += [f"v_mul_f32 {sv[2 * i]}, 0xbfb8aa3b, {cv[i]}" for i in range(4)]
        P += [f"v_exp_f32 {sv[2 * i]}, {sv[2 * i]}" for i in range(4)]
        P += [f"v_add_f32 {sv[2 * i]}, 1.0, {sv[2 * i]}" for i in range(4)]
        P += [f"v_rcp_f32 {sv[2 * i]}, {sv[2 * i]}" for i in range(4)]
        P += [f"v_mul_f32 {sv[2 * i]}, {cv[i]}, {sv[2 * i]}" for i in range(4)]
        P += [self.bf16r(sv[2 * i], sv[2 * i])[0] for i in range(4)] + [self.bf16r(sv[2 * i], sv[2 * i])[1] for i in range(4)]
        P.append(lambda: self.stamp("silu"))
        pa = xn_all.sub(168, 8)
        wf = xn_all.sub(176, 8)
        for i in range(4):
            if i == 1:
                P.append(lambda: self.stamp("w0"))
            for j in range(4):
                P.append(f"v_lshlrev_b32 {wf[2 * j]}, 16, {wmv[4 * i + j]}")
                P.append(f"v_and_b32 {wf[2 * j + 1]}, 0xffff0000, {wmv[4 * i + j]}")
            for j in range(4):
                if i == 0:
                    P.append(f"v_pk_mul_f32 {pa.sub(2 * j, 2)}, {wf.sub(2 * j, 2)}, {sv.sub(0, 2)} op_sel_hi:[1,0]")
                else:
                    P.append(f"v_pk_fma_f32 {pa.sub(2 * j, 2)}, {wf.sub(2 * j, 2)}, {sv.sub(2 * i, 2)}, {pa.sub(2 * j, 2)} op_sel_hi:[1,0,1]")
        P.append(lambda: self.stamp("w3"))
        P += [f"v_and_b32 {u0}, 7, {v_l}", f"v_lshlrev_b32 {u0}, 5, {u0}"]
        P += [f"v_permlane32_swap_b32 {pa[j]}, {pa[j + 4]}" for j in range(4)]
        P += [f"v_add_f32 {pa[j]}, {pa[j]}, {pa[j + 4]}" for j in range(4)]
        P += [f"v_lshrrev_b32 {u1}, 4, {v_l}"]
        P += [f"v_permlane16_swap_b32 {pa[j]}, {pa[j + 2]}" for j in range(2)]
        P += [f"v_add_f32 {pa[j]}, {pa[j]}, {pa[j + 2]}" for j in range(2)]
        P += [f"v_lshl_add_u32 {u0}, {u1}, 3, {u0}", f"s_lshl_b32 {t0}, {s_w}, 8"]
        P += [f"v_add_f32_dpp {pa[j]}, {pa[j]}, {pa[j]} row_ror:8 row_mask:0xf bank_mask:0xf" for j in range(2)]
        P += [f"v_add_u32 {u0}, {t0}, {u0}", f"ds_write_b64 {u0}, {pa.sub(0, 2)} offset:{L_PART}"]
        s_tb4 = [sa() for _ in range(4)]
        pre_txt = []
        rec = e.out
        n0 = len(e.out)
        keep = (e.vm_issued, e.vm_done, list(e.hist), e.n_ins)
        for _ in range(c.n_pre):
            m = len(e.out)
            assert self.dma_step()
            pre_txt.append("\n".join(o.text for o in e.out[m:]))
        del e.out[n0:]
        e.vm_issued, e.vm_done, e.hist, e.n_ins = keep
        for u in UQ:
            if u.tok:
                u.tok = 0

        def p0(bg, rate):
            bg = self.interleave(P, bg, rate)
            pub()
            return bg

        def pub():
            e.wait_all_lg()
            e(f"""s_mul_i32 {s_tag}, {s_tag}, 0x9E3779B1
            s_add_u32 {s_tag}, {s_tag}, 0x7F4A7C18
            s_and_b32 {s_tag}, {s_tag}, 0xFFFFFFF8
            v_mov_b32 {self.v_tag}, {s_tag}
            s_lshr_b32 {s_tb4[0]}, {s_tag}, 3
            s_lshr_b32 {s_tb4[1]}, {s_tag}, 10
            s_lshr_b32 {s_tb4[2]}, {s_tag}, 17
            s_lshr_b32 {s_tb4[3]}, {s_tag}, 24""")
            self.stamp("tag")
            e.wait(vm=tok_init)
            self.barrier()
            Lsk = e.newlabel("Lnot0")
            e(f"s_cmp_lg_u32 {s_w}, 0")
            e(f"s_cbranch_scc1 {Lsk}")
            e.begin_cond(allow_lg=True)
            e.optional += 1
            e(f"""v_and_b32 {u0}, 15, {v_l}
            v_lshlrev_b32 {u1}, 4, {u0}""")
            pw = wmv
            for k in range(4):
                e(f"ds_read_b128 {pw.sub(4 * k, 4)}, {u1} offset:{L_PART + 256 * k}")
            e(f"""v_lshrrev_b32 {u2}, 4, {v_l}
            v_mul_u32_u24 {u2}, {GCOPY}, {u2}
            s_lshl_b32 {t0}, {s_col0}, 8
            s_and_b32 {t1}, {s_idx}, 3
            s_mul_i32 {t1}, {t1}, {GQ}
            s_add_u32 {t0}, {t0}, {t1}
            s_add_u32 {t0}, {t0}, {WS_G}
            v_add3_u32 {u2}, {u2}, {u1}, {t0}
            v_mov_b32 {u0}, 0xff""")
            for h in range(2):
                e(f"v_pk_add_f32 {pw.sub(2 * h, 2)}, {pw.sub(2 * h, 2)}, {pw.sub(4 + 2 * h, 2)}")
                e(f"v_pk_add_f32 {pw.sub(8 + 2 * h, 2)}, {pw.sub(8 + 2 * h, 2)}, {pw.sub(12 + 2 * h, 2)}")
            for h in range(2):
                e(f"v_pk_add_f32 {pw.sub(2 * h, 2)}, {pw.sub(2 * h, 2)}, {pw.sub(8 + 2 * h, 2)}")
            for k in range(4):
                e(f"v_bfi_b32 {pw[k]}, {u0}, {s_tb4[k]}, {pw[k]}")
            e(f"s_cmp_ge_u32 {s_idx}, 24")
            Lnp = e.newlabel("Lnopub")
            e(f"s_cbranch_scc1 {Lnp}")
            e(f"buffer_store_dwordx4 {pw.sub(0, 4)}, {u2}, {WS}, 0 offen sc1")
            e.label(Lnp)
            e(f"""s_getreg_b32 {t0}, hwreg(HW_REG_XCC_ID)
            s_and_b32 {t0}, {t0}, 7
            s_or_b32 {t0}, {t0}, {s_tag}
            v_mov_b32 {u0}, {t0}
            s_lshl_b32 {t1}, {s_g}, 4
            s_add_u32 {t1}, {t1}, {s_m}
            s_lshl_b32 {t1}, {t1}, 2
            v_mov_b32 {u1}, {t1}
            s_mov_b64 exec, 1
            buffer_store_dword {u0}, {u1}, {WS}, 0 offen offset:{WS_XID} sc1
            s_mov_b64 exec, -1""")
            e.optional -= 1
            e.end_cond(Lsk)
            e.wait_all_lg()

        def t3q():
            if c.t3 & 1:
                e(unpark("t3q", u0))
                e(f"buffer_load_dword {a_dummy[0]}, {u0}, {WQ}, 0 offen", track=False)

        def ln(i, bg, rate):
            L = ln_stage(i)
            e(L[0])
            bg = self.interleave(L[1:], bg, rate)
            self.stamp(f"x{i}")
            return bg
        bg = list(xld)
        for i in range(c.nq_k):
            bg = ln(i, bg, c.x_rate0)
        bg = p0(bg, c.x_rate)
        self.stamp("pub")
        run(bg)
        bg = list(late_ops2) + [t3q] + list(pre_txt)
        for i in range(c.nq_k, 6):
            bg = ln(i, bg, c.pre_rate)
        run(bg)
        V.release(cv, wmv, v_x, v_wm)
        V.release(st, rm)
        v_cst, v_hw, v_hm, v_hhalo = V.alloc(), V.alloc(), V.alloc(), V.alloc()
        v_wq, v_w1, v_w2 = V.alloc(3, align=1), V.alloc(3, align=1), V.alloc(3, align=1)
        run([unpark("cst", v_cst), unpark("hw", v_hw), unpark("hm", v_hm), unpark("hhalo", v_hhalo), unpark("wq", v_wq[0])])
        e(f"""s_lshl_b32 {t0}, {s_tb}, 10
        s_add_u32 {t1}, {t0}, 1024
        s_sub_u32 {t0}, 2048, {t0}
        v_add_u32 {v_wq[1]}, {WIN}, {v_wq[0]}
        v_add_u32 {v_wq[2]}, {2 * WIN}, {v_wq[0]}""")
        for k in range(3):
            e(f"v_add_u32 {v_w1[k]}, {t1}, {v_wq[k]}")
            e(f"v_add_u32 {v_w2[k]}, {t0}, {v_wq[k]}")

        self.stamp("ln1")
        gq = V.alloc(16)
        s_q = [Reg('s', 3, 1), Reg('s', 0, 1), Reg('s', 1, 1)]
        for k in range(3):
            e(f"s_mov_b32 {s_q[k]}, {(k + 1) * GQ}")

        def g_loads(r, ad):
            return [f"buffer_load_dwordx4 {r.sub(4 * k, 4)}, {ad}, {WS}, {s_q[k - 1] if k else 0} offen sc1" for k in range(4)]

        def g_check(r, a, b):
            L = [f"v_xor_b32 {a}, {s_tb4[0]}, {r[0]}", f"v_xor_b32 {b}, {s_tb4[1]}, {r[1]}"]
            for k in range(2, 16):
                d = (a, b)[k & 1]
                L.append(f"v_bitop3_b32 {d}, {r[k]}, {s_tb4[k & 3]}, {d} bitop3:0xbe")
            L += [f"v_or_b32 {a}, {a}, {b}", f"v_and_b32 {a}, 0xff, {a}"]
            return L

        def g_sum(r, packed):
            L = []
            for x, y in ((0, 4), (8, 12), (0, 8)):
                if packed:
                    L += [f"v_pk_add_f32 {r.sub(x + 2 * h, 2)}, {r.sub(x + 2 * h, 2)}, {r.sub(y + 2 * h, 2)}" for h in range(2)]
                else:
                    L += [f"v_add_f32 {r[x + h]}, {r[x + h]}, {r[y + h]}" for h in range(4)]
            L += [f"v_cvt_pk_bf16_f32 {r[0]}, {r[0]}, {r[1]}", f"v_cvt_pk_bf16_f32 {r[2]}, {r[2]}, {r[3]}"]
            return L
        run([unpark("g1", u1), f"v_lshlrev_b32 {u0}, 4, v0"])
        TO = L_TBL
        if c.h_full:
            TO = L_TBL - WIN
            v_hm2, v_hh2 = V.alloc(), V.alloc()
            e(f"""v_add_u32 {u0}, {WIN}, {u0}
            v_add_u32 {v_cst}, {WIN}, {v_cst}
            v_add_u32 {v_hm2}, {2 * HB}, {v_hm}
            v_add_u32 {v_hh2}, {2 * HB}, {v_hhalo}""")
        self.poll(g_loads(gq, u1), [], pre=g_check(gq, u2, u3) + [f"v_cmp_ne_u32 vcc, 0, {u2}"])
        self.stamp("mod")
        self.bg_on(c.post_every, limit=[UQ[7]], stage=False)
        tv = V.alloc(4)

        def unp(d, a, b):
            return f"""v_lshlrev_b32 {d[0]}, 16, {a}
            v_and_b32 {d[1]}, 0xffff0000, {a}
            v_lshlrev_b32 {d[2]}, 16, {b}
            v_and_b32 {d[3]}, 0xffff0000, {b}"""
        run(g_sum(gq, True))
        e(unp(tv, gq[0], gq[2]))
        Lno = e.newlabel("Lnoa")
        e(f"s_cmp_lt_u32 {s_w}, 2")
        e(f"s_cbranch_scc1 {Lno}")
        e.begin_cond()
        e(f"""v_pk_add_f32 {tv.sub(0, 2)}, {tv.sub(0, 2)}, 1.0 op_sel_hi:[1,0]
        v_pk_add_f32 {tv.sub(2, 2)}, {tv.sub(2, 2)}, 1.0 op_sel_hi:[1,0]
        v_cvt_pk_bf16_f32 {gq[0]}, {tv[0]}, {tv[1]}
        v_cvt_pk_bf16_f32 {gq[2]}, {tv[2]}, {tv[3]}""")
        e(unp(tv, gq[0], gq[2]))
        e.end_cond(Lno)
        tok_tbl = e(f"ds_write_b128 {u0}, {tv} offset:{TO}")
        self.barrier(lg=tok_tbl)
        cst = V.alloc(16)
        cst1 = xn_all.sub(160, 16)

        def cst_reads(ch, r):
            return [f"ds_read_b128 {r.sub(0, 4)}, {v_cst} offset:{TO + 512 * ch}",
                    f"ds_read_b128 {r.sub(8, 4)}, {v_cst} offset:{TO + 2048 + 512 * ch}",
                    f"ds_read_b128 {r.sub(4, 4)}, {v_cst} offset:{TO + 512 * ch + 16}",
                    f"ds_read_b128 {r.sub(12, 4)}, {v_cst} offset:{TO + 2048 + 512 * ch + 16}"]

        def apply_valu(ch, i, r, packed):
            L = []
            for j in range(4):
                p = XN[i][ch].sub(2 * j, 2)
                if packed:
                    L.append(f"v_pk_fma_f32 {p}, {p}, {r.sub(8 + 2 * j, 2)}, {r.sub(2 * j, 2)}")
                else:
                    for h in range(2):
                        L.append(f"v_fma_f32 {p[h]}, {p[h]}, {r[8 + 2 * j + h]}, {r[2 * j + h]}")
            for j in range(4):
                L.append(f"v_cvt_pk_bf16_f32 {XN[i][ch][j]}, {XN[i][ch][2 * j]}, {XN[i][ch][2 * j + 1]}")
            return L

        wtok = {}

        def apply_write(ch, i):
            def f():
                if LH[ch] > 60000:
                    if i == 0:
                        e(f"v_add_u32 {v_hw}, {2 * HB}, {v_hw}")
                    wtok[ch] = e(f"ds_write_b128 {v_hw}, {XN[i][ch].sub(0, 4)} offset:{LH[ch] - 2 * HB + i * 4 * 272}")
                    return
                wtok[ch] = e(f"ds_write_b128 {v_hw}, {XN[i][ch].sub(0, 4)} offset:{LH[ch] + i * 4 * 272}")
            f.solo = True
            return f

        npre_ch = c.pre_chunks
        a_xr = A.alloc(8)

        def bgl(name, *loads):
            L = []
            for k, (t, trk) in enumerate(loads):
                L.append(lambda t=t, trk=trk, k=k: ((e(unpark(name, u0)) if name and k == 0 else None), e(t, track=trk)))
            return L
        tch = lambda srd: (f"buffer_load_dword {a_dummy[0]}, {u0}, {srd}, 0 offen", False)
        qhi = []

        def make_bg():
            pf = (bgl("m4", tch(WO)) + bgl("m14", tch(WG), tch(WU), tch(WD))) if c.mall_pf == 2 else []
            pf.append(lambda: e(f"s_cmp_ge_u32 {s_m}, 14\ns_cselect_b32 s18, 0, s18\ns_cselect_b32 s22, 0, s22"))
            if c.t3 & 2:
                pf += bgl("t3o", tch(WO))
            misc = bgl("xres", (f"buffer_load_dwordx4 {a_xr.sub(0, 4)}, {u0}, {X}, 0 offen", True),
                       (f"buffer_load_dwordx4 {a_xr.sub(4, 4)}, {u0}, {X}, 0 offen offset:32", True))
            if c.preread:
                misc += bgl(None, *[(f"buffer_load_dwordx4 {a_dummy}, {v_l16}, {WS}, {s_tile} offen offset:{1024 * k} sc1", False) for k in range(2)])
                misc += bgl(None, (f"buffer_load_dword {a_dummy[0]}, {v_l16}, {WS}, {s_st} offen sc1", False))
                misc += bgl("fpre", (f"buffer_load_dword {a_dummy[0]}, {u0}, {WS}, 0 offen sc1", False))
            if c.hh_fast == 2:
                misc += bgl("l128", (f"buffer_load_dword {a_dummy[0]}, {u0}, {WS}, {s_hh} offen sc1", False))
            if c.hh_fast == 1:
                misc += [lambda: (e(unpark("l128", u0)), e(f"v_or_b32 {u0}, 4096, {u0}"),
                                  e(f"buffer_load_dword {a_dummy[0]}, {u0}, {WS}, {s_hh} offen sc1", track=False))]
            qhi.extend((pf + misc) if c.pf_first else (misc + pf))

        run(cst_reads(0, cst) + (cst_reads(1, cst1) if npre_ch > 1 else []))
        V.release(gq, tv)
        make_bg()
        nt = 0
        for ch in range(npre_ch):
            for i in range(5):
                if c.bg_early and nt % c.bg_early == 0 and qhi and nt // c.bg_early < c.bg_n:
                    qhi.pop(0)()
                nt += 1
                run(apply_valu(ch, i, (cst, cst1)[ch & 1], True))
                apply_write(ch, i)()
            if ch + 2 < npre_ch:
                run(cst_reads(ch + 2, (cst, cst1)[ch & 1]))
            elif npre_ch < 4 and ch == (npre_ch - 1) // 2 * 2:
                run(cst_reads(npre_ch, cst))
        if npre_ch < 4:
            for i in range(c.pre_tiles):
                run(apply_valu(npre_ch, i, cst, True))
        accQ, accS1, accS2, accH = [xn_all.sub(120 + 16 * k, 16) for k in range(4)]
        fr = [[A.alloc(4) for _ in range(5)] for _ in range(3)]
        steps = []
        for s in range(32):
            u, sp = s // 2, s % 2
            ch, sc = s // 8, s % 8
            f = fr[s % 3]

            def reads(u=u, sp=sp, ch=ch, sc=sc, f=f):
                aq = UQ[u].addr + sp * 6144
                hbase = LH[ch]
                wi, o = divmod(aq, WIN)
                assert o + 512 < 65536
                return [f"ds_read_b128 {f[3]}, {v_hm if hbase < 44000 else v_hm2} offset:{hbase + 32 * sc - (0 if hbase < 44000 else 2 * HB)}",
                        f"ds_read_b64_tr_b16 {f[0].sub(0, 2)}, {v_wq[wi]} offset:{o}",
                        f"ds_read_b64_tr_b16 {f[0].sub(2, 2)}, {v_wq[wi]} offset:{o + 512}",
                        f"ds_read_b64_tr_b16 {f[1].sub(0, 2)}, {v_w1[wi]} offset:{o}",
                        f"ds_read_b64_tr_b16 {f[1].sub(2, 2)}, {v_w1[wi]} offset:{o + 512}",
                        f"ds_read_b128 {f[4]}, {v_hhalo if hbase < 44000 else v_hh2} offset:{hbase + 32 * sc - (0 if hbase < 44000 else 2 * HB)}",
                        f"ds_read_b64_tr_b16 {f[2].sub(0, 2)}, {v_w2[wi]} offset:{o}",
                        f"ds_read_b64_tr_b16 {f[2].sub(2, 2)}, {v_w2[wi]} offset:{o + 512}"]
            cz = (lambda a: "0") if s == 0 else (lambda a: a)
            mf = [f"v_mfma_f32_32x32x16_bf16 {accS1}, {f[1]}, {f[3]}, {cz(accS1)}",
                  f"v_mfma_f32_32x32x16_bf16 {accH}, {f[1]}, {f[4]}, {cz(accH)}",
                  f"v_mfma_f32_32x32x16_bf16 {accS2}, {f[2]}, {f[3]}, {cz(accS2)}",
                  f"v_mfma_f32_32x32x16_bf16 {accQ}, {f[0]}, {f[3]}, {cz(accQ)}"]
            d = dict(reads=reads, mfmas=mf, units=[UQ[u]])
            if s % c.q_span == 0:
                d["bar"] = True
                d["span"] = c.q_span
                if s % 8 == 0:
                    d["lg"] = (lambda ch=ch: wtok[max(ch, npre_ch - 1)])
            steps.append(d)
        if c.h_full:
            def region(a, n):
                u = Unit("reg", n, [])
                u.addr = a
                return u
            steps[0]["release"] = [region(L_TBL, 4096)] if npre_ch == 4 else []
            steps[12]["release"] = [region(LH[0], HB)]
            steps[20]["release"] = [region(LH[1], HB - 80 * 144)]
            if npre_ch < 4:
                steps[28]["release"] = [region(L_TBL, 4096)]
        fill = []
        for ch in range(npre_ch, 4):
            gate, mark = Gate(), Mark()
            first = c.pre_tiles if ch == npre_ch else 0
            held = [apply_write(ch, i) for i in range(first)]
            for i in range(first, 5):
                fill += apply_valu(ch, i, cst, False)
                held.append(apply_write(ch, i))
                if i >= 1:
                    if gate not in fill:
                        fill.append(gate)
                    if i == 4 and ch + 1 < 4:
                        fill += cst_reads(ch + 1, cst)
                    fill += held
                    held = []
            fill += [mark]
            if ch == 1 or c.h_full:
                gate.open()
            else:
                steps[8 * (ch - 1) + 4]["postbar"] = gate.open
            steps[8 * ch]["prebar"] = (lambda mark=mark: self.drain_to(fill, mark))
        v_kw, v_vw, v_kh, v_kr, v_vr, v_o = [V.alloc() for _ in range(6)]
        g2, gx, tw, tv = xn_all.sub(0, 16), V.alloc(2), V.alloc(4), V.alloc(4)
        assert npre_ch == 4
        ga2, gax = V.alloc(), V.alloc()
        g2ld = g_loads(g2, ga2) + [f"buffer_load_dword {gx[0]}, {gax}, {WS}, 0 offen offset:{WS_XID} sc1"]
        g2ck = g_check(g2, tw[0], tw[1]) + [f"v_and_b32 {gx[1]}, -8, {gx[0]}", f"v_xor_b32 {gx[1]}, {gx[1]}, {self.v_tag}",
                                            f"v_or_b32 {tw[0]}, {tw[0]}, {gx[1]}", f"v_cmp_ne_u32 vcc, 0, {tw[0]}"]

        def g2check():
            Ls, Lb = e.newlabel("Lretry"), e.newlabel("Lback")
            e(g2ck[-1])
            e(f"s_cbranch_vccnz {Ls}")
            e.label(Lb)
            self.ool.append(f"{Ls}:\n    s_mov_b32 {self.s_spin}, 0\n{Ls}_1:\n    s_add_u32 {self.s_spin}, {self.s_spin}, 1\n"
                            f"    s_cmp_gt_u32 {self.s_spin}, {c.spin}\n    s_cbranch_scc1 Lexit\n" + "".join(f"    {t}\n" for t in g2ld) +
                            "    s_waitcnt vmcnt(0)\n" + "".join(f"    {t}\n" for t in g2ck) + f"    s_cbranch_vccnz {Ls}_1\n    s_branch {Lb}\n")
        gG, gC = Gate(), Gate()
        steps[c.st_g2]["pre"] = [gG.open]
        steps[c.st_g2 + 8]["pre"] = [gC.open]
        fill += [gG, unpark("g2", ga2), unpark("gx", gax)] + g2ld + [gC] + g2ck[:-1] + [g2check] + g_sum(g2, False)
        fill += [t.strip() for t in unp(tw, g2[0], g2[2]).split("\n")]
        fill += [f"s_cmp_eq_u32 {s_w}, 2\ns_cselect_b32 {t0}, 1.0, 0"] + [f"v_add_f32 {tv[k]}, {t0}, {tw[k]}" for k in range(4)]
        fill += [f"v_cvt_pk_bf16_f32 {g2[0]}, {tv[0]}, {tv[1]}", f"v_cvt_pk_bf16_f32 {g2[2]}, {tv[2]}, {tv[3]}"]
        fill += [t.strip() for t in unp(tw, g2[0], g2[2]).split("\n")]
        fill += [f"v_and_b32 {gx[1]}, 15, {v_l}", f"s_lshl_b32 {t0}, {s_w}, 8", f"v_lshl_add_u32 {gx[1]}, {gx[1]}, 4, {t0}"]
        fill += [f"ds_write_b128 {gx[1]}, {tw} offset:{L_TBL2}",
                 f"s_getreg_b32 {t0}, hwreg(HW_REG_XCC_ID)", f"s_and_b32 {t0}, {t0}, 7", f"s_or_b32 {t0}, {t0}, {s_tag}",
                 f"v_cmp_ne_u32 vcc, {t0}, {gx[0]}\ns_nop 1\ns_cmp_eq_u64 vcc, 0\ns_cselect_b32 {self.s_mode}, {0 if c.force_slow else 1}, 0"]
        fill += [unpark("kw", v_kw), unpark("vw", v_vw), unpark("kh", v_kh), unpark("kr", v_kr), unpark("vr", v_vr), unpark("o", v_o)]
        self.bg_off()
        self.loop_prologue(steps)
        self.stamp("p1s")
        self.lname = "Q"
        self.mfma_loop(steps, fill, lambda i, h: (c.q_hi if i >= c.q_hi0 else 0, c.q_dma if c.q_dma0 <= i < c.q_dma1 else 0, c.q_stage), hi=qhi)
        self.drain_to(fill, None)
        run(qhi)
        self.stamp("p1e")
        S.release(*s_tb4, s_col0, s_w3k)
        V.release(cst, v_cst, v_hw, v_hm, v_hhalo, v_wq, v_w1, v_w2, gx, tw, tv, ga2, gax)
        if c.h_full:
            V.release(v_hm2, v_hh2)
        for f in fr:
            A.release(*f)
        lg = V.alloc(16)
        kp = xn_all.sub(0, 16)

        def kwrite(acc, ad, o):
            for j in range(8):
                e(f"v_cvt_pk_bf16_f32 {kp[o + j]}, {acc[2 * j]}, {acc[2 * j + 1]}")
            for j in range(2):
                e(f"ds_write_b128 {ad}, {kp.sub(o + 4 * j, 4)} offset:{L_K + 32 * j}")

        def vwrite(acc, ad):
            for j in range(2):
                for jj in range(2):
                    e(f"ds_write_b128 {ad}, {acc.sub(8 * j + 4 * jj, 4)} offset:{L_V + j * 64 + jj * 32}")
        L1, L2 = e.newlabel("Ltb1"), e.newlabel("Lkv")
        e(f"s_cmp_lg_u32 {s_tb}, 0")
        e(f"s_cbranch_scc1 {L1}")
        save = (e.lg_issued, list(e.hist))
        kwrite(accS1, v_kw, 0); kwrite(accH, v_kh, 8); vwrite(accS2, v_vw)
        e(f"s_branch {L2}")
        e.label(L1)
        e.lg_issued, e.hist = save
        vwrite(accS1, v_vw); vwrite(accH, v_kh); kwrite(accS2, v_kw, 0)
        e.label(L2)
        qp = xn_all.sub(16, 8)
        e("s_nop 3")
        for j in range(8):
            e(f"v_cvt_pk_bf16_f32 {qp[j]}, {accQ[2 * j]}, {accQ[2 * j + 1]}")
        for j in range(4):
            e(f"v_permlane32_swap_b32 {qp[j]}, {qp[4 + j]}")
        e._push(Ins("s_waitcnt lgkmcnt(0)"))
        e.lg_done = e.lg_issued
        self.barrier(ready=[] if c.uo_late else UO, release=UQ + ([region(LH[3], HB)] if c.h_full else []))
        self.stamp("kv")
        self.bg_on(c.att_every, limit=[UG[c.n_dir - 1]])
        V.release(v_kh, v_kw, v_vw)
        kb = [accS1.sub(0, 8), accS1.sub(8, 8), accS2.sub(0, 8), accS2.sub(8, 8), accH.sub(0, 8), accH.sub(8, 8), kp.sub(0, 8), kp.sub(8, 8)]
        vb = [xn_all.sub(24 + 16 * k, 16) for k in range(6)] + [accS1, accS2]

        def kread(wd):
            return [f"ds_read_b128 {kb[wd].sub(4 * h, 4)}, {v_kr} offset:{L_K + (14 - 2 * wd) * 144 + 16 * h}" for h in range(2)]

        def vread(wd):
            return [f"ds_read_b128 {vb[wd].sub(4 * dq, 4)}, {v_vr} offset:{L_V + (14 - 2 * wd) * 272 + 16 * dq}" for dq in range(4)]

        def qk(ws):
            L = []
            for j in range(8):
                for wd in ws:
                    L.append(f"v_dot2_f32_bf16 {lg[2 * wd]}, {qp[j]}, {kb[wd][j]}, {'0' if j == 0 else lg[2 * wd]}")
            return L
        for wd in range(7):
            run(kread(wd))
        self.interleave(qk((0, 1, 2, 3)), kread(7) + vread(0) + vread(1) + vread(2)[:2], 0.4)
        self.interleave(qk((4, 5, 6, 7)), vread(2)[2:] + vread(3) + vread(4) + vread(5)[:2], 0.4)
        Lnm = e.newlabel("Lnomask")
        e(f"s_cmp_lg_u32 {s_TB}, 0")
        e(f"s_cbranch_scc1 {Lnm}")
        e.begin_cond()
        e(f"v_mov_b32 {u0}, 0x{f2u(-4e9):08x}")
        for wd in range(1, 8):
            e(f"v_cmp_gt_u32 vcc, {2 * wd}, {v_t}")
            e(f"v_cndmask_b32 {lg[2 * wd]}, {lg[2 * wd]}, {u0}, vcc")
        e.end_cond(Lnm)
        mx = lg[1]
        SM = [f"s_mov_b32 {t0}, 0x{f2u(0.25 * math.log2(math.e)):08x}",
              f"v_max3_f32 {mx}, {lg[0]}, {lg[2]}, {lg[4]}",
              f"v_max3_f32 {lg[3]}, {lg[6]}, {lg[8]}, {lg[10]}",
              f"v_max3_f32 {mx}, {mx}, {lg[12]}, {lg[14]}",
              f"v_max_f32 {mx}, {mx}, {lg[3]}",
              f"v_mul_f32 {mx}, {t0}, {mx}"]
        SM += [f"v_fma_f32 {lg[2 * wd]}, {lg[2 * wd]}, {t0}, -{mx}" for wd in range(8)]
        SM += [f"v_exp_f32 {lg[2 * wd]}, {lg[2 * wd]}" for wd in range(8)]
        self.interleave(SM, vread(5)[2:] + vread(6) + vread(7), 0.6)
        ov = accQ
        SUM = f"""v_add_f32 {lg[1]}, {lg[0]}, {lg[2]}
        v_add_f32 {lg[3]}, {lg[4]}, {lg[6]}
        v_add_f32 {lg[5]}, {lg[8]}, {lg[10]}
        v_add_f32 {lg[7]}, {lg[12]}, {lg[14]}
        v_add_f32 {lg[1]}, {lg[1]}, {lg[3]}
        v_add_f32 {lg[5]}, {lg[5]}, {lg[7]}
        v_add_f32 {lg[1]}, {lg[1]}, {lg[5]}
        v_rcp_f32 {lg[1]}, {lg[1]}""".split("\n")
        PV = []
        for wd in range(8):
            for j in range(8):
                p = ov.sub(2 * j, 2)
                if wd == 0:
                    PV.append(f"v_pk_mul_f32 {p}, {vb[wd].sub(2 * j, 2)}, {lg.sub(0, 2)} op_sel_hi:[1,0]")
                else:
                    PV.append(f"v_pk_fma_f32 {p}, {vb[wd].sub(2 * j, 2)}, {lg.sub(2 * wd, 2)}, {p} op_sel_hi:[1,0,1]")
        self.interleave(PV, SUM, 0.25)
        ob = lg.sub(8, 8)
        for j in range(8):
            p = ov.sub(2 * j, 2)
            e(f"v_pk_mul_f32 {p}, {p}, {lg.sub(0, 2)} op_sel:[0,1] op_sel_hi:[1,1]")
        self.bg_off()
        for j in range(8):
            e(f"v_cvt_pk_bf16_f32 {ob[j]}, {ov[2 * j]}, {ov[2 * j + 1]}")
        self.stamp("att")
        tok = self.store2([f"buffer_store_dwordx4 {ob.sub(0, 4)}, {v_o}, {WS}, 0 offen" + "{f}",
                           f"buffer_store_dwordx4 {ob.sub(4, 4)}, {v_o}, {WS}, 0 offen offset:512" + "{f}"])
        V.release(xn_all, v_kr, v_vr, v_o)
        ga, gB, gs = V.alloc(16), V.alloc(16), V.alloc(16)
        x1 = V.alloc(16)
        gb = V.alloc(16)
        v_pf = V.alloc()
        v_s0, v_s1 = V.alloc(3, align=1), V.alloc(3, align=1)
        v_act, v_red = V.alloc(), V.alloc()
        e(f"""v_lshlrev_b32 {u0}, 4, {v_hh}
        s_lshl_b32 {t0}, {s_kh}, 7
        v_add_u32 {u0}, {t0}, {u0}""")
        for vec, r in ((0, ga), (1, gs), (2, gB), (3, gb)):
            for j in range(4):
                e(f"ds_read_b128 {r.sub(4 * j, 4)}, {u0} offset:{L_TBL2 + 256 * vec + 32 * j}")
        e(f"""v_and_b32 {u1}, 7, {v_l}
        v_lshlrev_b32 {u1}, 2, {u1}
        s_lshl_b32 {t0}, {s_kh}, 5
        s_add_u32 {t0}, {t0}, {s_flb}
        v_add_u32 {v_pf}, {t0}, {u1}""")
        e.wait(vm=tok)
        self.flag_store(v_fl, F_O * 512)
        self.stamp("fo")
        V.release(lg)
        self.barrier(ready=UO)
        self.lds.add(L_RED + 16384, (L_V + HB if c.h_full else L_RING) - L_RED - 16384)
        v_w16 = V.alloc(3, align=1)
        e(f"v_add_u32 {v_w16[0]}, {s_w1k}, {v_l16}")
        for k in (1, 2):
            e(f"v_add_u32 {v_w16[k]}, {k * WIN}, {v_w16[0]}")
        done = [u for u in staged if u.next >= len(u.dmas)]
        for f in self.commit(done, v_w16):
            f()
        hold = [u for u in staged if u.addr is None]
        self.dma_all(limit=c.n_alpha)
        xr = V.alloc(8)
        for j in range(8):
            e(f"v_accvgpr_read_b32 {xr[j]}, {a_xr[j]}")
        A.release(a_xr)
        e(f"""v_lshlrev_b32 {u0}, 10, {v_hh}
        s_lshl_b32 {t0}, {s_kh}, 11
        s_lshl_b32 {t1}, {s_kh}, 8
        s_add_u32 {t2}, {t0}, {t1}
        v_add3_u32 {v_s0[0]}, {v_trn}, {u0}, {t2}
        s_sub_u32 {t2}, {t0}, {t1}
        s_add_u32 {t2}, {t2}, 256
        v_add3_u32 {v_s1[0]}, {v_trn}, {u0}, {t2}""")
        for k in (1, 2):
            e(f"v_add_u32 {v_s0[k]}, {k * WIN}, {v_s0[0]}")
            e(f"v_add_u32 {v_s1[k]}, {k * WIN}, {v_s1[0]}")
        for a, b in ((0, 2), (1, 3), (4, 6), (5, 7)):
            e(f"v_permlane32_swap_b32 {xr[a]}, {xr[b]}")
        for j in range(8):
            e(f"v_lshlrev_b32 {x1[2 * j]}, 16, {xr[j]}")
            e(f"v_and_b32 {x1[2 * j + 1]}, 0xffff0000, {xr[j]}")
        V.release(xr)
        e(f"""s_lshl_b32 {t0}, {s_TB}, 5
        s_lshl_b32 {t1}, {s_kh}, 4
        s_add_u32 {t0}, {t0}, {t1}
        s_lshl_b32 {t0}, {t0}, 10
        s_add_u32 {t0}, {t0}, {WS_O}
        v_add_u32 {v_act}, {t0}, {v_l16}
        v_add_u32 {v_red}, {s_w1k}, {v_l16}
        v_lshlrev_b32 {v_red}, 2, {v_red}
        v_mul_u32_u24 {u0}, 48, {v_l}
        v_sub_u32 {v_red}, {v_red}, {u0}""")
        fr = [[A.alloc(4) for _ in range(4)] for _ in range(3)]
        acc0, acc1 = V.alloc(16), V.alloc(16)

        def kloop(units, act, rdoff, nk, first=True, base=0):
            steps = []
            for i in range(nk // 2):
                f = fr[(base + i) % 3]

                def reads(i=i, f=f):
                    L = []
                    for h in range(2):
                        ad = units[2 * i + h].addr
                        wi, o = divmod(ad, WIN)
                        assert o + rdoff < 65536
                        for sl, base in ((0, v_s0), (1, v_s1)):
                            L.append(f"ds_read_b64_tr_b16 {f[2 * h + sl].sub(0, 2)}, {base[wi]} offset:{o}")
                            L.append(f"ds_read_b64_tr_b16 {f[2 * h + sl].sub(2, 2)}, {base[wi]} offset:{o + rdoff}")
                    return L
                mf = []
                for h in range(2):
                    for sl, acc in ((0, acc0), (1, acc1)):
                        cin = "0" if (first and i == 0 and h == 0) else acc
                        mf.append(f"v_mfma_f32_32x32x16_bf16 {acc}, {f[2 * h + sl]}, {act[2 * i + h]}, {cin}")
                steps.append(dict(reads=reads, mfmas=mf, units=[units[2 * i], units[2 * i + 1]]))
            return steps

        s_ao = sa()

        cur_ao = [None]

        def act_loads(regs, vaddr, offs):
            L = []
            for r, o in zip(regs, offs):
                def f(r=r, o=o):
                    if (c.exp_nohh and vaddr is not v_act) or (c.exp_noh2 and len(regs) == 32):
                        return
                    b = o & ~4095
                    if b != cur_ao[0]:
                        e(f"s_mov_b32 {s_ao}, {b}")
                        cur_ao[0] = b
                    e(f"buffer_load_dwordx4 {r}, {vaddr}, {CC if len(regs) == 32 else WS}, {s_ao} offen offset:{o & 4095}{c.act_fl}")
                L.append(f)
            return L

        actf = [A.alloc(4) for k in range(16)]
        steps = kloop(UO, actf, 512, 16)
        self.loop_prologue(steps)
        self.poll([f"buffer_load_dword {u1}, {v_pf}, {WS}, 0 offen offset:{F_O * 512} sc1"], [u1])
        self.stamp("po")
        self.lname = "O"
        hl = act_loads(actf[:16], v_act, [1024 * k for k in range(16)])
        run(hl[:6])
        hi = hl[6:]
        for i in range(3, 8):
            def f(n=14 - 2 * i):
                while len(hi) > n + c.n_beta:
                    hi.pop(0)()
            steps[i]["pre"] = [f]
        nb = [0]

        def beta():
            if nb[0] < c.n_beta:
                nb[0] += bool(self.stage_step())
        hi += [beta] * c.n_beta
        self.mfma_loop(steps, [], lambda i, h: (1, 0, 0), hi=hi)
        rest = [u for u in self.stq if u.next == 0]
        while self.stq and self.stq[0].next:
            if self.stq[0].next >= len(self.stq[0].dmas):
                self.stq.pop(0)
            else:
                self.stage_step()
        self.stq = []
        k = 0
        while k < len(self.queue) and (self.queue[k].addr is not None or self.queue[k] in UG[:c.n_dir]):
            k += 1
        self.queue[k:k] = rest
        staged = [u for u in staged if u not in rest]

        def reduce_pair():
            for j in range(4):
                e(f"ds_write_b128 {v_red}, {acc1.sub(4 * j, 4)} offset:{L_RED + 1024 * j}")
            e(f"v_xor_b32 {u0}, 8192, {v_red}")

        def reduce_read():
            for j in range(4):
                e(f"ds_read_b128 {acc1.sub(4 * j, 4)}, {u0} offset:{L_RED + 1024 * j}")
            for j in range(8):
                e(f"v_pk_add_f32 {acc0.sub(2 * j, 2)}, {acc0.sub(2 * j, 2)}, {acc1.sub(2 * j, 2)}")
        reduce_pair()
        self.barrier(release=UO)
        reduce_read()
        self.stamp("p2m")
        for j in range(8):
            e(f"v_pk_fma_f32 {x1.sub(2 * j, 2)}, {acc0.sub(2 * j, 2)}, {ga.sub(2 * j, 2)}, {x1.sub(2 * j, 2)}")
        sm, sq = acc1.sub(0, 4), acc1.sub(4, 4)
        for j in range(8):
            p = x1.sub(2 * j, 2)
            a, b = sm.sub(2 * (j & 1), 2), sq.sub(2 * (j & 1), 2)
            if j < 2:
                e(f"v_pk_add_f32 {a}, {p}, {x1.sub(2 * j + 4, 2)}")
                e(f"v_pk_mul_f32 {b}, {p}, {p}")
            else:
                if j >= 4:
                    e(f"v_pk_add_f32 {a}, {a}, {p}")
                e(f"v_pk_fma_f32 {b}, {p}, {p}, {b}")
        gr = acc1[8]
        e(f"""v_pk_add_f32 {sm.sub(0, 2)}, {sm.sub(0, 2)}, {sm.sub(2, 2)}
        v_pk_add_f32 {sq.sub(0, 2)}, {sq.sub(0, 2)}, {sq.sub(2, 2)}
        s_lshl_b32 {t0}, {s_TB}, 12
        v_add_f32 {sm[0]}, {sm[0]}, {sm[1]}
        v_add_f32 {sq[0]}, {sq[0]}, {sq[1]}
        s_add_u32 {t0}, {t0}, {WS_STATS}
        v_permlane32_swap_b32 {sm[0]}, {sq[0]}
        v_add_f32 {gr}, {sm[0]}, {sq[0]}
        v_min_u32 {gr}, -2, {gr}""")
        self.store2([f"buffer_store_dword {gr}, {v_l16}, {WS}, {s_st} offen" + "{f}"])
        sg = V.alloc(16)
        for f in self.commit(staged, v_w16):
            f()
        assert all(u.addr is not None for u in staged), "staged units left"
        V.release(v_w16)
        tm = self.v_tmp
        pre = [f"v_max3_u32 {tm}, {sg[0]}, {sg[1]}, {sg[2]}", f"v_max3_u32 {u0}, {sg[3]}, {sg[4]}, {sg[5]}",
               f"v_max3_u32 {tm}, {tm}, {sg[6]}, {sg[7]}", f"v_max3_u32 {u0}, {u0}, {sg[8]}, {sg[9]}",
               f"v_max3_u32 {tm}, {tm}, {sg[10]}, {sg[11]}", f"v_max3_u32 {u0}, {u0}, {sg[12]}, {sg[13]}",
               f"v_max3_u32 {tm}, {tm}, {sg[14]}, {sg[15]}", f"v_max_u32 {tm}, {tm}, {u0}", f"v_cmp_eq_u32 vcc, -1, {tm}"]
        self.poll([f"buffer_load_dwordx4 {sg.sub(4 * k, 4)}, {v_l16}, {WS}, {t0} offen offset:{1024 * k} sc1" for k in range(4)], [], pre=pre)
        self.stamp("pst")
        for k in range(4):
            e(f"v_pk_add_f32 {sg.sub(2 * k, 2)}, {sg.sub(2 * k, 2)}, {sg.sub(8 + 2 * k, 2)}")
        e(f"""v_pk_add_f32 {sg.sub(0, 2)}, {sg.sub(0, 2)}, {sg.sub(4, 2)}
        v_pk_add_f32 {sg.sub(2, 2)}, {sg.sub(2, 2)}, {sg.sub(6, 2)}
        v_pk_add_f32 {sg.sub(0, 2)}, {sg.sub(0, 2)}, {sg.sub(2, 2)}
        v_add_f32 {sg[0]}, {sg[0]}, {sg[1]}
        v_mov_b32 {sg[1]}, {sg[0]}
        v_permlane32_swap_b32 {sg[0]}, {sg[1]}""")
        pr = sg.sub(2, 2)
        for t in self.finish_stats(sg[0], sg[1], pr[0], pr[1], 512):
            e(t)
        for j in range(8):
            e(f"v_pk_fma_f32 {acc0.sub(2 * j, 2)}, {x1.sub(2 * j, 2)}, {pr}, {pr} op_sel:[0,0,1] op_sel_hi:[1,0,1]")
        for j in range(8):
            e(f"v_pk_fma_f32 {acc0.sub(2 * j, 2)}, {acc0.sub(2 * j, 2)}, {gB.sub(2 * j, 2)}, {gs.sub(2 * j, 2)}")
        for j in range(8):
            e(f"v_cvt_pk_bf16_f32 {acc1[j]}, {acc0[2 * j]}, {acc0[2 * j + 1]}")
        tok = self.store2([f"buffer_store_dwordx4 {acc1.sub(0, 4)}, {v_l16}, {WS}, {s_tile} offen" + "{f}",
                           f"buffer_store_dwordx4 {acc1.sub(4, 4)}, {v_l16}, {WS}, {s_tile} offen offset:1024" + "{f}"])
        V.release(sg, ga, gB, gs)
        self.dma_all(limit=c.n_gamma)
        v_ta = V.alloc(3, align=1)
        v_p3f, v_p3s, v_hha, v_chk = V.alloc(), V.alloc(), V.alloc(), V.alloc()
        e(f"""v_and_b32 {u0}, 3, {v_l}
        v_lshlrev_b32 {u0}, 3, {u0}
        v_bfe_u32 {u1}, {v_l}, 2, 2
        v_bfe_u32 {u2}, {v_l}, 4, 1
        v_lshlrev_b32 {u3}, 6, {u1}
        v_add_u32 {u3}, {u3}, {u0}
        v_mul_u32_u24 {v_ta[0]}, {4096 + 32}, {u2}
        v_lshlrev_b32 {v_ta[1]}, 9, {v_hh}
        v_add3_u32 {v_ta[0]}, {v_ta[0]}, {v_ta[1]}, {u3}""")
        for k in (1, 2):
            e(f"v_add_u32 {v_ta[k]}, {k * WIN}, {v_ta[0]}")
        e(f"""s_lshl_b32 {t0}, {s_g}, 2
        s_add_u32 {t0}, {t0}, {s_w}
        s_lshl_b32 {t1}, {t0}, 15
        s_add_u32 {t1}, {t1}, {WS_H2}
        v_add_u32 {v_act}, {t1}, {v_l16}
        s_lshl_b32 {t0}, {s_g}, 11
        s_lshl_b32 {t1}, {s_w}, 7
        s_add_u32 {t0}, {t0}, {t1}
        s_add_u32 {t0}, {t0}, {WS_FLAGS}
        v_and_b32 {u0}, 15, {v_l}
        v_lshlrev_b32 {u0}, 2, {u0}
        v_add_u32 {v_p3f}, {t0}, {u0}
        s_lshl_b32 {t1}, {s_m}, 2
        s_add_u32 {t0}, {t0}, {t1}
        v_mov_b32 {v_p3s}, {t0}""")
        e.wait(vm=tok)
        self.flag_store(v_fl, F_H * 512)
        self.stamp("fh")
        if c.stop == "p2":
            return self.finish()
        e(f"""v_lshlrev_b32 {u0}, 9, {v_hh}
        s_lshl_b32 {t0}, {s_kh}, 11
        s_lshl_b32 {t1}, {s_kh}, 8
        s_add_u32 {t2}, {t0}, {t1}
        v_add3_u32 {v_s0[0]}, {v_trn}, {u0}, {t2}
        s_sub_u32 {t2}, {t0}, {t1}
        s_add_u32 {t2}, {t2}, 256
        v_add3_u32 {v_s1[0]}, {v_trn}, {u0}, {t2}""")
        for k in (1, 2):
            e(f"v_add_u32 {v_s0[k]}, {k * WIN}, {v_s0[0]}")
            e(f"v_add_u32 {v_s1[k]}, {k * WIN}, {v_s1[0]}")
        e(f"""s_mul_i32 {t0}, {s_TB}, 112
        s_mul_i32 {t1}, {s_kh}, 56
        s_add_u32 {t0}, {t0}, {t1}
        s_lshl_b32 {t0}, {t0}, 10
        s_add_u32 {t0}, {t0}, {WS_HH}
        v_add_u32 {v_hha}, {t0}, {v_l16}
        v_and_b32 {u1}, 7, {v_l}
        v_min_u32 {u1}, 6, {u1}
        v_lshlrev_b32 {u1}, 2, {u1}
        s_mul_i32 {t0}, {s_kh}, 28
        s_add_u32 {t0}, {t0}, {s_flb}
        v_add_u32 {v_pf}, {t0}, {u1}""")
        actf += [A.alloc(4) for k in range(16)]
        e("s_mov_b32 s40, s36\ns_mov_b32 s41, s37\ns_mov_b32 s42, s38")
        if c.idle_pf:
            Li = e.newlabel("Lbusy")
            e(f"s_cmp_lt_u32 {s_m}, 14")
            e(f"s_cbranch_scc1 {Li}")
            e.begin_cond()
            e(f"""s_and_b32 {t0}, {s_g}, 1
            s_lshl_b32 {t0}, {t0}, 1
            s_add_u32 {t0}, {t0}, {s_m}
            s_sub_u32 {t0}, {t0}, 14""")
            if c.idle_pf & 1:
                e(f"""s_lshl_b32 {t1}, {t0}, 12
                s_add_u32 {t1}, {t1}, {c.idle_off - 128}
                v_lshl_add_u32 {v_dA}, v0, 4, {t1}
                s_mov_b32 s16, s24
                s_mov_b32 s17, s25
                s_mov_b32 s18, s26
                s_add_u32 s20, s24, 16384
                s_addc_u32 s21, s25, 0
                s_sub_u32 s22, s26, 16384""")
            if c.idle_pf & 2:
                e(f"""s_lshl_b32 {t0}, {t0}, 2
                s_add_u32 {t0}, {t0}, {s_w}
                s_and_b32 {t1}, {t0}, 1
                s_lshl_b32 {t1}, {t1}, 15
                s_lshr_b32 {t0}, {t0}, 1
                s_lshr_b32 {t2}, {t0}, 2
                s_mul_i32 {t2}, {t2}, 3
                s_add_u32 {t0}, {t0}, {t2}
                s_lshl_b32 {t0}, {t0}, 17
                s_add_u32 {t0}, {t0}, {t1}
                v_add_u32 {v_act}, {t0}, {v_l16}
                s_mov_b32 s40, s24
                s_mov_b32 s41, s25
                s_mov_b32 s42, s26""")
            e.end_cond(Li)
        accA = [V.alloc(16) for _ in range(4)]
        accB = [V.alloc(16) for _ in range(4)]
        steps = []
        for ph, (UU, accs) in enumerate(((UA, accA), (UB, accB))):
            for s in range(32):
                f = fr[len(steps) % 3]

                def reads(s=s, f=f, UU=UU):
                    ad = UU[s // 2].addr + (s % 2) * 2048
                    wi, o = divmod(ad, WIN)
                    L = []
                    for cb in range(4):
                        for rd in range(2):
                            L.append(f"ds_read_b64_tr_b16 {f[cb].sub(2 * rd, 2)}, {v_ta[wi]} offset:{o + rd * 1024 + (cb >> 1) * 256 + (cb & 1) * 32}")
                    return L
                mf = [f"v_mfma_f32_32x32x16_bf16 {accs[cb]}, {f[cb]}, {actf[s]}, {'0' if s == 0 else accs[cb]}" for cb in range(4)]
                d = dict(reads=reads, mfmas=mf, units=[UU[s // 2]])
                if s % 4 == 0:
                    d["bar"], d["span"] = True, 4
                steps.append(d)
        red_unit = Unit("red", 16384, [])
        red_unit.addr = L_RED
        steps[0]["release"] = [red_unit]
        hx = [A.alloc(4) for _ in range(12)]
        actH = hx + [accA[k // 4].sub(4 * (k % 4), 4) for k in range(16)] + actf[:28]
        s4 = kloop(UD, actH, 1024, 56, base=64)
        for i in range(0, 28, 4):
            s4[i]["bar"], s4[i]["span"] = True, 4
        steps += s4
        stok = {}

        def glu(acc, imm, key):
            L = [f"v_mul_f32 {acc[v]}, {acc[v]}, {acc[v + 8]}" for v in range(8)]
            L += [f"v_cvt_pk_bf16_f32 {acc[8 + j]}, {acc[2 * j]}, {acc[2 * j + 1]}" for j in range(4)]

            def st():
                if c.hh_fast == 2 or (c.hh_fast == 1 and key == "B"):
                    stok[key] = self.store2([f"buffer_store_dwordx4 {acc.sub(8, 4)}, {v_l16}, {WS}, {s_hh} offen offset:{imm}" + "{f}"])
                else:
                    stok[key] = e(f"buffer_store_dwordx4 {acc.sub(8, 4)}, {v_l16}, {WS}, {s_hh} offen offset:{imm} sc1")
            return L + [st]
        gA, gFA, gB, gFB, gHA, gHB = [Gate() for _ in range(6)]
        fill = (bgl("t3d", tch(WD)) if c.t3 & 4 else []) + [gA]
        for cb in range(4):
            fill += glu(accA[cb], 1024 * cb, "A")
        fill += [f"s_add_u32 {s_hh}, {s_hh}, 4096", gB]
        for cb in range(4):
            fill += glu(accB[cb], 1024 * cb, "B")
        issA, chkA = self.opt_check(v_pf, F_A * 512, v_chk)
        issB, chkB = self.opt_check(v_pf, F_B * 512, v_chk)

        def hook(i, f):
            steps[i].setdefault("pre", []).append(f)
        hook(33, gA.open)
        hook(c.st_fa, lambda: (self.drain_to(fill, gB), fill.insert(0, gB), e.wait(vm=stok["A"]), self.flag_store(v_p3s, F_A * 512), self.stamp("fa")))
        hook(c.st_ia, issA)
        hook(c.st_ca, lambda: (chkA(), gHA.open(), self.stamp("ca")))
        if c.burst_b:
            hook(64, lambda: (gB.open(), self.drain_to(fill, None)))
        else:
            hook(65, gB.open)
        if c.burst_a:
            hook(33, lambda: (self.drain_to(fill, gB), fill.insert(0, gB)))
        if c.wb_at:
            def wb():
                Lw = e.newlabel("Lnowb")
                e(f"s_lshl_b32 {t0}, {s_idx}, 2\ns_add_u32 {t0}, {t0}, {s_w}\ns_cmp_lg_u32 {t0}, {c.wb_who}")
                e(f"s_cbranch_scc1 {Lw}")
                e.optional += 1
                e("buffer_wbl2 sc1")
                e.optional -= 1
                e.label(Lw)
            hook(c.wb_at, wb)
        hook(c.st_fb, lambda: (self.drain_to(fill, None), e.wait(vm=stok["B"]), self.flag_store(v_p3s, F_B * 512), self.stamp("fb")))
        hook(c.st_ib, issB)
        hook(c.st_cb, lambda: (chkB(), gHB.open(), self.stamp("cb")))
        hl = act_loads(actf, v_act, [1024 * k for k in range(32)])
        hi = hl[c.act_lead:] + [gHA] + act_loads(actH[:28], v_hha, [1024 * fb for fb in fbA]) + [gHB]
        hb = act_loads(actH[28:], v_hha, [1024 * fb for fb in fbB])
        hook(c.st_cb, lambda: run(hb[:c.lead_b]))
        hi += hb[c.lead_b:]

        def need(i, n):
            def f():
                while len(hi) > n:
                    t = hi.pop(0)
                    if isinstance(t, Gate):
                        assert t.is_open, f"gate closed at step {i}"
                    else:
                        t()
            hook(i, f)
        total = len(hi)
        pos = {}
        k = c.act_lead
        seq = list(range(c.act_lead, 32)) + [None] + list(range(64 * 2, 64 * 2 + 28)) + [None] + list(range(64 * 2 + 28 + c.lead_b, 64 * 2 + 56))
        for n, q in enumerate(seq):
            if q is not None:
                st_i = q if q < 32 else q // 2
                need(st_i, total - n - 1)
        self.loop_prologue(steps)
        self.poll([f"buffer_load_dword {u1}, {v_p3f}, {WS}, 0 offen offset:{F_H * 512} sc1"], [u1])
        self.stamp("ph")
        self.lname = "G"
        run(hl[:c.act_lead])

        def g_rates(i, h):
            if any(p0 <= i < p1 for p0, p1 in c.pauses):
                return (c.g_hi[2] if i >= 64 else c.g_hi[i // 32], 0, 0)
            reg = min(i // 32, 2)
            if i >= c.st_cb:
                return (c.g_hi[2], c.g_end, c.g_end) if h else (0, c.g_dma[2], 0)
            return (c.g_hi[reg], c.g_mix[reg] if h else c.g_dma[reg], 0)
        self.mfma_loop(steps, fill, g_rates, rng=(0, 64), hi=hi)
        self.stamp("p3e")
        self.mfma_loop(steps, fill, g_rates, rng=(64, 92), hi=hi)
        self.stamp("p4e")
        self.barrier()
        reduce_pair()
        e(unpark("xres", u1))
        self.barrier()
        reduce_read()
        for j in range(8):
            e(f"v_pk_fma_f32 {x1.sub(2 * j, 2)}, {acc0.sub(2 * j, 2)}, {gb.sub(2 * j, 2)}, {x1.sub(2 * j, 2)}")
        for j in range(8):
            e(f"v_cvt_pk_bf16_f32 {acc1[j]}, {x1[2 * j]}, {x1[2 * j + 1]}")
        for a, b in ((0, 2), (1, 3), (4, 6), (5, 7)):
            e(f"v_permlane32_swap_b32 {acc1[a]}, {acc1[b]}")
        e(f"buffer_store_dwordx4 {acc1.sub(0, 4)}, {u1}, {OUT}, 0 offen{c.out_fl}")
        e(f"buffer_store_dwordx4 {acc1.sub(4, 4)}, {u1}, {OUT}, 0 offen offset:32{c.out_fl}")
        Lnb = e.newlabel("Lnobump")
        e(f"s_or_b32 {t0}, s2, {s_w}")
        e(f"s_cmp_lg_u32 {t0}, 0")
        e(f"s_cbranch_scc1 {Lnb}")
        xi = acc0.sub(0, 4)
        self.poll([f"buffer_load_dwordx4 {xi}, {v_l16}, {WS}, 0 offen offset:{WS_XID} sc1"], [xi[k] for k in range(4)],
                  pre=[f"v_and_b32 {xi[k]}, -8, {xi[k]}" for k in range(4)])
        e(f"""v_mov_b32 {u0}, 0
        s_mov_b64 exec, 1
        buffer_store_dword {self.v_tag}, {u0}, {WS}, 0 offen offset:{WS_E} sc1
        s_mov_b64 exec, -1""")
        e.label(Lnb)
        return self.finish()

    def finish(self):
        e, c = self.e, self.c
        if c.stamps:
            self.stamp("end")
            e(f"s_memrealtime {self.rt1}")
            e.wait_all_lg()
            t = self.v_tmp
            e("s_mov_b64 exec, 1")
            e(f"v_lshrrev_b32 {t}, 6, v0")
            e(f"v_lshlrev_b32 {t}, 6, {t}")
            e(f"s_lshl_b32 s3, s2, 8")
            e(f"v_add_u32 {t}, s3, {t}")
            e(f"v_add_u32 {t}, {WS_STAMP}, {t}")
            e(f"v_mov_b32 {self.v_tag}, {self.rt0[0]}")
            e(f"buffer_store_dword {self.v_tag}, {t}, s[36:39], 0 offen offset:60")
            e(f"v_mov_b32 {self.v_tag}, {self.rt1[0]}")
            e(f"buffer_store_dword {self.v_tag}, {t}, s[36:39], 0 offen offset:56")
            for k in range(len(self.stamp_names)):
                r = self.stamp_regs[k]
                e(f"s_sub_u32 s3, {r[0]}, {self.stamp_regs[0][0]}")
                e(f"v_mov_b32 {self.v_tag}, s3")
                e(f"buffer_store_dword {self.v_tag}, {t}, s[36:39], 0 offen offset:{4 * k}")
        if c.dbg:
            e("s_memtime s[4:5]\ns_memrealtime s[6:7]")
            e.wait_all_lg()
            e(f"""s_sub_u32 s4, s4, {self.d0[0]}
            s_sub_u32 s5, s6, {self.d1[0]}
            v_mov_b32 v2, s4
            v_mov_b32 v3, s5
            s_and_b32 s8, s2, 7
            s_lshl_b32 s8, s8, 3
            v_mov_b32 v4, s8
            s_mov_b64 exec, 1
            global_store_dwordx2 v4, v[2:3], {self.dp}""")
        e.label("Lexit")
        e("s_endpgm")
        return e.text() + "".join(self.ool) + "Lcode_end:\n"


def kernel_file(body, hdr):
    k = NAME + "_kernel"
    return f"""{hdr}; @launch grid=(256,1,1) block=(256,1,1) lds=163840
.amdgcn_target "amdgcn-amd-amdhsa--gfx950"
.text
.globl {k}
.p2align 8
.type {k},@function
{k}:
{body}.section .rodata,"a"
.p2align 6
.amdhsa_kernel {k}
  .amdhsa_next_free_vgpr 512
  .amdhsa_next_free_sgpr 102
  .amdhsa_accum_offset 256
  .amdhsa_group_segment_fixed_size 0
  .amdhsa_kernarg_size 96
  .amdhsa_user_sgpr_count 2
  .amdhsa_user_sgpr_kernarg_segment_ptr 1
  .amdhsa_system_sgpr_workgroup_id_x 1
.end_amdhsa_kernel
"""


if __name__ == "__main__":
    ap = argparse.ArgumentParser()
    ap.add_argument("-o", default="k.s")
    ap.add_argument("--stop")
    ap.add_argument("--stamps")
    ap.add_argument("--log", action="store_true")
    ap.add_argument("--set", nargs="*", default=[])
    a = ap.parse_args()
    c = Cfg()
    c.stop = a.stop
    c.stamps = a.stamps.split(",") if a.stamps else None
    for kv in a.set:
        k, v = kv.split("=")
        setattr(c, k, eval(v))
    g = Gen(c)
    body = g.build()
    hdr = "; stamps: " + " ".join(g.stamp_names) + "\n" if c.stamps else ""
    open(a.o, "w").write(kernel_file(body, hdr))
    print("instrs", g.e.n_ins, "nops", g.e.nops, "barriers", g.nbar, "vgpr hi", g.V.hi, "agpr hi", g.A.hi, "sgpr hi", g.S.hi)
    if a.log:
        print("\n".join(g.log))
```

```python
import sys, math, argparse, struct
sys.path.insert(0, "gen")
from emit import *

NAME = "adaLN_cond__sliding_local_dilated__glu_gated_bilinear__prompt"

WS_E, WS_XID, WS_FLAGS, WS_G, WS_STATS = 0x0, 0x400, 0x1000, 0x10000, 0x80000
WS_O, WS_H2, WS_HH, WS_STAMP, WS_SIZE = 0x100000, 0x100000, 0x500000, 0xC00000, 0xD00000
GQ = 0x3000
GCOPY = 4 * GQ
NCOPY = 4
F_O, F_H, F_A, F_B = 0, 1, 2, 3
L_TBL2 = 0
L_PART = 1024
L_TBL = 2048
L_K = L_TBL
HB = 80 * 272
L_H0 = L_K + 80 * 144
L_V = L_H0
L_H1 = L_H0 + HB
L_RING = L_H1 + HB
L_END = 163840
L_RED = L_TBL
SLOTS = 5
WIN = 61440


def f2u(x):
    return struct.unpack("<I", struct.pack("<f", x))[0]


class Cfg:
    mimic = True
    stamps = None
    stop = None
    force_slow = False
    hh_sc1 = True
    preread = True
    spin = 1 << 16
    dma_every = 2
    pre_chunks = 4
    nx_first = 8
    nw_first = 0
    x_rate0 = 0.06
    x_rate = 1 / 12
    pre_rate = 1 / 14
    dma_hop1 = 8
    dma_hop2 = 8
    dma_hop3 = 8
    exp_nodma = False
    exp_skip = ''
    exp_nohh = False
    exp_noh2 = False
    act_fl = ' sc1'
    code_pf = True
    touch = 1
    tlb = 0
    touchq = 0
    mall_q = True
    t3 = 7
    n_pre = 15
    n_alpha, n_beta, n_gamma = 6, 8, 6
    lead_b = 12
    pauses = ()
    q_dma, q_dma0, q_stage = 0.5, 0, 0
    g_hi = (0.27, 0.3, 0.5)
    g_mix = (0.3, 0.15, 0.5)
    g_dma = (0.34, 0.4, 0.5)
    pre_tiles = 2
    pf_first = True
    rot = 11
    rsh = 1
    gbit = 2
    exp_stagger = ()
    skip_idle = False
    rt = False
    psleep = 0
    p2_lead = 10
    sent = 0
    commit_late = True
    att_n = 1000
    dbg = False
    out_fl = ''
    nq_k = 1
    w_first = 24
    mallq_early = False
    np0 = 4
    n_rate = 0.12
    st_g2 = 14
    code_pf0 = True
    nx_pre = 4
    idle_pf = 0
    idle_off = 65536
    burst_a = False
    burst_b = True
    g_end = 0.4
    bg_early = 1
    bg_n = 5
    q_dma1 = 32
    uo_late = True
    hh_fast = 0
    wb_at = 0
    wb_who = 60
    h_full = True
    q_span = 2
    tq2 = 9
    q_hi, q_hi0 = 0.3, 22
    solo_reads = 0
    mall_pf = 2
    dma_p1 = 2
    dma_p3 = 3
    dma_p4 = 2
    dma_att = 0
    act_lead = 4
    dma_p2 = 0
    n_dir, n_stage = 8, 4
    stage_p1 = 0
    att_every = 20
    post_every = 0
    hi3, mix3 = 3, 3
    hi4, mix4 = 2, 2
    st_fa, st_ia, st_ca = 47, 50, 53
    st_fb, st_ib, st_cb = 74, 76, 78


class Lds:
    def __init__(self):
        self.free = []

    def add(self, a, n):
        for iv in self.free:
            assert a + n <= iv[0] or a >= iv[1], "double free"
        self.free.append([a, a + n])
        self.free.sort()
        m = []
        for iv in self.free:
            if m and m[-1][1] == iv[0]:
                m[-1][1] = iv[1]
            else:
                m.append(iv)
        self.free = m

    def alloc(self, n, span=0):
        for iv in self.free:
            a = iv[0]
            if iv[1] - a >= n:
                iv[0] += n
                if iv[0] == iv[1]:
                    self.free.remove(iv)
                return a
        return None


class Gate:
    is_open = False

    def open(self):
        self.is_open = True


class Mark:
    pass


class Skip:
    def __init__(self, n):
        self.n = n


class Unit:
    def __init__(self, name, size, dmas):
        self.name, self.size, self.dmas = name, size, dmas
        self.addr = None
        self.next = 0
        self.tok = None
        self.ready = False
        self.released = False


class Gen:
    def __init__(self, cfg):
        self.c = cfg
        self.e = Emit()
        self.V = RegAlloc("v", 256, first=1)
        self.A = RegAlloc("a", 256)
        self.S = RegAlloc("s", 102, first=44)
        self.lds = Lds()
        self.queue = []
        self.stamp_names = []
        self.nbar = 0
        self.cur_so = None
        self.dq = []
        self.log = []
        self.ool = []
        self.stq = []
        self.cur_so2 = None
        self.cur_m0 = None
        self.lname = 'L'

    def dma_prepare(self):
        while self.queue and self.queue[0].next >= len(self.queue[0].dmas):
            self.queue.pop(0)
        if not self.queue:
            return []
        u = self.queue[0]
        if u.addr is None:
            u.addr = self.lds.alloc(u.size)
            if u.addr is None:
                return []
        srd, vreg, soff, imm, loff = u.dmas[u.next]
        u.next += 1
        e = self.e
        L = []
        m0v = (str(getattr(u, "wreg", self.s_w1k)), u.addr + loff - imm)
        if m0v != self.cur_m0:
            L.append(lambda: e(f"s_add_u32 m0, {m0v[0]}, {m0v[1]}"))
            self.cur_m0 = m0v
        if callable(soff):
            soff = soff()
        if soff and soff != self.cur_so:
            for t in self.so_code(self.s_so, soff):
                L.append(lambda t=t: e(t))
            self.cur_so = soff
        so = self.s_so if soff else 0
        im = f" offset:{imm}" if imm else ""

        if (self.c.exp_nodma and getattr(self, "in_loop", False)) or u.name[0] in self.c.exp_skip:
            u.tok = u.tok or 0
            return [lambda: None]

        def ld():
            u.tok = e(f"buffer_load_dwordx4 {vreg}, {srd}, {so} offen{im} lds")
            u.pending_piece = False
        u.pending_piece = True
        L.append(ld)
        return L

    def so_code(self, d, soff):
        if not isinstance(soff, tuple):
            return [f"s_mov_b32 {d}, {soff}"]
        r, m, k = soff
        if m == "x":
            return [f"s_xor_b32 {d}, {r}, {k}"]
        if m == 1:
            return [f"s_add_u32 {d}, {r}, {k}"]
        return [f"s_mul_i32 {d}, {r}, {m}"] + ([f"s_add_u32 {d}, {d}, {k}"] if k else [])

    def stage_prepare(self):
        while self.stq and self.stq[0].next >= len(self.stq[0].dmas):
            self.stq.pop(0)
        if not self.stq:
            return []
        u = self.stq[0]
        srd, vreg, soff, imm, loff = u.dmas[u.next]
        r = self.A.alloc(4)
        u.sregs = getattr(u, "sregs", []) + [(r, loff)]
        u.next += 1
        e = self.e
        L = []
        if soff != self.cur_so2:
            L.append(lambda: e(f"s_mov_b32 {self.s_so2}, {soff}"))
            self.cur_so2 = soff
        im = f" offset:{imm}" if imm else ""
        L.append(lambda: e(f"buffer_load_dwordx4 {r}, {vreg}, {srd}, {self.s_so2} offen{im}"))
        return L

    def stage_step(self):
        self.dma_flush()
        L = self.stage_prepare()
        for f in L:
            f()
        return bool(L)

    def commit(self, units, v_w16):
        L = []
        for u in units:
            if u.addr is not None:
                continue
            assert u.next >= len(u.dmas), "commit of a unit that is not fully staged"
            u.addr = self.lds.alloc(u.size)
            if u.addr is None:
                break
            for r, loff in u.sregs:
                def w(u=u, r=r, loff=loff):
                    wi, o = divmod(u.addr + loff, WIN)
                    u.ltok = self.e(f"ds_write_b128 {v_w16[wi]}, {r} offset:{o}")
                    self.A.release(r)
                L.append(w)
            u.staged = True
        return L

    def dma_flush(self):
        while self.dq:
            self.dq.pop(0)()

    def dma_step(self):
        self.dma_flush()
        L = self.dma_prepare()
        for f in L:
            f()
        return bool(L)

    def dma_all(self, limit=10 ** 9):
        n = 0
        while n < limit and self.dma_step():
            n += 1
        return n

    def barrier(self, ready=(), release=(), lg=sys.maxsize, tag=""):
        e = self.e
        ready = [u for u in ready if not u.ready]
        late = 0
        for u in ready:
            if getattr(u, "staged", False):
                u.ready = True
                lg = max(lg or 0, u.ltok)
        ready = [u for u in ready if not u.ready]
        for u in ready:
            if getattr(u, "pending_piece", False):
                self.dma_flush()
            while u.next < len(u.dmas):
                assert self.dma_step(), f"LDS ring deadlock at unit {u.name}"
                late += 1
        self.stamp(f"b{self.nbar}a")
        if ready:
            tk = max(u.tok for u in ready)
            self.log.append(f"bar {self.nbar} {tag}: ready {ready[0].name}..{ready[-1].name} late={late} younger_vm={e.vm_issued - tk} ins={e.n_ins}")
            e.wait(vm=tk)
        self.stamp(f"b{self.nbar}v")
        if lg is not None:
            e.wait(lg=min(lg, e.lg_issued))
        e("s_barrier")
        self.stamp(f"b{self.nbar}e")
        self.nbar += 1
        for u in ready:
            u.ready = True
        for u in release:
            if not u.released:
                u.released = True
                self.lds.add(u.addr, u.size)

    def stamp(self, name):
        if self.c.stamps and (name in self.c.stamps or self.c.stamps == "all" and len(self.stamp_names) < 15 or name in ("t0", "end")):
            r = self.stamp_regs[len(self.stamp_names)]
            self.e(f"s_memtime {r}")
            self.stamp_names.append(name)
            if self.c.rt and name not in ("t0", "end"):
                self.e(f"s_memrealtime {self.stamp_regs[len(self.stamp_names)]}")
                self.stamp_names.append("r" + name)

    def interleave(self, main, fill, ratio):
        acc = 0.0
        fill = list(fill)
        for m in main:
            m() if callable(m) else self.e(m)
            acc += ratio
            while acc >= 1.0 and fill:
                f = fill.pop(0)
                f() if callable(f) else self.e(f)
                acc -= 1.0
        return fill

    def bg_on(self, every, limit, stage=True, nmax=1000):
        e = self.e
        st = dict(n=0, busy=False)

        def hook():
            if st["busy"] or e.in_cond or e.hist[-1].op.startswith(("s_cmp", "s_cbranch")):
                return
            st["n"] += 1
            if st["n"] >= every and st.get("c", 0) < nmax:
                st["c"] = st.get("c", 0) + 1
                st["n"] = 0
                st["busy"] = True
                lim = limit[0]
                if not (lim.next < len(lim.dmas) and self.dma_step()) and stage:
                    self.stage_step()
                st["busy"] = False
        e.hook = hook if every else None

    def bg_off(self):
        self.e.hook = None

    def exp_delay(self, where):
        n = dict(self.c.exp_stagger).get(where, 0)
        if n:
            e = self.e
            L = e.newlabel("Lst")
            e("s_bitcmp1_b32 s2, 7")
            e(f"s_cbranch_scc0 {L}")
            for _ in range(n):
                e("s_sleep 8")
            e.label(L)

    def bf16r(self, d, s):
        return [f"v_cvt_pk_bf16_f32 {d}, {s}, {s}", f"v_and_b32 {d}, 0xffff0000, {d}"]

    def poll(self, loads, checks, pre=None):
        e = self.e
        self.dma_flush()
        L = e.newlabel("Lpoll")
        e(f"s_mov_b32 {self.s_spin}, 0")
        if self.c.psleep:
            L2 = e.newlabel("Lfirst")
            e(f"s_branch {L2}")
        e.label(L)
        if self.c.psleep:
            e(f"s_sleep {self.c.psleep}")
            e.label(L2)
        e(f"s_add_u32 {self.s_spin}, {self.s_spin}, 1")
        e(f"s_cmp_gt_u32 {self.s_spin}, {self.c.spin}")
        e("s_cbranch_scc1 Lexit")
        for t in loads:
            e(t)
        e.force_vm0()
        for t in pre or []:
            e(t)
        if not checks:
            pass
        elif len(checks) == 1:
            e(f"v_cmp_ne_u32 vcc, {self.s_tag}, {checks[0]}")
        else:
            t = self.v_tmp
            e(f"v_xor_b32 {t}, {checks[0]}, {self.v_tag}")
            rest = list(checks[1:])
            for r in rest:
                e(f"v_xor_b32 {r}, {r}, {self.v_tag}")
            while len(rest) >= 2:
                e(f"v_or3_b32 {t}, {t}, {rest.pop()}, {rest.pop()}")
            if rest:
                e(f"v_or_b32 {t}, {t}, {rest.pop()}")
            e(f"v_cmp_ne_u32 vcc, 0, {t}")
        e(f"s_cbranch_vccnz {L}")

    def store2(self, fmt_list):
        e = self.e
        Ls, Lj = e.newlabel("Lslow"), e.newlabel("Ljoin")
        e(f"s_cmp_eq_u32 {self.s_mode}, 0")
        e(f"s_cbranch_scc1 {Ls}")
        save = (e.vm_issued, e.vm_done, list(e.hist))
        n0 = len(e.out)
        tok = None
        for t in fmt_list:
            tok = e(t.format(f="")) or tok
        for o in e.out[n0:]:
            assert o.op != "s_waitcnt", "operand of mode-dependent store not ready"
        e(f"s_branch {Lj}")
        e.label(Ls)
        e.vm_issued, e.vm_done, e.hist = save
        for t in fmt_list:
            e(t.format(f=" sc1"))
        e.label(Lj)
        return tok

    def flag_store(self, vaddr, off):
        e = self.e
        e("s_mov_b64 exec, 1")
        self.store2([f"buffer_store_dword {self.v_tag}, {vaddr}, s[36:39], 0 offen offset:{off}" + "{f}"])
        e("s_mov_b64 exec, -1")

    def loop_prologue(self, steps, PD=2):
        for i in range(min(PD, len(steps))):
            self._bar_for(steps, i, -1)
            steps[i]["tok"] = [self.e(r) for r in steps[i]["reads"]()][-1]

    def _bar_for(self, steps, i, cur):
        st = steps[i]
        need = [u for u in st["units"] if not u.ready]
        if st.get("bar") or need:
            if st.get("prebar"):
                st["prebar"]()
            k = i
            ready = []
            for k in range(i, min(i + st.get("span", 1), len(steps))):
                ready += [u for u in steps[k]["units"] if u not in ready]
            live = {id(u) for s2 in steps[cur + 1:] for u in s2["units"]}
            dead = [u for s2 in steps[:cur + 1] for u in s2["units"] if id(u) not in live] + st.get("release", [])
            self.barrier(ready=ready, release=dead, lg=st["lg"]() if st.get("lg") else None, tag=f"step{i}")
            if st.get("postbar"):
                st["postbar"]()

    def mfma_loop(self, steps, fill, rates, PD=2, rng=None, hi=None):
        e = self.e
        cnt = 0
        self.in_loop = True
        a, b = rng or (0, len(steps))
        hi = hi if hi is not None else []
        cred = [0.0, 0.0, 0.0]
        for i in range(a, b):
            st = steps[i]
            nxt = steps[i + PD] if i + PD < len(steps) else None
            rq = []
            nm = len(st["mfmas"])
            self.stamp(f"{getattr(self, 'lname', 'L')}{i}")
            for j, mf in enumerate(st["mfmas"]):
                if j == 0:
                    e.wait(lg=st["tok"])
                    for f in st.get("pre", []):
                        f()
                e(mf)
                cnt += 1
                n0 = e.n_ins
                if j == 0 and nxt:
                    self._bar_for(steps, i + PD, i)
                    rq = list(nxt["reads"]())
                while fill and (isinstance(fill[0], Mark) or (isinstance(fill[0], Gate) and fill[0].is_open)):
                    fill.pop(0)
                if fill and getattr(fill[0], "solo", False) and j < nm - 1 and e.n_ins == n0:
                    fill.pop(0)()
                    for _ in range(min(self.c.solo_reads, len(rq))):
                        nxt["tok"] = e(rq.pop(0))
                    continue
                k = math.ceil(len(rq) / (nm - j))
                for _ in range(k):
                    tk = e(rq.pop(0))
                    nxt["tok"] = tk
                budget = SLOTS - ((1 + (steps[i + 1].get("resv", 0) if i + 1 < len(steps) else 0)) if j == nm - 1 else 0)
                while hi and isinstance(hi[0], Gate) and hi[0].is_open:
                    hi.pop(0)
                hi_ok = bool(hi) and not isinstance(hi[0], Gate)
                hr, dr, sr = rates(i, hi_ok)
                cred[0] = min(cred[0] + hr, 1.9) if hi_ok else 0.0
                cred[1] = min(cred[1] + dr, 1.9)
                cred[2] = min(cred[2] + sr, 1.9)
                if hi_ok and cred[0] >= 0.999:
                    cred[0] -= 1.0
                    hi.pop(0)()
                elif not self.dq:
                    if cred[1] >= 0.999:
                        self.dq = self.dma_prepare()
                        if self.dq:
                            cred[1] -= 1.0
                    if not self.dq and cred[2] >= 0.999:
                        self.dq = self.stage_prepare()
                        if self.dq:
                            cred[2] -= 1.0
                while e.n_ins - n0 < budget and self.dq:
                    self.dq.pop(0)()
                while e.n_ins - n0 < budget and fill:
                    if isinstance(fill[0], Gate):
                        if not fill[0].is_open:
                            break
                        fill.pop(0)
                        continue
                    if isinstance(fill[0], Mark):
                        fill.pop(0)
                        continue
                    if isinstance(fill[0], Skip):
                        fill[0].n -= 1
                        if fill[0].n <= 0:
                            fill.pop(0)
                        break
                    if getattr(fill[0], "solo", False):
                        break
                    f = fill.pop(0)
                    f() if callable(f) else e(f)
        self.dma_flush()

    def verify(self, frags, vaddr):
        e = self.e
        tm, t2 = self.v_tmp, self.v_tmp2

        def chk():
            L = []
            src = []
            for k, (r, o) in enumerate(frags):
                if r.kind == "a":
                    d = (tm, t2)[k]
                    L.append(f"v_accvgpr_read_b32 {d}, {r[0]}")
                    src.append(d)
                else:
                    src.append(r[0])
            if len(src) == 2:
                L.append(f"v_max_u32 {tm}, {src[0]}, {src[1]}")
                src = [tm]
            L.append(f"v_cmp_eq_u32 vcc, -1, {src[0]}")
            return L
        Ls, Lb = e.newlabel("Lretry"), e.newlabel("Lback")
        for t in chk():
            e(t)
        e(f"s_cbranch_vccnz {Ls}")
        e.label(Lb)
        ld = "".join(f"    s_mov_b32 {self.s_rt}, {o}\n    buffer_load_dwordx4 {r}, {vaddr}, s[36:39], {self.s_rt} offen sc1\n" for r, o in frags)
        ck = "".join(f"    {t}\n" for t in chk())
        self.ool.append(f"""{Ls}:
    s_mov_b32 {self.s_spin}, 0
{Ls}_1:
    s_add_u32 {self.s_spin}, {self.s_spin}, 1
    s_cmp_gt_u32 {self.s_spin}, {self.c.spin}
    s_cbranch_scc1 Lexit
{ld}    s_waitcnt vmcnt(0)
{ck}    s_cbranch_vccnz {Ls}_1
    s_branch {Lb}
""")

    def opt_check(self, vaddr, off, reg):
        e = self.e
        box = {}

        def issue():
            box["tok"] = e(f"buffer_load_dword {reg}, {vaddr}, s[36:39], 0 offen offset:{off} sc1")

        def check():
            Ls, Lb = e.newlabel("Lretry"), e.newlabel("Lback")
            e(f"v_cmp_ne_u32 vcc, {self.s_tag}, {reg}")
            e(f"s_cbranch_vccnz {Ls}")
            e.label(Lb)
            self.ool.append(f"""{Ls}:
    s_mov_b32 {self.s_spin}, 0
{Ls}_1:
    s_add_u32 {self.s_spin}, {self.s_spin}, 1
    s_cmp_gt_u32 {self.s_spin}, {self.c.spin}
    s_cbranch_scc1 Lexit
    buffer_load_dword {reg}, {vaddr}, s[36:39], 0 offen offset:{off} sc1
    s_waitcnt vmcnt(0)
    v_cmp_ne_u32 vcc, {self.s_tag}, {reg}
    s_cbranch_vccnz {Ls}_1
    s_branch {Lb}
""")
        return issue, check

    def drain_to(self, fill, mark):
        if mark is not None and mark not in fill:
            return
        while fill:
            f = fill.pop(0)
            if f is mark:
                return
            if isinstance(f, Gate):
                assert f.is_open
            elif not isinstance(f, (Mark, Skip)):
                f() if callable(f) else self.e(f)

    def finish_stats(self, sm, sq, rho, nmr, n):
        L = [f"v_mul_f32 {sm}, 0x{f2u(1.0 / n):08x}, {sm}",
             f"v_mul_f32 {sq}, 0x{f2u(1.0 / n):08x}, {sq}",
             f"v_fma_f32 {sq}, -{sm}, {sm}, {sq}",
             f"v_max_f32 {sq}, 0, {sq}"]
        if self.c.mimic:
            L += self.bf16r(sq, sq)
            L += [f"v_add_f32 {sq}, 0x{f2u(1e-5):08x}, {sq}"]
            L += self.bf16r(sq, sq)
            L += [f"v_sqrt_f32 {sq}, {sq}"]
            L += self.bf16r(sm, sm)
            L += self.bf16r(sq, sq)
            L += [f"v_rcp_f32 {rho}, {sq}"]
        else:
            L += [f"v_add_f32 {sq}, 0x{f2u(1e-5):08x}, {sq}", f"v_rsq_f32 {rho}, {sq}"]
        L += [f"v_mul_f32_e64 {nmr}, -{sm}, {rho}"]
        return L

    def build(self):
        c, e, V, A, S = self.c, self.e, self.V, self.A, self.S
        global L_TBL, L_K, L_H0, L_V, L_H1, L_RING, L_RED
        if c.h_full:
            L_H0 = 2048
            L_H1 = L_H0 + HB
            L_V = L_H0 + 2 * HB
            L_K = L_V - 80 * 144
            L_TBL = L_H0 + 4 * HB
            L_RING = L_TBL + 4096
            L_RED = L_K
            LH = [L_H0 + k * HB for k in range(4)]
        else:
            LH = [L_H0, L_H1, L_H0, L_H1]
        X, WQ, WO, WG, WU, WD, WM, OUT, WS, CC = [f"s[{4 + 4 * i}:{7 + 4 * i}]" for i in range(10)]
        e("s_cmp_ge_u32 s2, 256")
        e("s_cbranch_scc1 Lexit")
        if c.stamps:
            self.stamp_regs = [S.alloc(2) for _ in range(min(14, len(c.stamps) * (2 if c.rt else 1) + 2))]
            self.rt0, self.rt1 = S.alloc(2), S.alloc(2)
            e(f's_memrealtime {self.rt0}')
        self.stamp("t0")
        if c.dbg:
            self.d0, self.d1, self.dp = S.alloc(2), S.alloc(2), S.alloc(2)
            e(f"s_memtime {self.d0}\ns_memrealtime {self.d1}\ns_load_dwordx2 {self.dp}, s[0:1], 80")
        srds = {0: (0, 2048 * 1024), 6: (64, 512 * 6144), 9: (56, 1024), 8: (88, WS_SIZE), 1: (8, 512 * 3072), 2: (16, 512 * 1024),
                3: (32, 512 * 3584), 4: (40, 512 * 3584), 5: (48, 1792 * 1024), 7: (72, 2048 * 1024)}

        def srd_ptr(i):
            e(f"s_load_dwordx2 s[{4 + 4 * i}:{5 + 4 * i}], s[0:1], {srds[i][0]}")

        def srd_words(i):
            e(f"s_mov_b32 s{6 + 4 * i}, {srds[i][1]}")
            e(f"s_mov_b32 s{7 + 4 * i}, 0x20000")
        for i in (0, 6, 9, 8):
            srd_ptr(i)
        sa = lambda: S.alloc(1)
        s_w, s_tb, s_kh, s_g, s_m, s_hg, s_TB = [sa() for _ in range(7)]
        self.s_w1k, self.s_so, self.s_spin, self.s_tag, self.s_mode, self.s_so2 = [sa() for _ in range(6)]
        s_w1k, s_tag = self.s_w1k, self.s_tag
        t0, t1, t2, t3 = [sa() for _ in range(4)]
        s_idx, s_col0, s_flb, s_tile, s_hh = sa(), sa(), sa(), sa(), sa()
        v_l, v_t, v_hh = V.alloc(), V.alloc(), V.alloc()
        self.v_tmp, self.v_tmp2 = V.alloc(), V.alloc()
        self.s_rt = Reg('s', 3, 1)
        self.v_tag = V.alloc()
        u0, u1, u2, u3 = [V.alloc() for _ in range(4)]
        v_dq, v_dw, v_dd, v_dA = [V.alloc() for _ in range(4)]
        v_fl, v_l16, v_trn = V.alloc(), V.alloc(), V.alloc()
        a_dummy = A.alloc_top(4)
        a_ones = A.alloc_top(4)
        hinit = {}
        v_c, v_wm, v_x = V.alloc(), V.alloc(), V.alloc()
        e(f"""s_and_b32 {t3}, s2, 7
        s_lshr_b32 {s_idx}, s2, 3
        s_lshr_b32 {t0}, {s_idx}, 3
        s_lshl_b32 {t0}, {t0}, 6
        s_lshl_b32 {t1}, {t3}, 8
        s_add_u32 {t0}, {t0}, {t1}
        s_sub_u32 {t0}, {t0}, 16
        v_lshrrev_b32 {u2}, 6, v0
        v_mul_u32_u24 {u0}, 20, {u2}
        v_bfe_u32 {u1}, v0, 4, 2
        v_add3_u32 {u0}, {u0}, {u1}, {t0}
        v_and_b32 {u1}, 15, v0
        v_lshlrev_b32 {u0}, 10, {u0}
        v_lshl_add_u32 {v_x}, {u1}, 4, {u0}""")
        srd_words(0)
        s_rx = [sa() for _ in range(4)]
        pre2 = f"""s_min_u32 {t0}, {s_idx}, 23
        s_lshr_b32 {t1}, {t0}, 2
        s_lshl_b32 {t1}, {t1}, 3
        s_add_u32 {s_col0}, {t1}, {t3}
        s_and_b32 {t0}, {t0}, 3
        s_lshl_b32 {t0}, {t0}, 7
        v_lshrrev_b32 {u0}, 3, v0
        v_add_u32 {u0}, {t0}, {u0}
        v_lshlrev_b32 {v_c}, 1, {u0}
        v_mul_u32_u24 {v_wm}, 6144, {u0}
        v_and_b32 {u1}, 7, v0
        v_lshlrev_b32 {u1}, 4, {u1}
        s_lshl_b32 {t0}, {s_col0}, 7
        v_add3_u32 {v_wm}, {v_wm}, {u1}, {t0}"""
        pre3 = f"""v_readfirstlane_b32 {s_w}, {u2}
        v_and_b32 {v_l}, 63, v0
        v_and_b32 {v_t}, 31, v0
        v_lshrrev_b32 {v_hh}, 5, {v_l}
        s_lshr_b32 {t0}, {s_idx}, 4
        s_lshl_b32 {s_g}, {t3}, 1
        s_add_u32 {s_g}, {s_g}, {t0}
        s_and_b32 {s_m}, {s_idx}, 15
        s_and_b32 {s_hg}, {s_m}, 7
        s_and_b32 {s_tb}, {s_w}, 1
        s_lshr_b32 {s_kh}, {s_w}, 1
        s_lshl_b32 {s_w1k}, {s_w}, 10
        s_lshl_b32 {s_TB}, {s_g}, 2
        s_lshr_b32 {t0}, {s_m}, 3
        s_lshl_b32 {t0}, {t0}, 1
        s_add_u32 {s_TB}, {s_TB}, {t0}
        s_add_u32 {s_TB}, {s_TB}, {s_tb}"""
        cv = V.alloc(4)
        wmv = V.alloc(16)
        XN = [[None] * 4 for _ in range(5)]
        xn_all = V.alloc_top(184)
        for i in range(5):
            for ch in range(4):
                XN[i][ch] = xn_all.sub((((ch + 3) % 4) * 5 + i) * 8, 8)
        def lines(srd, n, base_code, stride=128):
            return base_code + [f"v_mul_u32_u24 {u0}, {stride}, {v_l}", f"v_cmp_le_u32 vcc, {n}, {v_l}", f"v_add_u32 {u0}, {t0}, {u0}",
                                f"v_cndmask_b32 {u0}, {u0}, -1, vcc",
                                lambda: e(f"buffer_load_dword {a_dummy[0]}, {u0}, {srd}, 0 offen", track=False)]

        def mall(srd, n):
            return lines(srd, n, [f"s_lshl_b32 {t0}, s2, 2", f"s_add_u32 {t0}, {t0}, {s_w}", f"s_mul_i32 {t0}, {t0}, {n * 128}"])

        def touch3(srd, rows, pitch):
            return lines(srd, rows, [f"s_lshl_b32 {t0}, {s_idx}, 2", f"s_add_u32 {t0}, {t0}, {s_w}", f"s_mul_i32 {t0}, {t0}, {rows * pitch}",
                                     f"s_add_u32 {t0}, {t0}, 384"], stride=pitch)

        def run(L):
            for t in L:
                t() if callable(t) else e(t)
        xld = []
        for i in range(5):
            for ch in range(4):
                t = f"buffer_load_dwordx4 {XN[i][ch].sub(4, 4)}, {v_x}, {X}, 0 offen offset:{256 * ch}"
                if ch == 3 and i < 4:
                    t += f"\nv_add_u32 {v_x}, 4096, {v_x}"
                xld.append(t)
        e.wait_all_lg()
        self.stamp("ka")
        self.exp_delay("start")
        if c.touch:
            srd_words(6)
            e(f"""v_and_b32 {u1}, 63, v0
            v_mul_u32_u24 {u0}, 20, {u2}
            v_add3_u32 {u0}, {u0}, {u1}, {t0}
            v_lshlrev_b32 {u0}, 10, {u0}
            s_and_b32 {t1}, {s_idx}, 7
            s_lshl_b32 {t1}, {t1}, 7
            v_cmp_lt_u32 vcc, 19, {u1}
            v_add_u32 {u0}, {t1}, {u0}
            s_min_u32 {t0}, {s_idx}, 23
            v_cndmask_b32 {u0}, {u0}, -1, vcc""")
            e(f"buffer_load_dword {a_dummy[0]}, {u0}, {X}, 0 offen", track=False)
        if c.code_pf0:
            e(f"""s_getpc_b64 vcc
            v_and_b32 {u1}, 63, v0
            v_lshlrev_b32 {u1}, 6, {u1}""")
            e(f"global_load_dword {a_dummy[0]}, {u1}, vcc", track=False)
        for t in xld[:c.nx_pre]:
            e(t)
        xld2 = xld[c.nx_pre:c.nx_first]
        xld = xld[c.nx_first:]
        srd_words(6); srd_words(9)
        e(pre2)
        for i in range(4):
            e(f"buffer_load_ushort {cv[i]}, {v_c}, {CC}, 0 offen offset:{64 * i}")
        wld = [(f"s_mov_b32 {self.s_so}, {i * 32 * 6144}\n" if i else "") +
               f"buffer_load_dwordx4 {wmv.sub(4 * i, 4)}, {v_wm}, {WM}, {self.s_so if i else 0} offen" for i in range(4)]
        if c.w_first:
            e(f"""s_cmp_ge_u32 {s_idx}, {c.w_first}
            s_cselect_b32 s30, 0, s30""")
            run(wld)
        self.stamp("wis")
        e(f"s_load_dword {s_tag}, s[36:37], {WS_E}")
        for i in (1, 2, 3, 4, 5, 7):
            srd_ptr(i)
        for i in (8, 1, 2, 3, 4, 5, 7):
            srd_words(i)
        e(pre3)
        if c.tlb:
            e(f"v_lshlrev_b32 {u0}, 21, {v_l}")
            for srd in (WQ, WS, WO, WG, WU, WD, OUT):
                e(f"buffer_load_dword {a_dummy[0]}, {u0}, {srd}, 0 offen offset:2048", track=False)
        s_st = sa()
        e(f"""s_lshl_b32 {t0}, {s_TB}, 12
        s_lshr_b32 {t1}, {s_hg}, 1
        s_lshl_b32 {t1}, {t1}, 10
        s_add_u32 {t0}, {t0}, {t1}
        s_and_b32 {t1}, {s_hg}, 1
        s_lshl_b32 {t1}, {t1}, 3
        s_add_u32 {t0}, {t0}, {t1}
        s_lshl_b32 {t1}, {s_kh}, 2
        s_add_u32 {t0}, {t0}, {t1}
        s_add_u32 {s_st}, {t0}, {WS_STATS}
        v_lshlrev_b32 {v_l16}, 4, {v_l}
        v_mov_b32 {u3}, -1""")
        for k in range(4):
            e(f"v_accvgpr_write_b32 {a_ones[k]}, -1")
        tok_init = e(f"buffer_store_dword {u3}, {v_l16}, {WS}, {s_st} offen sc1")
        late_ops = []
        if c.code_pf:
            pc = 's[0:1]'
            e(f"""s_getpc_b64 {pc}
            s_lshl_b32 {t0}, {s_idx}, 2
            s_add_u32 {t0}, {t0}, {s_w}
            s_mul_i32 {t0}, {t0}, 320
            v_mul_u32_u24 {u0}, 5, {v_l}
            v_add_u32 {u0}, {t0}, {u0}
            v_and_b32 {u0}, -4, {u0}
            v_min_u32 {u0}, Lcode_end-Lcode_pf-4, {u0}""")
            e.label("Lcode_pf")
            e(f"global_load_dword {a_dummy[0]}, {u0}, {pc}", track=False)
        if c.mall_q:
            if c.mallq_early:
                run(mall(WQ, 12))
            else:
                late_ops += mall(WQ, 12)
        self.lds.add(L_RING, L_END - L_RING)
        UQ = [Unit(f"q{u}", 12288, [(WQ, v_dq, (str(s_rx[u & 3]), 6, (u // 4) * 393216), mt * 1024, mt * 1024) for mt in range(3)]) for u in range(16)]
        s_w3k = sa()
        for u in UQ:
            u.wreg = s_w3k
        UO = [Unit(f"o{s}", 4096, [(WO, v_dw, (str(s_rx[s & 3]), 1, (s // 4) * 65536), 0, 0)]) for s in range(16)]
        v_dA2 = V.alloc()
        vA = lambda u: v_dA2 if (u >> c.gbit) & 1 else v_dA
        uo = lambda u: (u & ~(1 << c.gbit)) * 32 * 3584
        UA = [Unit(f"a{u}", 8192 + 64, [(WG, vA(u), uo(u), 0, 0), (WU, vA(u), uo(u), 0, 4096 + 32)]) for u in range(16)]
        UB = [Unit(f"b{u}", 8192 + 64, [(WG, vA(u), uo(u), 128, 0), (WU, vA(u), uo(u), 128, 4096 + 32)]) for u in range(16)]
        fbA = [8 * mm + cb for mm in range(7) for cb in range(4)]
        fbB = [8 * mm + 4 + cb for mm in range(7) for cb in range(4)]
        fbs = fbA + fbB
        UD = [Unit(f"d{k}", 4096, [(WD, v_dd, (str(s_rx[0 if fb < 48 else 1]), "x", fb * 16384), 0, 0)]) for k, fb in enumerate(fbs)]
        UG = UA + UB
        staged = UG[c.n_dir:c.n_dir + c.n_stage]
        self.stq = list(staged)
        self.queue = UQ + UO + UG[:c.n_dir] + UG[c.n_dir + c.n_stage:] + UD
        v_r8, v_b64 = V.alloc(), V.alloc()
        addr_code = f"""v_lshlrev_b32 {v_r8}, 2, {v_hh}
        v_bfe_u32 {u0}, {v_l}, 2, 2
        v_add_u32 {v_r8}, {v_r8}, {u0}
        v_bfe_u32 {u0}, {v_l}, 4, 1
        v_lshlrev_b32 {u0}, 6, {u0}
        v_and_b32 {u1}, 3, {v_l}
        v_lshlrev_b32 {u1}, 4, {u1}
        v_add_u32 {v_b64}, {u0}, {u1}
        s_lshl_b32 {t0}, {s_w}, 3
        v_add_u32 {u0}, {t0}, {v_r8}
        v_mul_u32_u24 {u1}, 3072, {u0}
        s_lshl_b32 {t2}, {s_hg}, 7
        v_add3_u32 {v_dq}, {u1}, {v_b64}, {t2}
        v_mul_u32_u24 {v_dA}, 3584, {u0}
        s_lshl_b32 {t0}, {s_kh}, 8
        s_lshl_b32 {t1}, {s_tb}, 3
        s_add_u32 {t0}, {t0}, {t1}
        v_add_u32 {u0}, {t0}, {v_r8}
        v_lshlrev_b32 {u0}, 10, {u0}
        v_add3_u32 {v_dw}, {u0}, {v_b64}, {t2}
        s_mul_i32 {t0}, {s_kh}, {56 * 16}
        s_add_u32 {t0}, {t0}, {t1}
        v_add_u32 {u0}, {t0}, {v_r8}
        v_lshlrev_b32 {u0}, 10, {u0}
        v_add3_u32 {v_dd}, {u0}, {v_b64}, {t2}
        s_lshl_b32 {t3}, {s_m}, 8
        v_add3_u32 {v_dA}, {v_dA}, {v_b64}, {t3}
        s_lshr_b32 {t3}, {s_idx}, 4
        s_mul_i32 {t3}, {t3}, {(32 * 3584 << c.gbit) if c.rot & 2 else 0}
        s_sub_u32 {t2}, {32 * 3584 << c.gbit}, {t3}
        v_add_u32 {v_dA2}, {t2}, {v_dA}
        v_add_u32 {v_dA}, {t3}, {v_dA}"""
        addr_code += f"""
        s_mul_i32 {s_w3k}, {s_w}, 3072
        v_and_b32 {u0}, 3, {v_l}
        v_lshlrev_b32 {u0}, 3, {u0}
        v_bfe_u32 {u1}, {v_l}, 2, 2
        v_lshlrev_b32 {u1}, 6, {u1}
        v_add_u32 {u0}, {u0}, {u1}
        v_bfe_u32 {u1}, {v_l}, 4, 1
        v_lshlrev_b32 {u1}, 5, {u1}
        v_add_u32 {v_trn}, {u0}, {u1}
        s_lshl_b32 {t0}, {s_g}, 11
        s_and_b32 {t1}, {s_TB}, 3
        s_lshl_b32 {t1}, {t1}, 7
        s_add_u32 {t0}, {t0}, {t1}
        s_add_u32 {s_flb}, {t0}, {WS_FLAGS}
        s_lshl_b32 {t1}, {s_hg}, 3
        s_lshl_b32 {t2}, {s_kh}, 2
        s_add_u32 {t1}, {t1}, {t2}
        s_add_u32 {t1}, {t1}, {s_flb}
        v_mov_b32 {v_fl}, {t1}"""
        al = [l.strip() for l in addr_code.split("\n")]
        run(al)
        if c.rot & 1:
            e(f"s_lshr_b32 {s_rx[0]}, {s_idx}, 3\ns_lshl_b32 {s_rx[0]}, {s_rx[0]}, 14")
        else:
            e(f"s_mov_b32 {s_rx[0]}, 0")
        for k in range(1, 4):
            e(f"s_xor_b32 {s_rx[k]}, {s_rx[0]}, {16384 * k}")
        parked = {}

        def park(name, reg):
            parked[name] = A.alloc(1)
            e(f"v_accvgpr_write_b32 {parked[name]}, {reg}")

        def unpark(name, reg, keep=False):
            t = f"v_accvgpr_read_b32 {reg}, {parked[name]}"
            return t

        def addr_of(L, name):
            run(L[:-1])
            park(name, u0)
        addr_of(mall(WO, 4), "m4"); addr_of(mall(WG, 14), "m14"); addr_of(touch3(WQ, 12, 1024), "t3q")
        w0, w1 = v_r8, v_b64
        e(f"""s_lshl_b32 {t0}, {s_tb}, 5
        s_add_u32 {t0}, {t0}, 16
        v_add_u32 {u1}, {t0}, {v_t}
        v_mul_u32_u24 {u1}, 272, {u1}
        v_lshlrev_b32 {u0}, 4, {v_hh}
        v_add_u32 {w0}, {u0}, {u1}
        v_and_b32 {u1}, 15, {v_l}
        v_mul_u32_u24 {u2}, 272, {u1}
        v_add_u32 {w1}, {u0}, {u2}""")
        park("hm", w0); park("hhalo", w1)
        e(f"""v_lshlrev_b32 {w0}, 5, {u1}
        v_lshrrev_b32 {u2}, 4, {v_l}
        s_mul_i32 {t0}, {s_w}, 20
        v_add_u32 {u2}, {t0}, {u2}
        v_mul_u32_u24 {u2}, 272, {u2}
        s_lshr_b32 {t0}, {s_rx[0]}, 12
        v_xor_b32 {u3}, {t0}, {u1}
        v_lshl_add_u32 {w1}, {u3}, 4, {u2}""")
        park("cst", w0); park("hw", w1)
        e(f"""v_mul_u32_u24 {u0}, 3072, {v_hh}
        s_lshl_b32 {t0}, {s_kh}, 8
        v_add3_u32 {w0}, {v_trn}, {u0}, {t0}
        s_and_b32 {t0}, s2, {NCOPY - 1}
        s_mul_i32 {t0}, {t0}, {GCOPY}
        s_add_u32 {t0}, {t0}, {WS_G}
        v_lshl_add_u32 {w1}, v0, 4, {t0}""")
        park("wq", w0); park("g1", w1)

        def deferred(f0, f1, f2, f3, f4):
            def pk(name, reg):
                parked[name] = A.alloc(1)
                return f"v_accvgpr_write_b32 {parked[name]}, {reg}"

            def t3(name, rows):
                return f"""s_lshl_b32 {t0}, {s_idx}, 2
                s_add_u32 {t0}, {t0}, {s_w}
                s_mul_i32 {t0}, {t0}, {rows * 1024}
                s_add_u32 {t0}, {t0}, 384
                v_lshl_add_u32 {f0}, {v_l}, 10, {t0}
                v_sub_u32 {f1}, {rows - 1}, {v_l}
                v_and_b32 {f1}, 0x80000000, {f1}
                v_or_b32 {f0}, {f0}, {f1}
                {pk(name, f0)}"""
            T = f"""s_and_b32 {t0}, s2, {NCOPY - 1}
            s_mul_i32 {t0}, {t0}, {GCOPY}
            s_lshl_b32 {t2}, {s_w}, 11
            s_lshl_b32 {t1}, {s_hg}, 8
            s_add_u32 {t1}, {t1}, {t0}
            s_add_u32 {t1}, {t1}, {t2}
            s_add_u32 {t1}, {t1}, {WS_G + 4096}
            v_and_b32 {f4}, 15, {v_l}
            v_lshl_add_u32 {f0}, {f4}, 4, {t1}
            {pk("g2", f0)}
            s_lshl_b32 {t0}, {s_g}, 6
            v_lshl_add_u32 {f0}, {f4}, 2, {t0}
            {pk("gx", f0)}
            {t3("t3o", 4)}
            {t3("t3d", 14)}
            s_sub_u32 {t1}, {s_TB}, {s_tb}
            s_lshl_b32 {t1}, {t1}, 5
            s_lshl_b32 {t2}, {s_w}, 4
            s_add_u32 {t1}, {t1}, {t2}
            v_lshrrev_b32 {f0}, 3, {v_l}
            v_add_u32 {f1}, {t1}, {f0}
            v_lshlrev_b32 {f1}, 10, {f1}
            v_and_b32 {f2}, 7, {v_l}
            v_lshlrev_b32 {f2}, 4, {f2}
            s_lshl_b32 {t1}, {s_hg}, 7
            v_add3_u32 {f1}, {f1}, {f2}, {t1}
            v_add_u32 {f0}, {t2}, {f0}
            v_mul_u32_u24 {f0}, 144, {f0}
            v_add_u32 {f0}, {f0}, {f2}
            {pk("xl", f1)}
            {pk("xw", f0)}
            s_lshl_b32 {t0}, {s_TB}, 5
            s_lshl_b32 {t1}, {s_hg}, 2
            s_add_u32 {t0}, {t0}, {t1}
            s_lshl_b32 {t1}, {s_kh}, 1
            s_add_u32 {t0}, {t0}, {t1}
            s_lshl_b32 {t0}, {t0}, 10
            s_add_u32 {s_tile}, {t0}, {WS_O}
            v_lshlrev_b32 {f0}, 10, {v_hh}
            v_lshlrev_b32 {f1}, 4, {v_t}
            v_add3_u32 {v_o}, {f0}, {f1}, {s_tile}
            s_lshl_b32 {t0}, {s_g}, 11
            s_add_u32 {t0}, {t0}, {WS_FLAGS}
            s_lshl_b32 {t1}, {s_w}, 9
            s_add_u32 {t0}, {t0}, {t1}
            v_lshl_add_u32 {f0}, {v_l}, 3, {t0}
            {pk("fpre", f0)}
            s_lshl_b32 {t0}, {s_TB}, 5
            v_add_u32 {f0}, {t0}, {v_t}
            v_lshlrev_b32 {f0}, 10, {f0}
            s_lshl_b32 {t0}, {s_hg}, 7
            s_lshl_b32 {t1}, {s_kh}, 6
            s_add_u32 {t0}, {t0}, {t1}
            v_lshlrev_b32 {f1}, 4, {v_hh}
            v_add3_u32 {f0}, {f0}, {f1}, {t0}
            {pk("xres", f0)}
            s_lshl_b32 {t0}, {s_g}, 2
            s_add_u32 {t0}, {t0}, {s_w}
            s_mul_i32 {t0}, {t0}, 112
            s_lshl_b32 {t1}, {s_m}, 3
            s_add_u32 {t0}, {t0}, {t1}
            s_lshl_b32 {t0}, {t0}, 10
            s_add_u32 {s_hh}, {t0}, {WS_HH}
            s_cmp_ge_u32 {s_m}, 14|s_cselect_b32 {s_hh}, 0x40000000, {s_hh}
            s_lshl_b32 {t0}, {s_tb}, 5
            s_add_u32 {t0}, {t0}, 16
            v_add_u32 {f2}, {t0}, {v_t}
            v_mul_u32_u24 {f3}, 144, {f2}
            v_mul_u32_u24 {f2}, 272, {f2}
            s_lshl_b32 {t1}, {s_kh}, 7
            s_lshl_b32 {t2}, {s_kh}, 6
            v_add3_u32 {v_vw}, {f1}, {f2}, {t1}
            v_add3_u32 {v_kw}, {f1}, {f3}, {t2}
            v_lshlrev_b32 {f0}, 6, {v_hh}
            v_add3_u32 {v_vr}, {f0}, {f2}, {t1}
            v_subrev_u32 {v_vr}, {14 * 272}, {v_vr}
            v_lshlrev_b32 {f0}, 5, {v_hh}
            v_add3_u32 {v_kr}, {f0}, {f3}, {t2}
            v_subrev_u32 {v_kr}, {14 * 144}, {v_kr}
            s_lshl_b32 {t0}, {s_tb}, 7
            s_add_u32 {t0}, {t0}, 144
            s_lshl_b32 {t1}, {t2}, {s_tb}
            v_mul_u32_u24 {f2}, {t0}, {f4}
            v_add3_u32 {v_kh}, {f1}, {f2}, {t1}"""
            return [t.strip().replace("|", "\n") for t in T.split("\n") if t.strip()]
        V.release(v_r8, v_b64, v_c)
        run(xld2)
        late_ops2 = [lambda: run(late_ops)]
        self.stamp("iss")
        st = V.alloc(16)
        rm = V.alloc(4)

        def unpack_acc(i):
            L = []
            o = 8 * (i & 1)
            for ch in range(4):
                r = XN[i][ch]
                for j in range(3):
                    L.append(f"v_lshlrev_b32 {r[2 * j]}, 16, {r[4 + j]}")
                    L.append(f"v_and_b32 {r[2 * j + 1]}, 0xffff0000, {r[4 + j]}")
                L.append(f"v_lshlrev_b32 {r[6]}, 16, {r[7]}")
                L.append(f"v_and_b32 {r[7]}, 0xffff0000, {r[7]}")
                for j in range(4):
                    sm, sq = st.sub(o + 2 * (j & 1), 2), st.sub(o + 4 + 2 * (j & 1), 2)
                    p = r.sub(2 * j, 2)
                    if ch == 0 and j < 2:
                        L.append(f"v_pk_add_f32 {sm}, {p}, {r.sub(2 * j + 4, 2)}")
                        L.append(f"v_pk_mul_f32 {sq}, {p}, {p}")
                    else:
                        if ch:
                            L.append(f"v_pk_add_f32 {sm}, {sm}, {p}")
                        L.append(f"v_pk_fma_f32 {sq}, {p}, {p}, {sq}")
            return L

        def reduce_norm(i):
            o = 8 * (i & 1)
            sm, sq = st[o], st[o + 4]
            L = [f"v_pk_add_f32 {st.sub(o, 2)}, {st.sub(o, 2)}, {st.sub(o + 2, 2)}",
                 f"v_pk_add_f32 {st.sub(o + 4, 2)}, {st.sub(o + 4, 2)}, {st.sub(o + 6, 2)}",
                 f"v_add_f32 {sm}, {sm}, {st[o + 1]}", f"v_add_f32 {sq}, {sq}, {st[o + 5]}"]
            for ror in (8, 4, 2, 1):
                L.append(f"v_add_f32_dpp {sm}, {sm}, {sm} row_ror:{ror} row_mask:0xf bank_mask:0xf")
                L.append(f"v_add_f32_dpp {sq}, {sq}, {sq} row_ror:{ror} row_mask:0xf bank_mask:0xf")
            pr = rm.sub(2 * (i & 1), 2)
            L += self.finish_stats(sm, sq, pr[0], pr[1], 512)
            for ch in range(4):
                for j in range(4):
                    p = XN[i][ch].sub(2 * j, 2)
                    L.append(f"v_pk_fma_f32 {p}, {p}, {pr}, {pr} op_sel:[0,0,1] op_sel_hi:[1,0,1]")
            return L

        def ln_stage(i):
            a, b = (unpack_acc(i) if i < 5 else []), (reduce_norm(i - 1) if i else [])
            m = []
            while a or b:
                if a: m.append(a.pop(0))
                if a: m.append(a.pop(0))
                if b: m.append(b.pop(0))
            return m
        sv = xn_all.sub(160, 8)
        P = []
        P += [f"v_lshlrev_b32 {cv[i]}, 16, {cv[i]}" for i in range(4)]
        P += [f"v_mul_f32 {sv[2 * i]}, 0xbfb8aa3b, {cv[i]}" for i in range(4)]
        P += [f"v_exp_f32 {sv[2 * i]}, {sv[2 * i]}" for i in range(4)]
        P += [f"v_add_f32 {sv[2 * i]}, 1.0, {sv[2 * i]}" for i in range(4)]
        P += [f"v_rcp_f32 {sv[2 * i]}, {sv[2 * i]}" for i in range(4)]
        P += [f"v_mul_f32 {sv[2 * i]}, {cv[i]}, {sv[2 * i]}" for i in range(4)]
        P += [self.bf16r(sv[2 * i], sv[2 * i])[0] for i in range(4)] + [self.bf16r(sv[2 * i], sv[2 * i])[1] for i in range(4)]
        P.append(lambda: self.stamp("silu"))
        pa = xn_all.sub(168, 8)
        wf = xn_all.sub(176, 8)
        for i in range(4):
            if i == 1:
                P.append(lambda: self.stamp("w0"))
            for j in range(4):
                P.append(f"v_lshlrev_b32 {wf[2 * j]}, 16, {wmv[4 * i + j]}")
                P.append(f"v_and_b32 {wf[2 * j + 1]}, 0xffff0000, {wmv[4 * i + j]}")
            for j in range(4):
                if i == 0:
                    P.append(f"v_pk_mul_f32 {pa.sub(2 * j, 2)}, {wf.sub(2 * j, 2)}, {sv.sub(0, 2)} op_sel_hi:[1,0]")
                else:
                    P.append(f"v_pk_fma_f32 {pa.sub(2 * j, 2)}, {wf.sub(2 * j, 2)}, {sv.sub(2 * i, 2)}, {pa.sub(2 * j, 2)} op_sel_hi:[1,0,1]")
        P.append(lambda: self.stamp("w3"))
        P += [f"v_and_b32 {u0}, 7, {v_l}", f"v_lshlrev_b32 {u0}, 5, {u0}"]
        P += [f"v_permlane32_swap_b32 {pa[j]}, {pa[j + 4]}" for j in range(4)]
        P += [f"v_add_f32 {pa[j]}, {pa[j]}, {pa[j + 4]}" for j in range(4)]
        P += [f"v_lshrrev_b32 {u1}, 4, {v_l}"]
        P += [f"v_permlane16_swap_b32 {pa[j]}, {pa[j + 2]}" for j in range(2)]
        P += [f"v_add_f32 {pa[j]}, {pa[j]}, {pa[j + 2]}" for j in range(2)]
        P += [f"v_lshl_add_u32 {u0}, {u1}, 3, {u0}", f"s_lshl_b32 {t0}, {s_w}, 8"]
        P += [f"v_add_f32_dpp {pa[j]}, {pa[j]}, {pa[j]} row_ror:8 row_mask:0xf bank_mask:0xf" for j in range(2)]
        P += [f"v_add_u32 {u0}, {t0}, {u0}", f"ds_write_b64 {u0}, {pa.sub(0, 2)} offset:{L_PART}"]
        s_tb4 = [sa() for _ in range(4)]
        pre_txt = []
        rec = e.out
        n0 = len(e.out)
        keep = (e.vm_issued, e.vm_done, list(e.hist), e.n_ins)
        for _ in range(c.n_pre):
            m = len(e.out)
            assert self.dma_step()
            pre_txt.append("\n".join(o.text for o in e.out[m:]))
        del e.out[n0:]
        e.vm_issued, e.vm_done, e.hist, e.n_ins = keep
        for u in UQ:
            if u.tok:
                u.tok = 0

        def p0(bg, rate):
            bg = self.interleave(P, bg, rate)
            pub()
            return bg

        def pub():
            e.wait_all_lg()
            e(f"""s_mul_i32 {s_tag}, {s_tag}, 0x9E3779B1
            s_add_u32 {s_tag}, {s_tag}, 0x7F4A7C18
            s_and_b32 {s_tag}, {s_tag}, 0xFFFFFFF8
            v_mov_b32 {self.v_tag}, {s_tag}
            s_lshr_b32 {s_tb4[0]}, {s_tag}, 3
            s_lshr_b32 {s_tb4[1]}, {s_tag}, 10
            s_lshr_b32 {s_tb4[2]}, {s_tag}, 17
            s_lshr_b32 {s_tb4[3]}, {s_tag}, 24""")
            self.stamp("tag")
            e.wait(vm=tok_init)
            self.barrier()
            Lsk = e.newlabel("Lnot0")
            e(f"s_cmp_lg_u32 {s_w}, 0")
            e(f"s_cbranch_scc1 {Lsk}")
            e.begin_cond(allow_lg=True)
            e.optional += 1
            e(f"""v_and_b32 {u0}, 15, {v_l}
            v_lshlrev_b32 {u1}, 4, {u0}""")
            pw = wmv
            for k in range(4):
                e(f"ds_read_b128 {pw.sub(4 * k, 4)}, {u1} offset:{L_PART + 256 * k}")
            e(f"""v_lshrrev_b32 {u2}, 4, {v_l}
            v_mul_u32_u24 {u2}, {GCOPY}, {u2}
            s_lshl_b32 {t0}, {s_col0}, 8
            s_and_b32 {t1}, {s_idx}, 3
            s_mul_i32 {t1}, {t1}, {GQ}
            s_add_u32 {t0}, {t0}, {t1}
            s_add_u32 {t0}, {t0}, {WS_G}
            v_add3_u32 {u2}, {u2}, {u1}, {t0}
            v_mov_b32 {u0}, 0xff""")
            for h in range(2):
                e(f"v_pk_add_f32 {pw.sub(2 * h, 2)}, {pw.sub(2 * h, 2)}, {pw.sub(4 + 2 * h, 2)}")
                e(f"v_pk_add_f32 {pw.sub(8 + 2 * h, 2)}, {pw.sub(8 + 2 * h, 2)}, {pw.sub(12 + 2 * h, 2)}")
            for h in range(2):
                e(f"v_pk_add_f32 {pw.sub(2 * h, 2)}, {pw.sub(2 * h, 2)}, {pw.sub(8 + 2 * h, 2)}")
            for k in range(4):
                e(f"v_bfi_b32 {pw[k]}, {u0}, {s_tb4[k]}, {pw[k]}")
            e(f"s_cmp_ge_u32 {s_idx}, 24")
            Lnp = e.newlabel("Lnopub")
            e(f"s_cbranch_scc1 {Lnp}")
            e(f"buffer_store_dwordx4 {pw.sub(0, 4)}, {u2}, {WS}, 0 offen sc1")
            e.label(Lnp)
            e(f"""s_getreg_b32 {t0}, hwreg(HW_REG_XCC_ID)
            s_and_b32 {t0}, {t0}, 7
            s_or_b32 {t0}, {t0}, {s_tag}
            v_mov_b32 {u0}, {t0}
            s_lshl_b32 {t1}, {s_g}, 4
            s_add_u32 {t1}, {t1}, {s_m}
            s_lshl_b32 {t1}, {t1}, 2
            v_mov_b32 {u1}, {t1}
            s_mov_b64 exec, 1
            buffer_store_dword {u0}, {u1}, {WS}, 0 offen offset:{WS_XID} sc1
            s_mov_b64 exec, -1""")
            e.optional -= 1
            e.end_cond(Lsk)
            e.wait_all_lg()

        def t3q():
            if c.t3 & 1:
                e(unpark("t3q", u0))
                e(f"buffer_load_dword {a_dummy[0]}, {u0}, {WQ}, 0 offen", track=False)

        def ln(i, bg, rate):
            L = ln_stage(i)
            e(L[0])
            bg = self.interleave(L[1:], bg, rate)
            self.stamp(f"x{i}")
            return bg
        bg = list(xld)
        for i in range(c.nq_k):
            bg = ln(i, bg, c.x_rate0)
        bg = p0(bg, c.x_rate)
        self.stamp("pub")
        run(bg)
        bg = list(late_ops2) + [t3q] + list(pre_txt)
        for i in range(c.nq_k, 6):
            bg = ln(i, bg, c.pre_rate)
        run(bg)
        V.release(cv, wmv, v_x, v_wm)
        V.release(st, rm)
        v_cst, v_hw, v_hm, v_hhalo = V.alloc(), V.alloc(), V.alloc(), V.alloc()
        v_wq, v_w1, v_w2 = V.alloc(3, align=1), V.alloc(3, align=1), V.alloc(3, align=1)
        run([unpark("cst", v_cst), unpark("hw", v_hw), unpark("hm", v_hm), unpark("hhalo", v_hhalo), unpark("wq", v_wq[0])])
        e(f"""s_lshl_b32 {t0}, {s_tb}, 10
        s_add_u32 {t1}, {t0}, 1024
        s_sub_u32 {t0}, 2048, {t0}
        v_add_u32 {v_wq[1]}, {WIN}, {v_wq[0]}
        v_add_u32 {v_wq[2]}, {2 * WIN}, {v_wq[0]}""")
        for k in range(3):
            e(f"v_add_u32 {v_w1[k]}, {t1}, {v_wq[k]}")
            e(f"v_add_u32 {v_w2[k]}, {t0}, {v_wq[k]}")

        self.stamp("ln1")
        gq = V.alloc(16)
        s_q = [Reg('s', 3, 1), Reg('s', 0, 1), Reg('s', 1, 1)]
        for k in range(3):
            e(f"s_mov_b32 {s_q[k]}, {(k + 1) * GQ}")

        def g_loads(r, ad):
            return [f"buffer_load_dwordx4 {r.sub(4 * k, 4)}, {ad}, {WS}, {s_q[k - 1] if k else 0} offen sc1" for k in range(4)]

        def g_check(r, a, b):
            L = [f"v_xor_b32 {a}, {s_tb4[0]}, {r[0]}", f"v_xor_b32 {b}, {s_tb4[1]}, {r[1]}"]
            for k in range(2, 16):
                d = (a, b)[k & 1]
                L.append(f"v_bitop3_b32 {d}, {r[k]}, {s_tb4[k & 3]}, {d} bitop3:0xbe")
            L += [f"v_or_b32 {a}, {a}, {b}", f"v_and_b32 {a}, 0xff, {a}"]
            return L

        def g_sum(r, packed):
            L = [f"v_and_b32 {r[k]}, 0xffffff00, {r[k]}" for k in range(16)]
            for x, y in ((0, 4), (8, 12), (0, 8)):
                if packed:
                    L += [f"v_pk_add_f32 {r.sub(x + 2 * h, 2)}, {r.sub(x + 2 * h, 2)}, {r.sub(y + 2 * h, 2)}" for h in range(2)]
                else:
                    L += [f"v_add_f32 {r[x + h]}, {r[x + h]}, {r[y + h]}" for h in range(4)]
            L += [f"v_cvt_pk_bf16_f32 {r[0]}, {r[0]}, {r[1]}", f"v_cvt_pk_bf16_f32 {r[2]}, {r[2]}, {r[3]}"]
            return L
        run([unpark("g1", u1), f"v_lshlrev_b32 {u0}, 4, v0"])
        TO = L_TBL
        if c.h_full:
            TO = L_TBL - WIN
            v_hm2, v_hh2 = V.alloc(), V.alloc()
            e(f"""v_add_u32 {u0}, {WIN}, {u0}
            v_add_u32 {v_cst}, {WIN}, {v_cst}
            v_add_u32 {v_hm2}, {2 * HB}, {v_hm}
            v_add_u32 {v_hh2}, {2 * HB}, {v_hhalo}""")
        self.poll(g_loads(gq, u1), [], pre=g_check(gq, u2, u3) + [f"v_cmp_ne_u32 vcc, 0, {u2}"])
        self.stamp("mod")
        self.exp_delay("mod")
        self.bg_on(c.post_every, limit=[UQ[7]], stage=False)
        tv = V.alloc(4)

        def unp(d, a, b):
            return f"""v_lshlrev_b32 {d[0]}, 16, {a}
            v_and_b32 {d[1]}, 0xffff0000, {a}
            v_lshlrev_b32 {d[2]}, 16, {b}
            v_and_b32 {d[3]}, 0xffff0000, {b}"""
        run(g_sum(gq, True))
        e(unp(tv, gq[0], gq[2]))
        Lno = e.newlabel("Lnoa")
        e(f"s_cmp_lt_u32 {s_w}, 2")
        e(f"s_cbranch_scc1 {Lno}")
        e.begin_cond()
        e(f"""v_pk_add_f32 {tv.sub(0, 2)}, {tv.sub(0, 2)}, 1.0 op_sel_hi:[1,0]
        v_pk_add_f32 {tv.sub(2, 2)}, {tv.sub(2, 2)}, 1.0 op_sel_hi:[1,0]
        v_cvt_pk_bf16_f32 {gq[0]}, {tv[0]}, {tv[1]}
        v_cvt_pk_bf16_f32 {gq[2]}, {tv[2]}, {tv[3]}""")
        e(unp(tv, gq[0], gq[2]))
        e.end_cond(Lno)
        tok_tbl = e(f"ds_write_b128 {u0}, {tv} offset:{TO}")
        self.barrier(lg=tok_tbl)
        cst = V.alloc(16)
        cst1 = xn_all.sub(160, 16)

        def cst_reads(ch, r):
            return [f"ds_read_b128 {r.sub(0, 4)}, {v_cst} offset:{TO + 512 * ch}",
                    f"ds_read_b128 {r.sub(8, 4)}, {v_cst} offset:{TO + 2048 + 512 * ch}",
                    f"ds_read_b128 {r.sub(4, 4)}, {v_cst} offset:{TO + 512 * ch + 16}",
                    f"ds_read_b128 {r.sub(12, 4)}, {v_cst} offset:{TO + 2048 + 512 * ch + 16}"]

        def apply_valu(ch, i, r, packed):
            L = []
            for j in range(4):
                p = XN[i][ch].sub(2 * j, 2)
                if packed:
                    L.append(f"v_pk_fma_f32 {p}, {p}, {r.sub(8 + 2 * j, 2)}, {r.sub(2 * j, 2)}")
                else:
                    for h in range(2):
                        L.append(f"v_fma_f32 {p[h]}, {p[h]}, {r[8 + 2 * j + h]}, {r[2 * j + h]}")
            for j in range(4):
                L.append(f"v_cvt_pk_bf16_f32 {XN[i][ch][j]}, {XN[i][ch][2 * j]}, {XN[i][ch][2 * j + 1]}")
            return L

        wtok = {}

        def apply_write(ch, i):
            def f():
                if LH[ch] > 60000:
                    if i == 0:
                        e(f"v_add_u32 {v_hw}, {2 * HB}, {v_hw}")
                    wtok[ch] = e(f"ds_write_b128 {v_hw}, {XN[i][ch].sub(0, 4)} offset:{LH[ch] - 2 * HB + i * 4 * 272}")
                    return
                wtok[ch] = e(f"ds_write_b128 {v_hw}, {XN[i][ch].sub(0, 4)} offset:{LH[ch] + i * 4 * 272}")
            f.solo = True
            return f

        npre_ch = c.pre_chunks
        a_xr = A.alloc(8)

        def bgl(name, *loads):
            L = []
            for k, (t, trk) in enumerate(loads):
                L.append(lambda t=t, trk=trk, k=k: ((e(unpark(name, u0)) if name and k == 0 else None), e(t, track=trk)))
            return L
        tch = lambda srd: (f"buffer_load_dword {a_dummy[0]}, {u0}, {srd}, 0 offen", False)
        qhi = []

        def make_bg():
            pf = (bgl("m4", tch(WO)) + bgl("m14", tch(WG), tch(WU), tch(WD))) if c.mall_pf == 2 else []
            pf.append(lambda: e(f"s_cmp_ge_u32 {s_m}, 14\ns_cselect_b32 s18, 0, s18\ns_cselect_b32 s22, 0, s22"))
            if c.t3 & 2:
                pf += bgl("t3o", tch(WO))
            misc = bgl("xl", (f"buffer_load_dwordx4 {a_xr.sub(0, 4)}, {u0}, {X}, 0 offen", True),
                       (f"s_mov_b32 {t3}, 8192\nbuffer_load_dwordx4 {a_xr.sub(4, 4)}, {u0}, {X}, {t3} offen", True))
            if c.preread:
                misc += bgl(None, *[(f"buffer_load_dwordx4 {a_dummy}, {v_l16}, {WS}, {s_tile} offen offset:{1024 * k} sc1", False) for k in range(2)])
                misc += bgl("fpre", (f"buffer_load_dword {a_dummy[0]}, {u0}, {WS}, 0 offen sc1", False))
            if c.hh_fast == 2:
                misc += bgl("l128", (f"buffer_load_dword {a_dummy[0]}, {u0}, {WS}, {s_hh} offen sc1", False))
            if c.hh_fast == 1:
                misc += [lambda: (e(unpark("l128", u0)), e(f"v_or_b32 {u0}, 4096, {u0}"),
                                  e(f"buffer_load_dword {a_dummy[0]}, {u0}, {WS}, {s_hh} offen sc1", track=False))]
            def hh_init(k):
                def f():
                    e(f"s_add_u32 {t3}, {s_hh}, {(k >> 2) * 4096}")
                    hinit["tok"] = e(f"buffer_store_dwordx4 {a_ones}, {v_l16}, {WS}, {t3} offen offset:{1024 * (k & 3)} sc1")
                return f
            marks = [hh_init(k) for k in range(8) if c.sent & (1 << (k >> 2))]
            qhi.extend((pf + misc + marks) if c.pf_first else (misc + pf + marks))

        run(cst_reads(0, cst) + (cst_reads(1, cst1) if npre_ch > 1 else []))
        V.release(gq, tv)
        v_kw, v_vw, v_kh, v_kr, v_vr, v_o = [V.alloc() for _ in range(6)]
        dfr = deferred(*[xn_all[16 + k] for k in range(5)])
        make_bg()
        assert c.pf_first and c.bg_n <= 5 and c.q_hi0 >= 12 and c.st_g2 >= 6 and not c.sent and not c.hh_fast
        nt = 0
        for ch in range(npre_ch):
            for i in range(5):
                if c.bg_early and nt % c.bg_early == 0 and qhi and nt // c.bg_early < c.bg_n:
                    qhi.pop(0)()
                nt += 1
                run(apply_valu(ch, i, (cst, cst1)[ch & 1], True))
                apply_write(ch, i)()
            if ch + 2 < npre_ch:
                run(cst_reads(ch + 2, (cst, cst1)[ch & 1]))
            elif npre_ch < 4 and ch == (npre_ch - 1) // 2 * 2:
                run(cst_reads(npre_ch, cst))
        if npre_ch < 4:
            for i in range(c.pre_tiles):
                run(apply_valu(npre_ch, i, cst, True))
        accQ, accS1, accS2, accH = [xn_all.sub(120 + 16 * k, 16) for k in range(4)]
        fr = [[A.alloc(4) for _ in range(5)] for _ in range(3)]
        steps = []
        for s in range(32):
            u, sp = s // 2, s % 2
            ch, sc = s // 8, s % 8
            f = fr[s % 3]

            def reads(u=u, sp=sp, ch=ch, sc=sc, f=f):
                aq = UQ[u].addr + sp * 6144
                hbase = LH[ch]
                wi, o = divmod(aq, WIN)
                assert o + 512 < 65536
                return [f"ds_read_b128 {f[3]}, {v_hm if hbase < 44000 else v_hm2} offset:{hbase + 32 * sc - (0 if hbase < 44000 else 2 * HB)}",
                        f"ds_read_b64_tr_b16 {f[0].sub(0, 2)}, {v_wq[wi]} offset:{o}",
                        f"ds_read_b64_tr_b16 {f[0].sub(2, 2)}, {v_wq[wi]} offset:{o + 512}",
                        f"ds_read_b64_tr_b16 {f[1].sub(0, 2)}, {v_w1[wi]} offset:{o}",
                        f"ds_read_b64_tr_b16 {f[1].sub(2, 2)}, {v_w1[wi]} offset:{o + 512}",
                        f"ds_read_b128 {f[4]}, {v_hhalo if hbase < 44000 else v_hh2} offset:{hbase + 32 * sc - (0 if hbase < 44000 else 2 * HB)}",
                        f"ds_read_b64_tr_b16 {f[2].sub(0, 2)}, {v_w2[wi]} offset:{o}",
                        f"ds_read_b64_tr_b16 {f[2].sub(2, 2)}, {v_w2[wi]} offset:{o + 512}"]
            cz = (lambda a: "0") if s == 0 else (lambda a: a)
            mf = [f"v_mfma_f32_32x32x16_bf16 {accS1}, {f[1]}, {f[3]}, {cz(accS1)}",
                  f"v_mfma_f32_32x32x16_bf16 {accH}, {f[1]}, {f[4]}, {cz(accH)}",
                  f"v_mfma_f32_32x32x16_bf16 {accS2}, {f[2]}, {f[3]}, {cz(accS2)}",
                  f"v_mfma_f32_32x32x16_bf16 {accQ}, {f[0]}, {f[3]}, {cz(accQ)}"]
            d = dict(reads=reads, mfmas=mf, units=[UQ[u]])
            if s % c.q_span == 0:
                d["bar"] = True
                d["span"] = c.q_span
                if s % 8 == 0:
                    d["lg"] = (lambda ch=ch: wtok[max(ch, npre_ch - 1)])
            steps.append(d)
        if c.h_full:
            def region(a, n):
                u = Unit("reg", n, [])
                u.addr = a
                return u
            steps[0]["release"] = [region(L_TBL, 4096)] if npre_ch == 4 else []
            steps[12]["release"] = [region(LH[0], HB)]
            steps[20]["release"] = [region(LH[1], HB - 80 * 144)]
            if npre_ch < 4:
                steps[28]["release"] = [region(L_TBL, 4096)]
        mk = Mark()
        fill = list(dfr) + [mk]
        steps[c.q_hi0].setdefault("pre", []).append(lambda: self.drain_to(fill, mk))
        for ch in range(npre_ch, 4):
            gate, mark = Gate(), Mark()
            first = c.pre_tiles if ch == npre_ch else 0
            held = [apply_write(ch, i) for i in range(first)]
            for i in range(first, 5):
                fill += apply_valu(ch, i, cst, False)
                held.append(apply_write(ch, i))
                if i >= 1:
                    if gate not in fill:
                        fill.append(gate)
                    if i == 4 and ch + 1 < 4:
                        fill += cst_reads(ch + 1, cst)
                    fill += held
                    held = []
            fill += [mark]
            if ch == 1 or c.h_full:
                gate.open()
            else:
                steps[8 * (ch - 1) + 4]["postbar"] = gate.open
            steps[8 * ch]["prebar"] = (lambda mark=mark: self.drain_to(fill, mark))
        g2, gx, tw, tv = xn_all.sub(0, 16), V.alloc(2), V.alloc(4), V.alloc(4)
        assert npre_ch == 4
        ga2, gax = V.alloc(), V.alloc()
        g2ld = g_loads(g2, ga2) + [f"buffer_load_dword {gx[0]}, {gax}, {WS}, 0 offen offset:{WS_XID} sc1"]
        g2ck = g_check(g2, tw[0], tw[1]) + [f"v_and_b32 {gx[1]}, -8, {gx[0]}", f"v_xor_b32 {gx[1]}, {gx[1]}, {self.v_tag}",
                                            f"v_or_b32 {tw[0]}, {tw[0]}, {gx[1]}", f"v_cmp_ne_u32 vcc, 0, {tw[0]}"]

        def g2check():
            Ls, Lb = e.newlabel("Lretry"), e.newlabel("Lback")
            e(g2ck[-1])
            e(f"s_cbranch_vccnz {Ls}")
            e.label(Lb)
            self.ool.append(f"{Ls}:\n    s_mov_b32 {self.s_spin}, 0\n{Ls}_1:\n    s_add_u32 {self.s_spin}, {self.s_spin}, 1\n"
                            f"    s_cmp_gt_u32 {self.s_spin}, {c.spin}\n    s_cbranch_scc1 Lexit\n" + "".join(f"    {t}\n" for t in g2ld) +
                            "    s_waitcnt vmcnt(0)\n" + "".join(f"    {t}\n" for t in g2ck) + f"    s_cbranch_vccnz {Ls}_1\n    s_branch {Lb}\n")
        gG, gC = Gate(), Gate()
        steps[c.st_g2].setdefault("pre", []).append(gG.open)
        steps[c.st_g2 + 8].setdefault("pre", []).append(gC.open)
        fill += [gG, unpark("g2", ga2), unpark("gx", gax)] + g2ld + [gC] + g2ck[:-1] + [g2check] + g_sum(g2, False)
        if c.preread:
            fill += bgl(None, (f"buffer_load_dword {a_dummy[0]}, {v_l16}, {WS}, {s_st} offen sc1", False))
        fill += [t.strip() for t in unp(tw, g2[0], g2[2]).split("\n")]
        fill += [f"s_cmp_eq_u32 {s_w}, 2\ns_cselect_b32 {t0}, 1.0, 0"] + [f"v_add_f32 {tv[k]}, {t0}, {tw[k]}" for k in range(4)]
        fill += [f"v_cvt_pk_bf16_f32 {g2[0]}, {tv[0]}, {tv[1]}", f"v_cvt_pk_bf16_f32 {g2[2]}, {tv[2]}, {tv[3]}"]
        fill += [t.strip() for t in unp(tw, g2[0], g2[2]).split("\n")]
        fill += [f"v_and_b32 {gx[1]}, 15, {v_l}", f"s_lshl_b32 {t0}, {s_w}, 8", f"v_lshl_add_u32 {gx[1]}, {gx[1]}, 4, {t0}"]
        fill += [f"ds_write_b128 {gx[1]}, {tw} offset:{L_TBL2}",
                 f"s_getreg_b32 {t0}, hwreg(HW_REG_XCC_ID)", f"s_and_b32 {t0}, {t0}, 7", f"s_or_b32 {t0}, {t0}, {s_tag}",
                 f"v_cmp_ne_u32 vcc, {t0}, {gx[0]}\ns_nop 1\ns_cmp_eq_u64 vcc, 0\ns_cselect_b32 {self.s_mode}, {0 if c.force_slow else 1}, 0"]
        self.bg_off()
        self.loop_prologue(steps)
        self.stamp("p1s")
        self.lname = "Q"
        self.mfma_loop(steps, fill, lambda i, h: (c.q_hi if i >= c.q_hi0 else 0, c.q_dma if c.q_dma0 <= i < c.q_dma1 else 0, c.q_stage), hi=qhi)
        self.drain_to(fill, None)
        run(qhi)
        self.stamp("p1e")
        S.release(*s_tb4, s_col0, s_w3k)
        V.release(cst, v_cst, v_hw, v_hm, v_hhalo, v_wq, v_w1, v_w2, gx, tw, tv, ga2, gax)
        if c.h_full:
            V.release(v_hm2, v_hh2)
        for f in fr:
            A.release(*f)
        lg = V.alloc(16)
        kp = xn_all.sub(0, 16)

        def kwrite(acc, ad, o):
            for j in range(8):
                e(f"v_cvt_pk_bf16_f32 {kp[o + j]}, {acc[2 * j]}, {acc[2 * j + 1]}")
            for j in range(2):
                e(f"ds_write_b128 {ad}, {kp.sub(o + 4 * j, 4)} offset:{L_K + 32 * j}")

        def vwrite(acc, ad):
            for j in range(2):
                for jj in range(2):
                    e(f"ds_write_b128 {ad}, {acc.sub(8 * j + 4 * jj, 4)} offset:{L_V + j * 64 + jj * 32}")
        L1, L2 = e.newlabel("Ltb1"), e.newlabel("Lkv")
        e(f"s_cmp_lg_u32 {s_tb}, 0")
        e(f"s_cbranch_scc1 {L1}")
        save = (e.lg_issued, list(e.hist))
        kwrite(accS1, v_kw, 0); kwrite(accH, v_kh, 8); vwrite(accS2, v_vw)
        e(f"s_branch {L2}")
        e.label(L1)
        e.lg_issued, e.hist = save
        vwrite(accS1, v_vw); vwrite(accH, v_kh); kwrite(accS2, v_kw, 0)
        e.label(L2)
        qp = xn_all.sub(16, 8)
        e("s_nop 3")
        for j in range(8):
            e(f"v_cvt_pk_bf16_f32 {qp[j]}, {accQ[2 * j]}, {accQ[2 * j + 1]}")
        for j in range(4):
            e(f"v_permlane32_swap_b32 {qp[j]}, {qp[4 + j]}")
        e._push(Ins("s_waitcnt lgkmcnt(0)"))
        e.lg_done = e.lg_issued
        self.barrier(ready=[] if c.uo_late else UO, release=UQ + ([region(LH[3], HB)] if c.h_full else []))
        self.stamp("kv")
        self.bg_on(c.att_every, limit=[UG[c.n_dir - 1]], nmax=c.att_n)
        V.release(v_kh, v_kw, v_vw)
        kb = [accS1.sub(0, 8), accS1.sub(8, 8), accS2.sub(0, 8), accS2.sub(8, 8), accH.sub(0, 8), accH.sub(8, 8), kp.sub(0, 8), kp.sub(8, 8)]
        vb = [xn_all.sub(24 + 16 * k, 16) for k in range(6)] + [accS1, accS2]

        def kread(wd):
            return [f"ds_read_b128 {kb[wd].sub(4 * h, 4)}, {v_kr} offset:{L_K + (14 - 2 * wd) * 144 + 16 * h}" for h in range(2)]

        def vread(wd):
            return [f"ds_read_b128 {vb[wd].sub(4 * dq, 4)}, {v_vr} offset:{L_V + (14 - 2 * wd) * 272 + 16 * dq}" for dq in range(4)]

        def qk(ws):
            L = []
            for j in range(8):
                for wd in ws:
                    L.append(f"v_dot2_f32_bf16 {lg[2 * wd]}, {qp[j]}, {kb[wd][j]}, {'0' if j == 0 else lg[2 * wd]}")
            return L
        for wd in range(7):
            run(kread(wd))
        self.interleave(qk((0, 1, 2, 3)), kread(7) + vread(0) + vread(1) + vread(2)[:2], 0.4)
        self.interleave(qk((4, 5, 6, 7)), vread(2)[2:] + vread(3) + vread(4) + vread(5)[:2], 0.4)
        Lnm = e.newlabel("Lnomask")
        e(f"s_cmp_lg_u32 {s_TB}, 0")
        e(f"s_cbranch_scc1 {Lnm}")
        e.begin_cond()
        e(f"v_mov_b32 {u0}, 0x{f2u(-4e9):08x}")
        for wd in range(1, 8):
            e(f"v_cmp_gt_u32 vcc, {2 * wd}, {v_t}")
            e(f"v_cndmask_b32 {lg[2 * wd]}, {lg[2 * wd]}, {u0}, vcc")
        e.end_cond(Lnm)
        mx = lg[1]
        SM = [f"s_mov_b32 {t0}, 0x{f2u(0.25 * math.log2(math.e)):08x}",
              f"v_max3_f32 {mx}, {lg[0]}, {lg[2]}, {lg[4]}",
              f"v_max3_f32 {lg[3]}, {lg[6]}, {lg[8]}, {lg[10]}",
              f"v_max3_f32 {mx}, {mx}, {lg[12]}, {lg[14]}",
              f"v_max_f32 {mx}, {mx}, {lg[3]}",
              f"v_mul_f32 {mx}, {t0}, {mx}"]
        SM += [f"v_fma_f32 {lg[2 * wd]}, {lg[2 * wd]}, {t0}, -{mx}" for wd in range(8)]
        SM += [f"v_exp_f32 {lg[2 * wd]}, {lg[2 * wd]}" for wd in range(8)]
        self.interleave(SM, vread(5)[2:] + vread(6) + vread(7), 0.6)
        ov = accQ
        SUM = f"""v_add_f32 {lg[1]}, {lg[0]}, {lg[2]}
        v_add_f32 {lg[3]}, {lg[4]}, {lg[6]}
        v_add_f32 {lg[5]}, {lg[8]}, {lg[10]}
        v_add_f32 {lg[7]}, {lg[12]}, {lg[14]}
        v_add_f32 {lg[1]}, {lg[1]}, {lg[3]}
        v_add_f32 {lg[5]}, {lg[5]}, {lg[7]}
        v_add_f32 {lg[1]}, {lg[1]}, {lg[5]}
        v_rcp_f32 {lg[1]}, {lg[1]}""".split("\n")
        PV = []
        for wd in range(8):
            for j in range(8):
                p = ov.sub(2 * j, 2)
                if wd == 0:
                    PV.append(f"v_pk_mul_f32 {p}, {vb[wd].sub(2 * j, 2)}, {lg.sub(0, 2)} op_sel_hi:[1,0]")
                else:
                    PV.append(f"v_pk_fma_f32 {p}, {vb[wd].sub(2 * j, 2)}, {lg.sub(2 * wd, 2)}, {p} op_sel_hi:[1,0,1]")
        self.interleave(PV, SUM, 0.25)
        ob = lg.sub(8, 8)
        for j in range(8):
            p = ov.sub(2 * j, 2)
            e(f"v_pk_mul_f32 {p}, {p}, {lg.sub(0, 2)} op_sel:[0,1] op_sel_hi:[1,1]")
        self.bg_off()
        for j in range(8):
            e(f"v_cvt_pk_bf16_f32 {ob[j]}, {ov[2 * j]}, {ov[2 * j + 1]}")
        self.stamp("att")
        tok = self.store2([f"buffer_store_dwordx4 {ob.sub(0, 4)}, {v_o}, {WS}, 0 offen" + "{f}",
                           f"buffer_store_dwordx4 {ob.sub(4, 4)}, {v_o}, {WS}, 0 offen offset:512" + "{f}"])
        V.release(xn_all, v_kr, v_vr, v_o)
        ga, gB, gs = V.alloc(16), V.alloc(16), V.alloc(16)
        x1 = V.alloc(16)
        gb = V.alloc(16)
        v_pf = V.alloc()
        v_s0, v_s1 = V.alloc(3, align=1), V.alloc(3, align=1)
        v_act, v_red = V.alloc(), V.alloc()
        e(f"""v_lshlrev_b32 {u0}, 4, {v_hh}
        s_lshl_b32 {t0}, {s_kh}, 7
        v_add_u32 {u0}, {t0}, {u0}""")
        for vec, r in ((0, ga), (1, gs), (2, gB), (3, gb)):
            for j in range(4):
                e(f"ds_read_b128 {r.sub(4 * j, 4)}, {u0} offset:{L_TBL2 + 256 * vec + 32 * j}")
        e(f"""v_and_b32 {u1}, 7, {v_l}
        v_lshlrev_b32 {u1}, 2, {u1}
        s_lshl_b32 {t0}, {s_kh}, 5
        s_add_u32 {t0}, {t0}, {s_flb}
        v_add_u32 {v_pf}, {t0}, {u1}""")
        e(f"""v_lshlrev_b32 {u0}, 10, {v_hh}
        s_lshl_b32 {t0}, {s_kh}, 11
        s_lshl_b32 {t1}, {s_kh}, 8
        s_add_u32 {t2}, {t0}, {t1}
        v_add3_u32 {v_s0[0]}, {v_trn}, {u0}, {t2}
        s_sub_u32 {t2}, {t0}, {t1}
        s_add_u32 {t2}, {t2}, 256
        v_add3_u32 {v_s1[0]}, {v_trn}, {u0}, {t2}""")
        for k in (1, 2):
            e(f"v_add_u32 {v_s0[k]}, {k * WIN}, {v_s0[0]}")
            e(f"v_add_u32 {v_s1[k]}, {k * WIN}, {v_s1[0]}")
        e(f"""s_lshl_b32 {t0}, {s_TB}, 5
        s_lshl_b32 {t1}, {s_kh}, 4
        s_add_u32 {t0}, {t0}, {t1}
        s_lshl_b32 {t0}, {t0}, 10
        s_add_u32 {t0}, {t0}, {WS_O}
        v_add_u32 {v_act}, {t0}, {v_l16}
        v_add_u32 {v_red}, {s_w1k}, {v_l16}
        v_lshlrev_b32 {v_red}, 2, {v_red}
        v_mul_u32_u24 {u0}, 48, {v_l}
        v_sub_u32 {v_red}, {v_red}, {u0}""")
        e(f"""s_lshl_b32 {t0}, {s_tb}, 5
        v_add_u32 {u1}, {t0}, {v_t}
        v_mul_u32_u24 {u1}, 144, {u1}
        s_lshl_b32 {t0}, {s_kh}, 6
        v_lshlrev_b32 {u2}, 3, {v_hh}
        v_add3_u32 {u2}, {u1}, {u2}, {t0}""")
        v_w16 = V.alloc(3, align=1)
        e(f"v_add_u32 {v_w16[0]}, {s_w1k}, {v_l16}")
        for k in (1, 2):
            e(f"v_add_u32 {v_w16[k]}, {k * WIN}, {v_w16[0]}")
        e(unpark("xw", u3))
        e.wait(vm=tok)
        self.flag_store(v_fl, F_O * 512)
        self.stamp("fo")
        V.release(lg)
        self.barrier(ready=UO)
        self.lds.add(L_RED + 16384, (L_V + HB if c.h_full else L_RING) - L_RED - 16384)
        xr = V.alloc(8)
        xs = Unit("xs", 64 * 144, [])
        xs.addr = L_RED + 16384
        assert any(iv[0] <= xs.addr and iv[1] >= xs.addr + xs.size for iv in self.lds.free)
        for iv in self.lds.free:
            if iv[0] <= xs.addr < iv[1]:
                hi_end = iv[1]
                iv[1] = xs.addr
                self.lds.free.append([xs.addr + xs.size, hi_end])
                break
        self.lds.free = sorted(iv for iv in self.lds.free if iv[1] > iv[0])
        e(f"ds_write_b128 {u3}, {a_xr.sub(0, 4)} offset:{xs.addr}")
        e(f"ds_write_b128 {u3}, {a_xr.sub(4, 4)} offset:{xs.addr + 8 * 144}")
        A.release(a_xr)
        done = [u for u in staged if u.next >= len(u.dmas)]
        for f in self.commit(done, v_w16):
            f()
        self.barrier()
        for j in range(4):
            e(f"ds_read_b64 {xr.sub(2 * j, 2)}, {u2} offset:{xs.addr + 16 * j}")
        self.dma_all(limit=c.n_alpha)
        for j in range(8):
            e(f"v_lshlrev_b32 {x1[2 * j]}, 16, {xr[j]}")
            e(f"v_and_b32 {x1[2 * j + 1]}, 0xffff0000, {xr[j]}")
        V.release(xr)
        A.release(a_ones, *[r for n, r in parked.items() if n not in ("xres", "t3d")])
        fr = [[A.alloc(4) for _ in range(4)] for _ in range(3)]
        acc0, acc1 = V.alloc(16), V.alloc(16)

        def kloop(units, act, rdoff, nk, first=True, base=0):
            steps = []
            for i in range(nk // 2):
                f = fr[(base + i) % 3]

                def reads(i=i, f=f):
                    L = []
                    for h in range(2):
                        ad = units[2 * i + h].addr
                        wi, o = divmod(ad, WIN)
                        assert o + rdoff < 65536
                        for sl, base in ((0, v_s0), (1, v_s1)):
                            L.append(f"ds_read_b64_tr_b16 {f[2 * h + sl].sub(0, 2)}, {base[wi]} offset:{o}")
                            L.append(f"ds_read_b64_tr_b16 {f[2 * h + sl].sub(2, 2)}, {base[wi]} offset:{o + rdoff}")
                    return L
                mf = []
                for h in range(2):
                    for sl, acc in ((0, acc0), (1, acc1)):
                        cin = "0" if (first and i == 0 and h == 0) else acc
                        mf.append(f"v_mfma_f32_32x32x16_bf16 {acc}, {f[2 * h + sl]}, {act[2 * i + h]}, {cin}")
                steps.append(dict(reads=reads, mfmas=mf, units=[units[2 * i], units[2 * i + 1]]))
            return steps

        s_ao = sa()

        cur_ao = [None]

        def act_loads(regs, vaddr, offs):
            L = []
            for r, o in zip(regs, offs):
                def f(r=r, o=o):
                    if (c.exp_nohh and vaddr is not v_act) or (c.exp_noh2 and len(regs) == 32):
                        return
                    va = vaddr
                    if isinstance(o, tuple) and len(o) == 4:
                        e(f"s_xor_b32 {s_ao}, {o[0]}, {o[1]}")
                        cur_ao[0], o = None, 0
                    elif isinstance(o, tuple) and len(o) == 3:
                        e(f"s_lshr_b32 {s_ao}, {o[0]}, 4\ns_add_u32 {s_ao}, {s_ao}, {o[1]}")
                        cur_ao[0], o = None, 0
                    elif isinstance(o, tuple):
                        b, o = o
                        if b != cur_ao[0]:
                            e(f"s_lshr_b32 {s_ao}, {b}, 4")
                            cur_ao[0] = b
                    else:
                        if len(regs) == 32 and (o >> (11 + c.gbit)) & 1:
                            va = v_act2
                        b = o & ~4095
                        if b != cur_ao[0]:
                            e(f"s_mov_b32 {s_ao}, {b}")
                            cur_ao[0] = b
                    e(f"buffer_load_dwordx4 {r}, {va}, {CC if len(regs) == 32 else WS}, {s_ao} offen offset:{o & 4095}{c.act_fl}")
                L.append(f)
            return L

        actf = [A.alloc(4) for k in range(16)]
        steps = kloop(UO, actf, 512, 16)
        self.loop_prologue(steps)
        self.poll([f"buffer_load_dword {u1}, {v_pf}, {WS}, 0 offen offset:{F_O * 512} sc1"], [u1])
        self.stamp("po")
        self.lname = "O"
        hl = act_loads(actf[:16], v_act, [(str(s_rx[k & 3]), (k // 4) * 4096, 0) for k in range(16)])
        run(hl[:c.p2_lead])
        hi = hl[c.p2_lead:]
        for i in range(c.p2_lead // 2, 8):
            def f(n=14 - 2 * i):
                while len(hi) > n + c.n_beta:
                    hi.pop(0)()
            steps[i]["pre"] = [f]
        nb = [0]

        def beta():
            if nb[0] < c.n_beta:
                nb[0] += bool(self.stage_step())
        hi += [beta] * c.n_beta
        self.mfma_loop(steps, [], lambda i, h: (1, 0, 0), hi=hi)
        rest = [u for u in self.stq if u.next == 0]
        while self.stq and self.stq[0].next:
            if self.stq[0].next >= len(self.stq[0].dmas):
                self.stq.pop(0)
            else:
                self.stage_step()
        self.stq = []
        k = 0
        while k < len(self.queue) and (self.queue[k].addr is not None or self.queue[k] in UG[:c.n_dir]):
            k += 1
        self.queue[k:k] = rest
        staged = [u for u in staged if u not in rest]

        def reduce_pair():
            for j in range(4):
                e(f"ds_write_b128 {v_red}, {acc1.sub(4 * j, 4)} offset:{L_RED + 1024 * j}")
            e(f"v_xor_b32 {u0}, 8192, {v_red}")

        def reduce_read():
            for j in range(4):
                e(f"ds_read_b128 {acc1.sub(4 * j, 4)}, {u0} offset:{L_RED + 1024 * j}")
            for j in range(8):
                e(f"v_pk_add_f32 {acc0.sub(2 * j, 2)}, {acc0.sub(2 * j, 2)}, {acc1.sub(2 * j, 2)}")
        reduce_pair()
        self.barrier(release=UO + [xs])
        reduce_read()
        self.stamp("p2m")
        for j in range(8):
            e(f"v_pk_fma_f32 {x1.sub(2 * j, 2)}, {acc0.sub(2 * j, 2)}, {ga.sub(2 * j, 2)}, {x1.sub(2 * j, 2)}")
        sm, sq = acc1.sub(0, 4), acc1.sub(4, 4)
        for j in range(8):
            p = x1.sub(2 * j, 2)
            a, b = sm.sub(2 * (j & 1), 2), sq.sub(2 * (j & 1), 2)
            if j < 2:
                e(f"v_pk_add_f32 {a}, {p}, {x1.sub(2 * j + 4, 2)}")
                e(f"v_pk_mul_f32 {b}, {p}, {p}")
            else:
                if j >= 4:
                    e(f"v_pk_add_f32 {a}, {a}, {p}")
                e(f"v_pk_fma_f32 {b}, {p}, {p}, {b}")
        gr = acc1[8]
        e(f"""v_pk_add_f32 {sm.sub(0, 2)}, {sm.sub(0, 2)}, {sm.sub(2, 2)}
        v_pk_add_f32 {sq.sub(0, 2)}, {sq.sub(0, 2)}, {sq.sub(2, 2)}
        s_lshl_b32 {t0}, {s_TB}, 12
        v_add_f32 {sm[0]}, {sm[0]}, {sm[1]}
        v_add_f32 {sq[0]}, {sq[0]}, {sq[1]}
        s_add_u32 {t0}, {t0}, {WS_STATS}
        v_permlane32_swap_b32 {sm[0]}, {sq[0]}
        v_add_f32 {gr}, {sm[0]}, {sq[0]}
        v_min_u32 {gr}, -2, {gr}""")
        self.store2([f"buffer_store_dword {gr}, {v_l16}, {WS}, {s_st} offen" + "{f}"])
        sg = V.alloc(16)
        def commit2():
            for f in self.commit(staged, v_w16):
                f()
            assert all(u.addr is not None for u in staged), "staged units left"
            V.release(v_w16)
        if not c.commit_late:
            commit2()
        tm = self.v_tmp
        pre = [f"v_max3_u32 {tm}, {sg[0]}, {sg[1]}, {sg[2]}", f"v_max3_u32 {u0}, {sg[3]}, {sg[4]}, {sg[5]}",
               f"v_max3_u32 {tm}, {tm}, {sg[6]}, {sg[7]}", f"v_max3_u32 {u0}, {u0}, {sg[8]}, {sg[9]}",
               f"v_max3_u32 {tm}, {tm}, {sg[10]}, {sg[11]}", f"v_max3_u32 {u0}, {u0}, {sg[12]}, {sg[13]}",
               f"v_max3_u32 {tm}, {tm}, {sg[14]}, {sg[15]}", f"v_max_u32 {tm}, {tm}, {u0}", f"v_cmp_eq_u32 vcc, -1, {tm}"]
        self.poll([f"buffer_load_dwordx4 {sg.sub(4 * k, 4)}, {v_l16}, {WS}, {t0} offen offset:{1024 * k} sc1" for k in range(4)], [], pre=pre)
        self.stamp("pst")
        for k in range(4):
            e(f"v_pk_add_f32 {sg.sub(2 * k, 2)}, {sg.sub(2 * k, 2)}, {sg.sub(8 + 2 * k, 2)}")
        e(f"""v_pk_add_f32 {sg.sub(0, 2)}, {sg.sub(0, 2)}, {sg.sub(4, 2)}
        v_pk_add_f32 {sg.sub(2, 2)}, {sg.sub(2, 2)}, {sg.sub(6, 2)}
        v_pk_add_f32 {sg.sub(0, 2)}, {sg.sub(0, 2)}, {sg.sub(2, 2)}
        v_add_f32 {sg[0]}, {sg[0]}, {sg[1]}
        v_mov_b32 {sg[1]}, {sg[0]}
        v_permlane32_swap_b32 {sg[0]}, {sg[1]}""")
        pr = sg.sub(2, 2)
        for t in self.finish_stats(sg[0], sg[1], pr[0], pr[1], 512):
            e(t)
        for j in range(8):
            e(f"v_pk_fma_f32 {acc0.sub(2 * j, 2)}, {x1.sub(2 * j, 2)}, {pr}, {pr} op_sel:[0,0,1] op_sel_hi:[1,0,1]")
        for j in range(8):
            e(f"v_pk_fma_f32 {acc0.sub(2 * j, 2)}, {acc0.sub(2 * j, 2)}, {gB.sub(2 * j, 2)}, {gs.sub(2 * j, 2)}")
        for j in range(8):
            e(f"v_cvt_pk_bf16_f32 {acc1[j]}, {acc0[2 * j]}, {acc0[2 * j + 1]}")
        if c.sent:
            e.wait(vm=hinit["tok"])
        tok = self.store2([f"buffer_store_dwordx4 {acc1.sub(0, 4)}, {v_l16}, {WS}, {s_tile} offen" + "{f}",
                           f"buffer_store_dwordx4 {acc1.sub(4, 4)}, {v_l16}, {WS}, {s_tile} offen offset:1024" + "{f}"])
        V.release(sg, ga, gB, gs)
        if c.rot & 8:
            e(f"""s_lshr_b32 {t0}, {s_idx}, 3
            s_lshl_b32 {t0}, {t0}, {c.rsh}
            s_xor_b32 {t0}, {t0}, {s_hg}
            s_and_b32 {t1}, {t0}, 3
            s_lshl_b32 {s_rx[1]}, {t1}, 14
            s_and_b32 {t0}, {t0}, {4 if c.rsh else 0}
            s_lshl_b32 {t0}, {t0}, 15
            s_or_b32 {s_rx[0]}, {s_rx[1]}, {t0}""")
        else:
            e(f"s_mov_b32 {s_rx[0]}, 0\ns_mov_b32 {s_rx[1]}, 0")
        e(f"s_lshr_b32 {s_rx[2]}, {s_rx[0]}, 4\ns_lshr_b32 {s_rx[3]}, {s_rx[1]}, 4")
        cur_ao[0] = None
        self.cur_so = None
        assert all(u.next == 0 for u in UD)
        if c.commit_late:
            commit2()
        self.dma_all(limit=c.n_gamma)
        v_ta = V.alloc(3, align=1)
        v_p3f, v_p3s, v_hha, v_chk, v_act2 = [V.alloc() for _ in range(5)]
        e(f"""v_and_b32 {u0}, 3, {v_l}
        v_lshlrev_b32 {u0}, 3, {u0}
        v_bfe_u32 {u1}, {v_l}, 2, 2
        v_bfe_u32 {u2}, {v_l}, 4, 1
        v_lshlrev_b32 {u3}, 6, {u1}
        v_add_u32 {u3}, {u3}, {u0}
        v_mul_u32_u24 {v_ta[0]}, {4096 + 32}, {u2}
        v_lshlrev_b32 {v_ta[1]}, 9, {v_hh}
        v_add3_u32 {v_ta[0]}, {v_ta[0]}, {v_ta[1]}, {u3}""")
        for k in (1, 2):
            e(f"v_add_u32 {v_ta[k]}, {k * WIN}, {v_ta[0]}")
        e(f"""s_lshl_b32 {t0}, {s_g}, 2
        s_add_u32 {t0}, {t0}, {s_w}
        s_lshl_b32 {t1}, {t0}, 15
        s_add_u32 {t1}, {t1}, {WS_H2}
        s_lshr_b32 {t2}, {s_idx}, 4
        s_mul_i32 {t2}, {t2}, {(2048 << c.gbit) if c.rot & 2 else 0}
        v_add_u32 {v_act}, {t1}, {v_l16}
        v_subrev_u32 {v_act2}, {t2}, {v_act}
        v_add_u32 {v_act}, {t2}, {v_act}
        s_lshl_b32 {t0}, {s_g}, 11
        s_lshl_b32 {t1}, {s_w}, 7
        s_add_u32 {t0}, {t0}, {t1}
        s_add_u32 {t0}, {t0}, {WS_FLAGS}
        v_and_b32 {u0}, 15, {v_l}
        v_lshlrev_b32 {u0}, 2, {u0}
        v_add_u32 {v_p3f}, {t0}, {u0}
        s_lshl_b32 {t1}, {s_m}, 2
        s_add_u32 {t0}, {t0}, {t1}
        v_mov_b32 {v_p3s}, {t0}""")
        e(f"""v_lshlrev_b32 {u0}, 9, {v_hh}
        s_lshl_b32 {t0}, {s_kh}, 11
        s_lshl_b32 {t1}, {s_kh}, 8
        s_add_u32 {t2}, {t0}, {t1}
        v_add3_u32 {v_s0[0]}, {v_trn}, {u0}, {t2}
        s_sub_u32 {t2}, {t0}, {t1}
        s_add_u32 {t2}, {t2}, 256
        v_add3_u32 {v_s1[0]}, {v_trn}, {u0}, {t2}""")
        for k in (1, 2):
            e(f"v_add_u32 {v_s0[k]}, {k * WIN}, {v_s0[0]}")
            e(f"v_add_u32 {v_s1[k]}, {k * WIN}, {v_s1[0]}")
        e(f"""s_mul_i32 {t0}, {s_TB}, 112
        s_mul_i32 {t1}, {s_kh}, 56
        s_add_u32 {t0}, {t0}, {t1}
        s_lshl_b32 {t0}, {t0}, 10
        s_add_u32 {t0}, {t0}, {WS_HH}
        v_add_u32 {v_hha}, {t0}, {v_l16}
        v_and_b32 {u1}, 7, {v_l}
        v_min_u32 {u1}, 6, {u1}
        v_lshlrev_b32 {u1}, 2, {u1}
        s_mul_i32 {t0}, {s_kh}, 28
        s_add_u32 {t0}, {t0}, {s_flb}
        v_add_u32 {v_pf}, {t0}, {u1}""")
        e.wait(vm=tok)
        self.flag_store(v_fl, F_H * 512)
        self.stamp("fh")
        if c.stop == "p2":
            return self.finish()
        actf += [A.alloc(4) for k in range(16)]
        e("s_mov_b32 s40, s36\ns_mov_b32 s41, s37\ns_mov_b32 s42, s38")
        if c.idle_pf:
            Li = e.newlabel("Lbusy")
            e(f"s_cmp_lt_u32 {s_m}, 14")
            e(f"s_cbranch_scc1 {Li}")
            e.begin_cond()
            e(f"""s_and_b32 {t0}, {s_g}, 1
            s_lshl_b32 {t0}, {t0}, 1
            s_add_u32 {t0}, {t0}, {s_m}
            s_sub_u32 {t0}, {t0}, 14""")
            if c.idle_pf & 1:
                e(f"""s_lshl_b32 {t1}, {t0}, 12
                s_add_u32 {t1}, {t1}, {c.idle_off - 128}
                v_lshl_add_u32 {v_dA}, v0, 4, {t1}
                s_mov_b32 s16, s24
                s_mov_b32 s17, s25
                s_mov_b32 s18, s26
                s_add_u32 s20, s24, 16384
                s_addc_u32 s21, s25, 0
                s_sub_u32 s22, s26, 16384""")
            if c.idle_pf & 2:
                e(f"""s_lshl_b32 {t0}, {t0}, 2
                s_add_u32 {t0}, {t0}, {s_w}
                s_and_b32 {t1}, {t0}, 1
                s_lshl_b32 {t1}, {t1}, 15
                s_lshr_b32 {t0}, {t0}, 1
                s_lshr_b32 {t2}, {t0}, 2
                s_mul_i32 {t2}, {t2}, 3
                s_add_u32 {t0}, {t0}, {t2}
                s_lshl_b32 {t0}, {t0}, 17
                s_add_u32 {t0}, {t0}, {t1}
                v_add_u32 {v_act}, {t0}, {v_l16}
                s_mov_b32 s40, s24
                s_mov_b32 s41, s25
                s_mov_b32 s42, s26""")
            e.end_cond(Li)
        accA = [V.alloc(16) for _ in range(4)]
        accB = [V.alloc(16) for _ in range(4)]
        steps = []
        for ph, (UU, accs) in enumerate(((UA, accA), (UB, accB))):
            for s in range(32):
                f = fr[len(steps) % 3]

                def reads(s=s, f=f, UU=UU):
                    ad = UU[s // 2].addr + (s % 2) * 2048
                    wi, o = divmod(ad, WIN)
                    L = []
                    for cb in range(4):
                        for rd in range(2):
                            L.append(f"ds_read_b64_tr_b16 {f[cb].sub(2 * rd, 2)}, {v_ta[wi]} offset:{o + rd * 1024 + (cb >> 1) * 256 + (cb & 1) * 32}")
                    return L
                mf = [f"v_mfma_f32_32x32x16_bf16 {accs[cb]}, {f[cb]}, {actf[s]}, {'0' if s == 0 else accs[cb]}" for cb in range(4)]
                d = dict(reads=reads, mfmas=mf, units=[UU[s // 2]])
                if s % 4 == 0:
                    d["bar"], d["span"] = True, 4
                steps.append(d)
        red_unit = Unit("red", 16384, [])
        red_unit.addr = L_RED
        steps[0]["release"] = [red_unit]
        hx = [A.alloc(4) for _ in range(12)]
        actH = hx + [accA[k // 4].sub(4 * (k % 4), 4) for k in range(16)] + actf[:28]
        s4 = kloop(UD, actH, 1024, 56, base=64)
        for i in range(0, 28, 4):
            s4[i]["bar"], s4[i]["span"] = True, 4
        steps += s4
        stok = {}

        def glu(acc, imm, key):
            L = [f"v_mul_f32 {acc[v]}, {acc[v]}, {acc[v + 8]}" for v in range(8)]
            L += [f"v_cvt_pk_bf16_f32 {acc[8 + j]}, {acc[2 * j]}, {acc[2 * j + 1]}" for j in range(4)]
            if c.sent & (1 if key == "A" else 2):
                L += [f"v_min_u32 {acc[8]}, -2, {acc[8]}"]

            def st():
                if c.hh_fast == 2 or (c.hh_fast == 1 and key == "B"):
                    stok[key] = self.store2([f"buffer_store_dwordx4 {acc.sub(8, 4)}, {v_l16}, {WS}, {s_hh} offen offset:{imm}" + "{f}"])
                else:
                    stok[key] = e(f"buffer_store_dwordx4 {acc.sub(8, 4)}, {v_l16}, {WS}, {s_hh} offen offset:{imm} sc1")
            return L + [st]
        gA, gFA, gB, gFB, gHA, gHB = [Gate() for _ in range(6)]
        fill = (bgl("t3d", tch(WD)) if c.t3 & 4 else []) + [gA]
        for cb in range(4):
            fill += glu(accA[cb], 1024 * cb, "A")
        fill += [f"s_add_u32 {s_hh}, {s_hh}, 4096", gB]
        for cb in range(4):
            fill += glu(accB[cb], 1024 * cb, "B")
        issA, chkA = self.opt_check(v_pf, F_A * 512, v_chk)
        issB, chkB = self.opt_check(v_pf, F_B * 512, v_chk)

        def hook(i, f):
            steps[i].setdefault("pre", []).append(f)
        hook(33, gA.open)
        if c.sent & 1:
            hook(c.st_ca, lambda: (self.drain_to(fill, gB), fill.insert(0, gB), gHA.open(), self.stamp("ca")))
        else:
            hook(c.st_fa, lambda: (self.drain_to(fill, gB), fill.insert(0, gB), e.wait(vm=stok["A"]), self.flag_store(v_p3s, F_A * 512), self.stamp("fa")))
            hook(c.st_ia, issA)
            hook(c.st_ca, lambda: (chkA(), gHA.open(), self.stamp("ca")))
        if c.burst_b:
            hook(64, lambda: (gB.open(), self.drain_to(fill, None)))
        else:
            hook(65, gB.open)
        if c.burst_a:
            hook(33, lambda: (self.drain_to(fill, gB), fill.insert(0, gB)))
        if c.wb_at:
            def wb():
                Lw = e.newlabel("Lnowb")
                e(f"s_lshl_b32 {t0}, {s_idx}, 2\ns_add_u32 {t0}, {t0}, {s_w}\ns_cmp_lg_u32 {t0}, {c.wb_who}")
                e(f"s_cbranch_scc1 {Lw}")
                e.optional += 1
                e("buffer_wbl2 sc1")
                e.optional -= 1
                e.label(Lw)
            hook(c.wb_at, wb)
        if c.sent & 2:
            hook(c.st_cb, lambda: (self.drain_to(fill, None), gHB.open(), self.stamp("cb")))
        else:
            hook(c.st_fb, lambda: (self.drain_to(fill, None), e.wait(vm=stok["B"]), self.flag_store(v_p3s, F_B * 512), self.stamp("fb")))
            hook(c.st_ib, issB)
            hook(c.st_cb, lambda: (chkB(), gHB.open(), self.stamp("cb")))
        hl = act_loads(actf, v_act, [1024 * k for k in range(32)])
        hi = hl[c.act_lead:] + [gHA] + act_loads(actH[:28], v_hha, [(str(s_rx[2 if fb < 48 else 3]), fb * 1024, 0, 0) for fb in fbA]) + [gHB]
        hb = act_loads(actH[28:], v_hha, [(str(s_rx[2 if fb < 48 else 3]), fb * 1024, 0, 0) for fb in fbB])
        hook(c.st_cb, lambda: run(hb[:c.lead_b]))
        hi += hb[c.lead_b:]

        def need(i, n):
            def f():
                while len(hi) > n:
                    t = hi.pop(0)
                    if isinstance(t, Gate):
                        assert t.is_open, f"gate closed at step {i}"
                    else:
                        t()
            hook(i, f)
        total = len(hi)
        pos = {}
        k = c.act_lead
        seq = list(range(c.act_lead, 32)) + [None] + list(range(64 * 2, 64 * 2 + 28)) + [None] + list(range(64 * 2 + 28 + c.lead_b, 64 * 2 + 56))
        for n, q in enumerate(seq):
            if q is not None:
                st_i = q if q < 32 else q // 2
                need(st_i, total - n - 1)
        for i in range(28):
            if c.sent & (1 if i < 14 else 2):
                hook(64 + i, lambda i=i: self.verify([(actH[2 * i + h], 1024 * fbs[2 * i + h]) for h in range(2)], v_hha))
                steps[64 + i]["resv"] = 3 if 6 <= i < 14 else 4
        Lidle, Ljoin = e.newlabel("Lidle"), e.newlabel("Lp4")
        if c.skip_idle:
            self.dma_flush()
            e(f"s_cmp_ge_u32 {s_m}, 14")
            e(f"s_cbranch_scc1 {Lidle}")
            n_p3 = len(e.out)
        self.loop_prologue(steps)
        self.poll([f"buffer_load_dword {u1}, {v_p3f}, {WS}, 0 offen offset:{F_H * 512} sc1"], [u1])
        self.stamp("ph")
        self.exp_delay("ph")
        self.lname = "G"
        run(hl[:c.act_lead])

        def g_rates(i, h):
            if any(p0 <= i < p1 for p0, p1 in c.pauses):
                return (c.g_hi[2] if i >= 64 else c.g_hi[i // 32], 0, 0)
            reg = min(i // 32, 2)
            if i >= c.st_cb:
                return (c.g_hi[2], c.g_end, c.g_end) if h else (0, c.g_dma[2], 0)
            return (c.g_hi[reg], c.g_mix[reg] if h else c.g_dma[reg], 0)
        self.mfma_loop(steps, fill, g_rates, rng=(0, 64), hi=hi)
        if c.skip_idle:
            body = [o.text for o in e.out[n_p3:] if isinstance(o, Ins)]
            alt, m0 = [], None
            for k, t in enumerate(body):
                if t.startswith("s_add_u32 m0") or (len(t.split()) > 1 and t.split()[1] == f"{self.s_so},"):
                    alt.append(t)
                elif t.endswith(" lds") and WD in t:
                    alt += ["s_nop 0", t]
            keep = []
            for k, t in enumerate(alt):
                if t.startswith("s_add_u32 m0") and any(u.startswith("s_add_u32 m0") for u in alt[k + 1:k + 3]) :
                    continue
                keep.append(t)
            alt = keep
            alt2 = [t for t in body if t.startswith(f"s_xor_b32 {s_ao},") or (t.startswith("buffer_load_dwordx4") and f" {v_hha}," in t)]
            rd = steps[64]["reads"]() + steps[65]["reads"]()
            Lw = Lidle + "_w"
            self.ool.append(f"{Lidle}:\n    s_waitcnt vmcnt(0) lgkmcnt(0)\n    s_barrier\n" + "".join(f"    {t}\n" for t in alt) +
                            f"    s_mov_b32 {self.s_spin}, 0\n{Lw}:\n    s_sleep 8\n    s_add_u32 {self.s_spin}, {self.s_spin}, 1\n    s_cmp_gt_u32 {self.s_spin}, {c.spin}\n"
                            f"    s_cbranch_scc1 Lexit\n    buffer_load_dword {v_chk}, {v_pf}, s[36:39], 0 offen offset:{F_A * 512} sc1\n    s_waitcnt vmcnt(0)\n"
                            f"    v_cmp_ne_u32 vcc, {s_tag}, {v_chk}\n    s_cbranch_vccnz {Lw}\n" + "".join(f"    {t}\n" for t in alt2) +
                            "    s_barrier\n" + "".join(f"    {t}\n" for t in rd) + f"    s_waitcnt vmcnt(0) lgkmcnt(0)\n    s_branch {Ljoin}\n")
            e.label(Ljoin)
        self.stamp("p3e")
        self.mfma_loop(steps, fill, g_rates, rng=(64, 92), hi=hi)
        self.stamp("p4e")
        self.barrier()
        reduce_pair()
        e(unpark("xres", u1))
        self.barrier()
        reduce_read()
        for j in range(8):
            e(f"v_pk_fma_f32 {x1.sub(2 * j, 2)}, {acc0.sub(2 * j, 2)}, {gb.sub(2 * j, 2)}, {x1.sub(2 * j, 2)}")
        for j in range(8):
            e(f"v_cvt_pk_bf16_f32 {acc1[j]}, {x1[2 * j]}, {x1[2 * j + 1]}")
        for a, b in ((0, 2), (1, 3), (4, 6), (5, 7)):
            e(f"v_permlane32_swap_b32 {acc1[a]}, {acc1[b]}")
        e(f"buffer_store_dwordx4 {acc1.sub(0, 4)}, {u1}, {OUT}, 0 offen{c.out_fl.replace('_', ' ')}")
        e(f"buffer_store_dwordx4 {acc1.sub(4, 4)}, {u1}, {OUT}, 0 offen offset:32{c.out_fl.replace('_', ' ')}")
        Lnb = e.newlabel("Lnobump")
        e(f"s_or_b32 {t0}, s2, {s_w}")
        e(f"s_cmp_lg_u32 {t0}, 0")
        e(f"s_cbranch_scc1 {Lnb}")
        xi = acc0.sub(0, 4)
        self.poll([f"buffer_load_dwordx4 {xi}, {v_l16}, {WS}, 0 offen offset:{WS_XID} sc1"], [xi[k] for k in range(4)],
                  pre=[f"v_and_b32 {xi[k]}, -8, {xi[k]}" for k in range(4)])
        e(f"""v_mov_b32 {u0}, 0
        s_mov_b64 exec, 1
        buffer_store_dword {self.v_tag}, {u0}, {WS}, 0 offen offset:{WS_E} sc1
        s_mov_b64 exec, -1""")
        e.label(Lnb)
        return self.finish()

    def finish(self):
        e, c = self.e, self.c
        if c.stamps:
            self.stamp("end")
            e(f"s_memrealtime {self.rt1}")
            e.wait_all_lg()
            t = self.v_tmp
            e("s_mov_b64 exec, 1")
            e(f"v_lshrrev_b32 {t}, 6, v0")
            e(f"v_lshlrev_b32 {t}, 6, {t}")
            e(f"s_lshl_b32 s3, s2, 8")
            e(f"v_add_u32 {t}, s3, {t}")
            e(f"v_add_u32 {t}, {WS_STAMP}, {t}")
            e(f"v_mov_b32 {self.v_tag}, {self.rt0[0]}")
            e(f"buffer_store_dword {self.v_tag}, {t}, s[36:39], 0 offen offset:60")
            e(f"v_mov_b32 {self.v_tag}, {self.rt1[0]}")
            e(f"buffer_store_dword {self.v_tag}, {t}, s[36:39], 0 offen offset:56")
            for k in range(len(self.stamp_names)):
                r = self.stamp_regs[k]
                e(f"s_sub_u32 s3, {r[0]}, {self.rt0[0] if self.stamp_names[k][0] == 'r' and c.rt else self.stamp_regs[0][0]}")
                e(f"v_mov_b32 {self.v_tag}, s3")
                e(f"buffer_store_dword {self.v_tag}, {t}, s[36:39], 0 offen offset:{4 * k}")
        if c.dbg:
            e("s_memtime s[4:5]\ns_memrealtime s[6:7]")
            e.wait_all_lg()
            e(f"""s_sub_u32 s4, s4, {self.d0[0]}
            s_sub_u32 s5, s6, {self.d1[0]}
            v_mov_b32 v2, s4
            v_mov_b32 v3, s5
            s_and_b32 s8, s2, 7
            s_lshl_b32 s8, s8, 3
            v_mov_b32 v4, s8
            s_mov_b64 exec, 1
            global_store_dwordx2 v4, v[2:3], {self.dp}""")
        e.label("Lexit")
        e("s_endpgm")
        return e.text() + "".join(self.ool) + "Lcode_end:\n"


def kernel_file(body, hdr):
    k = NAME + "_kernel"
    return f"""{hdr}; @launch grid=(256,1,1) block=(256,1,1) lds=163840
.amdgcn_target "amdgcn-amd-amdhsa--gfx950"
.text
.globl {k}
.p2align 8
.type {k},@function
{k}:
{body}.section .rodata,"a"
.p2align 6
.amdhsa_kernel {k}
  .amdhsa_next_free_vgpr 512
  .amdhsa_next_free_sgpr 102
  .amdhsa_accum_offset 256
  .amdhsa_group_segment_fixed_size 0
  .amdhsa_kernarg_size 96
  .amdhsa_user_sgpr_count 2
  .amdhsa_user_sgpr_kernarg_segment_ptr 1
  .amdhsa_system_sgpr_workgroup_id_x 1
.end_amdhsa_kernel
"""


if __name__ == "__main__":
    ap = argparse.ArgumentParser()
    ap.add_argument("-o", default="k.s")
    ap.add_argument("--stop")
    ap.add_argument("--stamps")
    ap.add_argument("--log", action="store_true")
    ap.add_argument("--set", nargs="*", default=[])
    a = ap.parse_args()
    c = Cfg()
    c.stop = a.stop
    c.stamps = a.stamps.split(",") if a.stamps else None
    for kv in a.set:
        k, v = kv.split("=")
        setattr(c, k, eval(v))
    g = Gen(c)
    body = g.build()
    hdr = "; stamps: " + " ".join(g.stamp_names) + "\n" if c.stamps else ""
    open(a.o, "w").write(kernel_file(body, hdr))
    print("instrs", g.e.n_ins, "nops", g.e.nops, "barriers", g.nbar, "vgpr hi", g.V.hi, "agpr hi", g.A.hi, "sgpr hi", g.S.hi)
    if a.log:
        print("\n".join(g.log))
```

```python
import sys, math, argparse, struct
sys.path.insert(0, "gen")
from emit import *

NAME = "adaLN_cond__sliding_local_dilated__glu_gated_bilinear__prompt"

WS_E, WS_XID, WS_FLAGS, WS_G, WS_STATS = 0x0, 0x400, 0x1000, 0x10000, 0x80000
WS_O, WS_H2, WS_HH, WS_STAMP, WS_SIZE = 0x100000, 0x100000, 0x500000, 0xC00000, 0xD00000
GQ = 0x3000
GCOPY = 4 * GQ
NCOPY = 4
F_O, F_H, F_A, F_B = 0, 1, 2, 3
L_TBL2 = 0
L_PART = 1024
L_TBL = 2048
L_K = L_TBL
HB = 80 * 272
L_H0 = L_K + 80 * 144
L_V = L_H0
L_H1 = L_H0 + HB
L_RING = L_H1 + HB
L_END = 163840
L_RED = L_TBL
SLOTS = 5
WIN = 61440


def f2u(x):
    return struct.unpack("<I", struct.pack("<f", x))[0]


class Cfg:
    mimic = True
    stamps = None
    stop = None
    force_slow = False
    hh_sc1 = True
    preread = True
    spin = 1 << 16
    dma_every = 2
    pre_chunks = 4
    nx_first = 8
    nw_first = 0
    x_rate0 = 0.06
    x_rate = 1 / 12
    pre_rate = 1 / 14
    dma_hop1 = 8
    dma_hop2 = 8
    dma_hop3 = 8
    exp_nodma = False
    exp_skip = ''
    exp_nohh = False
    exp_noh2 = False
    act_fl = ' sc1'
    code_pf = True
    touch = 1
    tlb = 0
    touchq = 0
    mall_q = True
    t3 = 7
    n_pre = 15
    n_alpha, n_beta, n_gamma = 6, 8, 6
    lead_b = 12
    pauses = ()
    q_dma, q_dma0, q_stage = 0.5, 0, 0
    g_hi = (0.27, 0.3, 0.5)
    g_mix = (0.3, 0.15, 0.5)
    g_dma = (0.34, 0.4, 0.5)
    pre_tiles = 2
    pf_first = True
    p3_16 = False
    slots16 = 2
    rot = 11
    rsh = 1
    gbit = 2
    exp_stagger = ()
    skip_idle = True
    rt = False
    psleep = 0
    p2_lead = 10
    sent = 0
    commit_late = True
    att_n = 1000
    dbg = False
    out_fl = ''
    nq_k = 1
    w_first = 24
    mallq_early = False
    np0 = 4
    n_rate = 0.12
    st_g2 = 14
    code_pf0 = True
    nx_pre = 4
    idle_pf = 0
    idle_off = 65536
    burst_a = False
    burst_b = True
    g_end = 0.4
    bg_early = 1
    bg_n = 5
    q_dma1 = 32
    uo_late = True
    hh_fast = 0
    wb_at = 0
    wb_who = 60
    h_full = True
    q_span = 2
    tq2 = 9
    q_hi, q_hi0 = 0.3, 22
    solo_reads = 0
    mall_pf = 2
    dma_p1 = 2
    dma_p3 = 3
    dma_p4 = 2
    dma_att = 0
    act_lead = 4
    dma_p2 = 0
    n_dir, n_stage = 8, 4
    stage_p1 = 0
    att_every = 20
    post_every = 0
    hi3, mix3 = 3, 3
    hi4, mix4 = 2, 2
    st_fa, st_ia, st_ca = 47, 50, 53
    st_fb, st_ib, st_cb = 74, 76, 78


class Lds:
    def __init__(self):
        self.free = []

    def add(self, a, n):
        for iv in self.free:
            assert a + n <= iv[0] or a >= iv[1], "double free"
        self.free.append([a, a + n])
        self.free.sort()
        m = []
        for iv in self.free:
            if m and m[-1][1] == iv[0]:
                m[-1][1] = iv[1]
            else:
                m.append(iv)
        self.free = m

    def alloc(self, n, span=0):
        for iv in self.free:
            a = iv[0]
            if iv[1] - a >= n:
                iv[0] += n
                if iv[0] == iv[1]:
                    self.free.remove(iv)
                return a
        return None


class Gate:
    is_open = False

    def open(self):
        self.is_open = True


class Mark:
    pass


class Skip:
    def __init__(self, n):
        self.n = n


class Unit:
    def __init__(self, name, size, dmas):
        self.name, self.size, self.dmas = name, size, dmas
        self.addr = None
        self.next = 0
        self.tok = None
        self.ready = False
        self.released = False


class Gen:
    def __init__(self, cfg):
        self.c = cfg
        self.e = Emit()
        self.V = RegAlloc("v", 256, first=1)
        self.A = RegAlloc("a", 256)
        self.S = RegAlloc("s", 102, first=44)
        self.lds = Lds()
        self.queue = []
        self.stamp_names = []
        self.nbar = 0
        self.cur_so = None
        self.dq = []
        self.log = []
        self.ool = []
        self.stq = []
        self.cur_so2 = None
        self.cur_m0 = None
        self.lname = 'L'

    def dma_prepare(self):
        while self.queue and self.queue[0].next >= len(self.queue[0].dmas):
            self.queue.pop(0)
        if not self.queue:
            return []
        u = self.queue[0]
        if u.addr is None:
            u.addr = self.lds.alloc(u.size)
            if u.addr is None:
                return []
        srd, vreg, soff, imm, loff = u.dmas[u.next]
        u.next += 1
        e = self.e
        L = []
        m0v = (str(getattr(u, "wreg", self.s_w1k)), u.addr + loff - imm)
        if m0v != self.cur_m0:
            L.append(lambda: e(f"s_add_u32 m0, {m0v[0]}, {m0v[1]}"))
            self.cur_m0 = m0v
        if callable(soff):
            soff = soff()
        if soff and soff != self.cur_so:
            for t in self.so_code(self.s_so, soff):
                L.append(lambda t=t: e(t))
            self.cur_so = soff
        so = self.s_so if soff else 0
        im = f" offset:{imm}" if imm else ""

        if (self.c.exp_nodma and getattr(self, "in_loop", False)) or u.name[0] in self.c.exp_skip:
            u.tok = u.tok or 0
            return [lambda: None]

        def ld():
            u.tok = e(f"buffer_load_dwordx4 {vreg}, {srd}, {so} offen{im} lds")
            u.pending_piece = False
        u.pending_piece = True
        L.append(ld)
        return L

    def so_code(self, d, soff):
        if not isinstance(soff, tuple):
            return [f"s_mov_b32 {d}, {soff}"]
        r, m, k = soff
        if m == "x":
            return [f"s_xor_b32 {d}, {r}, {k}"]
        if m == 1:
            return [f"s_add_u32 {d}, {r}, {k}"]
        return [f"s_mul_i32 {d}, {r}, {m}"] + ([f"s_add_u32 {d}, {d}, {k}"] if k else [])

    def stage_prepare(self):
        while self.stq and self.stq[0].next >= len(self.stq[0].dmas):
            self.stq.pop(0)
        if not self.stq:
            return []
        u = self.stq[0]
        srd, vreg, soff, imm, loff = u.dmas[u.next]
        r = self.A.alloc(4)
        u.sregs = getattr(u, "sregs", []) + [(r, loff)]
        u.next += 1
        e = self.e
        L = []
        if soff != self.cur_so2:
            L.append(lambda: e(f"s_mov_b32 {self.s_so2}, {soff}"))
            self.cur_so2 = soff
        im = f" offset:{imm}" if imm else ""
        L.append(lambda: e(f"buffer_load_dwordx4 {r}, {vreg}, {srd}, {self.s_so2} offen{im}"))
        return L

    def stage_step(self):
        self.dma_flush()
        L = self.stage_prepare()
        for f in L:
            f()
        return bool(L)

    def commit(self, units, v_w16):
        L = []
        for u in units:
            if u.addr is not None:
                continue
            assert u.next >= len(u.dmas), "commit of a unit that is not fully staged"
            u.addr = self.lds.alloc(u.size)
            if u.addr is None:
                break
            for r, loff in u.sregs:
                def w(u=u, r=r, loff=loff):
                    wi, o = divmod(u.addr + loff, WIN)
                    u.ltok = self.e(f"ds_write_b128 {v_w16[wi]}, {r} offset:{o}")
                    self.A.release(r)
                L.append(w)
            u.staged = True
        return L

    def dma_flush(self):
        while self.dq:
            self.dq.pop(0)()

    def dma_step(self):
        self.dma_flush()
        L = self.dma_prepare()
        for f in L:
            f()
        return bool(L)

    def dma_all(self, limit=10 ** 9):
        n = 0
        while n < limit and self.dma_step():
            n += 1
        return n

    def barrier(self, ready=(), release=(), lg=sys.maxsize, tag=""):
        e = self.e
        ready = [u for u in ready if not u.ready]
        late = 0
        for u in ready:
            if getattr(u, "staged", False):
                u.ready = True
                lg = max(lg or 0, u.ltok)
        ready = [u for u in ready if not u.ready]
        for u in ready:
            if getattr(u, "pending_piece", False):
                self.dma_flush()
            while u.next < len(u.dmas):
                assert self.dma_step(), f"LDS ring deadlock at unit {u.name}"
                late += 1
        self.stamp(f"b{self.nbar}a")
        if ready:
            tk = max(u.tok for u in ready)
            self.log.append(f"bar {self.nbar} {tag}: ready {ready[0].name}..{ready[-1].name} late={late} younger_vm={e.vm_issued - tk} ins={e.n_ins}")
            e.wait(vm=tk)
        self.stamp(f"b{self.nbar}v")
        if lg is not None:
            e.wait(lg=min(lg, e.lg_issued))
        e("s_barrier")
        self.stamp(f"b{self.nbar}e")
        self.nbar += 1
        for u in ready:
            u.ready = True
        for u in release:
            if not u.released:
                u.released = True
                self.lds.add(u.addr, u.size)

    def stamp(self, name):
        if self.c.stamps and (name in self.c.stamps or self.c.stamps == "all" and len(self.stamp_names) < 15 or name in ("t0", "end")):
            r = self.stamp_regs[len(self.stamp_names)]
            self.e(f"s_memtime {r}")
            self.stamp_names.append(name)
            if self.c.rt and name not in ("t0", "end"):
                self.e(f"s_memrealtime {self.stamp_regs[len(self.stamp_names)]}")
                self.stamp_names.append("r" + name)

    def interleave(self, main, fill, ratio):
        acc = 0.0
        fill = list(fill)
        for m in main:
            m() if callable(m) else self.e(m)
            acc += ratio
            while acc >= 1.0 and fill:
                f = fill.pop(0)
                f() if callable(f) else self.e(f)
                acc -= 1.0
        return fill

    def bg_on(self, every, limit, stage=True, nmax=1000):
        e = self.e
        st = dict(n=0, busy=False)

        def hook():
            if st["busy"] or e.in_cond or e.hist[-1].op.startswith(("s_cmp", "s_cbranch")):
                return
            st["n"] += 1
            if st["n"] >= every and st.get("c", 0) < nmax:
                st["c"] = st.get("c", 0) + 1
                st["n"] = 0
                st["busy"] = True
                lim = limit[0]
                if not (lim.next < len(lim.dmas) and self.dma_step()) and stage:
                    self.stage_step()
                st["busy"] = False
        e.hook = hook if every else None

    def bg_off(self):
        self.e.hook = None

    def exp_delay(self, where):
        n = dict(self.c.exp_stagger).get(where, 0)
        if n:
            e = self.e
            L = e.newlabel("Lst")
            e("s_bitcmp1_b32 s2, 7")
            e(f"s_cbranch_scc0 {L}")
            for _ in range(n):
                e("s_sleep 8")
            e.label(L)

    def bf16r(self, d, s):
        return [f"v_cvt_pk_bf16_f32 {d}, {s}, {s}", f"v_and_b32 {d}, 0xffff0000, {d}"]

    def poll(self, loads, checks, pre=None):
        e = self.e
        self.dma_flush()
        L = e.newlabel("Lpoll")
        e(f"s_mov_b32 {self.s_spin}, 0")
        if self.c.psleep:
            L2 = e.newlabel("Lfirst")
            e(f"s_branch {L2}")
        e.label(L)
        if self.c.psleep:
            e(f"s_sleep {self.c.psleep}")
            e.label(L2)
        e(f"s_add_u32 {self.s_spin}, {self.s_spin}, 1")
        e(f"s_cmp_gt_u32 {self.s_spin}, {self.c.spin}")
        e("s_cbranch_scc1 Lexit")
        for t in loads:
            e(t)
        e.force_vm0()
        for t in pre or []:
            e(t)
        if not checks:
            pass
        elif len(checks) == 1:
            e(f"v_cmp_ne_u32 vcc, {self.s_tag}, {checks[0]}")
        else:
            t = self.v_tmp
            e(f"v_xor_b32 {t}, {checks[0]}, {self.v_tag}")
            rest = list(checks[1:])
            for r in rest:
                e(f"v_xor_b32 {r}, {r}, {self.v_tag}")
            while len(rest) >= 2:
                e(f"v_or3_b32 {t}, {t}, {rest.pop()}, {rest.pop()}")
            if rest:
                e(f"v_or_b32 {t}, {t}, {rest.pop()}")
            e(f"v_cmp_ne_u32 vcc, 0, {t}")
        e(f"s_cbranch_vccnz {L}")

    def store2(self, fmt_list):
        e = self.e
        Ls, Lj = e.newlabel("Lslow"), e.newlabel("Ljoin")
        e(f"s_cmp_eq_u32 {self.s_mode}, 0")
        e(f"s_cbranch_scc1 {Ls}")
        save = (e.vm_issued, e.vm_done, list(e.hist))
        n0 = len(e.out)
        tok = None
        for t in fmt_list:
            tok = e(t.format(f="")) or tok
        for o in e.out[n0:]:
            assert o.op != "s_waitcnt", "operand of mode-dependent store not ready"
        e(f"s_branch {Lj}")
        e.label(Ls)
        e.vm_issued, e.vm_done, e.hist = save
        for t in fmt_list:
            e(t.format(f=" sc1"))
        e.label(Lj)
        return tok

    def flag_store(self, vaddr, off):
        e = self.e
        e("s_mov_b64 exec, 1")
        self.store2([f"buffer_store_dword {self.v_tag}, {vaddr}, s[36:39], 0 offen offset:{off}" + "{f}"])
        e("s_mov_b64 exec, -1")

    def loop_prologue(self, steps, PD=2):
        for i in range(min(PD, len(steps))):
            self._bar_for(steps, i, -1)
            steps[i]["tok"] = [self.e(r) for r in steps[i]["reads"]()][-1]

    def _bar_for(self, steps, i, cur):
        st = steps[i]
        need = [u for u in st["units"] if not u.ready]
        if st.get("bar") or need:
            if st.get("prebar"):
                st["prebar"]()
            k = i
            ready = []
            for k in range(i, min(i + st.get("span", 1), len(steps))):
                ready += [u for u in steps[k]["units"] if u not in ready]
            live = {id(u) for s2 in steps[cur + 1:] for u in s2["units"]}
            dead = [u for s2 in steps[:cur + 1] for u in s2["units"] if id(u) not in live] + st.get("release", [])
            self.barrier(ready=ready, release=dead, lg=st["lg"]() if st.get("lg") else None, tag=f"step{i}")
            if st.get("postbar"):
                st["postbar"]()

    def mfma_loop(self, steps, fill, rates, PD=2, rng=None, hi=None):
        e = self.e
        cnt = 0
        self.in_loop = True
        a, b = rng or (0, len(steps))
        hi = hi if hi is not None else []
        cred = [0.0, 0.0, 0.0]
        for i in range(a, b):
            st = steps[i]
            nxt = steps[i + PD] if i + PD < len(steps) else None
            rq = []
            nm = len(st["mfmas"])
            self.stamp(f"{getattr(self, 'lname', 'L')}{i}")
            for j, mf in enumerate(st["mfmas"]):
                if j == 0:
                    e.wait(lg=st["tok"])
                    for f in st.get("pre", []):
                        f()
                e(mf)
                cnt += 1
                n0 = e.n_ins
                if j == 0 and nxt:
                    self._bar_for(steps, i + PD, i)
                    rq = list(nxt["reads"]())
                while fill and (isinstance(fill[0], Mark) or (isinstance(fill[0], Gate) and fill[0].is_open)):
                    fill.pop(0)
                if fill and getattr(fill[0], "solo", False) and j < nm - 1 and e.n_ins == n0:
                    fill.pop(0)()
                    for _ in range(min(self.c.solo_reads, len(rq))):
                        nxt["tok"] = e(rq.pop(0))
                    continue
                k = math.ceil(len(rq) / (nm - j))
                for _ in range(k):
                    tk = e(rq.pop(0))
                    nxt["tok"] = tk
                budget = st.get("slots", SLOTS) - ((1 + (steps[i + 1].get("resv", 0) if i + 1 < len(steps) else 0)) if j == nm - 1 else 0)
                while hi and isinstance(hi[0], Gate) and hi[0].is_open:
                    hi.pop(0)
                hi_ok = bool(hi) and not isinstance(hi[0], Gate)
                hr, dr, sr = [x * st.get("rscale", 1.0) for x in rates(i, hi_ok)]
                cred[0] = min(cred[0] + hr, 1.9) if hi_ok else 0.0
                cred[1] = min(cred[1] + dr, 1.9)
                cred[2] = min(cred[2] + sr, 1.9)
                if hi_ok and cred[0] >= 0.999 and (e.n_ins - n0 < budget or cred[0] >= 1.5):
                    cred[0] -= 1.0
                    hi.pop(0)()
                elif not self.dq:
                    if cred[1] >= 0.999:
                        self.dq = self.dma_prepare()
                        if self.dq:
                            cred[1] -= 1.0
                    if not self.dq and cred[2] >= 0.999:
                        self.dq = self.stage_prepare()
                        if self.dq:
                            cred[2] -= 1.0
                while e.n_ins - n0 < budget and self.dq:
                    self.dq.pop(0)()
                while e.n_ins - n0 < budget and fill:
                    if isinstance(fill[0], Gate):
                        if not fill[0].is_open:
                            break
                        fill.pop(0)
                        continue
                    if isinstance(fill[0], Mark):
                        fill.pop(0)
                        continue
                    if isinstance(fill[0], Skip):
                        fill[0].n -= 1
                        if fill[0].n <= 0:
                            fill.pop(0)
                        break
                    if getattr(fill[0], "solo", False):
                        break
                    f = fill.pop(0)
                    f() if callable(f) else e(f)
        self.dma_flush()

    def verify(self, frags, vaddr):
        e = self.e
        tm, t2 = self.v_tmp, self.v_tmp2

        def chk():
            L = []
            src = []
            for k, (r, o) in enumerate(frags):
                if r.kind == "a":
                    d = (tm, t2)[k]
                    L.append(f"v_accvgpr_read_b32 {d}, {r[0]}")
                    src.append(d)
                else:
                    src.append(r[0])
            if len(src) == 2:
                L.append(f"v_max_u32 {tm}, {src[0]}, {src[1]}")
                src = [tm]
            L.append(f"v_cmp_eq_u32 vcc, -1, {src[0]}")
            return L
        Ls, Lb = e.newlabel("Lretry"), e.newlabel("Lback")
        for t in chk():
            e(t)
        e(f"s_cbranch_vccnz {Ls}")
        e.label(Lb)
        ld = "".join(f"    s_mov_b32 {self.s_rt}, {o}\n    buffer_load_dwordx4 {r}, {vaddr}, s[36:39], {self.s_rt} offen sc1\n" for r, o in frags)
        ck = "".join(f"    {t}\n" for t in chk())
        self.ool.append(f"""{Ls}:
    s_mov_b32 {self.s_spin}, 0
{Ls}_1:
    s_add_u32 {self.s_spin}, {self.s_spin}, 1
    s_cmp_gt_u32 {self.s_spin}, {self.c.spin}
    s_cbranch_scc1 Lexit
{ld}    s_waitcnt vmcnt(0)
{ck}    s_cbranch_vccnz {Ls}_1
    s_branch {Lb}
""")

    def opt_check(self, vaddr, off, reg):
        e = self.e
        box = {}

        def issue():
            box["tok"] = e(f"buffer_load_dword {reg}, {vaddr}, s[36:39], 0 offen offset:{off} sc1")

        def check():
            Ls, Lb = e.newlabel("Lretry"), e.newlabel("Lback")
            e(f"v_cmp_ne_u32 vcc, {self.s_tag}, {reg}")
            e(f"s_cbranch_vccnz {Ls}")
            e.label(Lb)
            self.ool.append(f"""{Ls}:
    s_mov_b32 {self.s_spin}, 0
{Ls}_1:
    s_add_u32 {self.s_spin}, {self.s_spin}, 1
    s_cmp_gt_u32 {self.s_spin}, {self.c.spin}
    s_cbranch_scc1 Lexit
    buffer_load_dword {reg}, {vaddr}, s[36:39], 0 offen offset:{off} sc1
    s_waitcnt vmcnt(0)
    v_cmp_ne_u32 vcc, {self.s_tag}, {reg}
    s_cbranch_vccnz {Ls}_1
    s_branch {Lb}
""")
        return issue, check

    def drain_to(self, fill, mark):
        if mark is not None and mark not in fill:
            return
        while fill:
            f = fill.pop(0)
            if f is mark:
                return
            if isinstance(f, Gate):
                assert f.is_open
            elif not isinstance(f, (Mark, Skip)):
                f() if callable(f) else self.e(f)

    def finish_stats(self, sm, sq, rho, nmr, n):
        L = [f"v_mul_f32 {sm}, 0x{f2u(1.0 / n):08x}, {sm}",
             f"v_mul_f32 {sq}, 0x{f2u(1.0 / n):08x}, {sq}",
             f"v_fma_f32 {sq}, -{sm}, {sm}, {sq}",
             f"v_max_f32 {sq}, 0, {sq}"]
        if self.c.mimic:
            L += self.bf16r(sq, sq)
            L += [f"v_add_f32 {sq}, 0x{f2u(1e-5):08x}, {sq}"]
            L += self.bf16r(sq, sq)
            L += [f"v_sqrt_f32 {sq}, {sq}"]
            L += self.bf16r(sm, sm)
            L += self.bf16r(sq, sq)
            L += [f"v_rcp_f32 {rho}, {sq}"]
        else:
            L += [f"v_add_f32 {sq}, 0x{f2u(1e-5):08x}, {sq}", f"v_rsq_f32 {rho}, {sq}"]
        L += [f"v_mul_f32_e64 {nmr}, -{sm}, {rho}"]
        return L

    def build(self):
        c, e, V, A, S = self.c, self.e, self.V, self.A, self.S
        global L_TBL, L_K, L_H0, L_V, L_H1, L_RING, L_RED
        if c.h_full:
            L_H0 = 2048
            L_H1 = L_H0 + HB
            L_V = L_H0 + 2 * HB
            L_K = L_V - 80 * 144
            L_TBL = L_H0 + 4 * HB
            L_RING = L_TBL + 4096
            L_RED = L_K
            LH = [L_H0 + k * HB for k in range(4)]
        else:
            LH = [L_H0, L_H1, L_H0, L_H1]
        X, WQ, WO, WG, WU, WD, WM, OUT, WS, CC = [f"s[{4 + 4 * i}:{7 + 4 * i}]" for i in range(10)]
        e("s_cmp_ge_u32 s2, 256")
        e("s_cbranch_scc1 Lexit")
        if c.stamps:
            self.stamp_regs = [S.alloc(2) for _ in range(min(14, len(c.stamps) * (2 if c.rt else 1) + 2))]
            self.rt0, self.rt1 = S.alloc(2), S.alloc(2)
            e(f's_memrealtime {self.rt0}')
        self.stamp("t0")
        if c.dbg:
            self.d0, self.d1, self.dp = S.alloc(2), S.alloc(2), S.alloc(2)
            e(f"s_memtime {self.d0}\ns_memrealtime {self.d1}\ns_load_dwordx2 {self.dp}, s[0:1], 80")
        srds = {0: (0, 2048 * 1024), 6: (64, 512 * 6144), 9: (56, 1024), 8: (88, WS_SIZE), 1: (8, 512 * 3072), 2: (16, 512 * 1024),
                3: (32, 512 * 3584), 4: (40, 512 * 3584), 5: (48, 1792 * 1024), 7: (72, 2048 * 1024)}

        def srd_ptr(i):
            e(f"s_load_dwordx2 s[{4 + 4 * i}:{5 + 4 * i}], s[0:1], {srds[i][0]}")

        def srd_words(i):
            e(f"s_mov_b32 s{6 + 4 * i}, {srds[i][1]}")
            e(f"s_mov_b32 s{7 + 4 * i}, 0x20000")
        for i in (0, 6, 9, 8):
            srd_ptr(i)
        sa = lambda: S.alloc(1)
        s_w, s_tb, s_kh, s_g, s_m, s_hg, s_TB = [sa() for _ in range(7)]
        self.s_w1k, self.s_so, self.s_spin, self.s_tag, self.s_mode, self.s_so2 = [sa() for _ in range(6)]
        s_w1k, s_tag = self.s_w1k, self.s_tag
        t0, t1, t2, t3 = [sa() for _ in range(4)]
        s_idx, s_col0, s_flb, s_tile, s_hh = sa(), sa(), sa(), sa(), sa()
        v_l, v_t, v_hh = V.alloc(), V.alloc(), V.alloc()
        self.v_tmp, self.v_tmp2 = V.alloc(), V.alloc()
        self.s_rt = Reg('s', 3, 1)
        self.v_tag = V.alloc()
        u0, u1, u2, u3 = [V.alloc() for _ in range(4)]
        v_dq, v_dw, v_dd, v_dA = [V.alloc() for _ in range(4)]
        v_fl, v_l16, v_trn = V.alloc(), V.alloc(), V.alloc()
        a_dummy = A.alloc_top(4)
        a_ones = A.alloc_top(4)
        hinit = {}
        v_c, v_wm, v_x = V.alloc(), V.alloc(), V.alloc()
        e(f"""s_and_b32 {t3}, s2, 7
        s_lshr_b32 {s_idx}, s2, 3
        s_lshr_b32 {t0}, {s_idx}, 3
        s_lshl_b32 {t0}, {t0}, 6
        s_lshl_b32 {t1}, {t3}, 8
        s_add_u32 {t0}, {t0}, {t1}
        s_sub_u32 {t0}, {t0}, 16
        v_lshrrev_b32 {u2}, 6, v0
        v_mul_u32_u24 {u0}, 20, {u2}
        v_bfe_u32 {u1}, v0, 4, 2
        v_add3_u32 {u0}, {u0}, {u1}, {t0}
        v_and_b32 {u1}, 15, v0
        v_lshlrev_b32 {u0}, 10, {u0}
        v_lshl_add_u32 {v_x}, {u1}, 4, {u0}""")
        srd_words(0)
        s_rx = [sa() for _ in range(4)]
        pre2 = f"""s_min_u32 {t0}, {s_idx}, 23
        s_lshr_b32 {t1}, {t0}, 2
        s_lshl_b32 {t1}, {t1}, 3
        s_add_u32 {s_col0}, {t1}, {t3}
        s_and_b32 {t0}, {t0}, 3
        s_lshl_b32 {t0}, {t0}, 7
        v_lshrrev_b32 {u0}, 3, v0
        v_add_u32 {u0}, {t0}, {u0}
        v_lshlrev_b32 {v_c}, 1, {u0}
        v_mul_u32_u24 {v_wm}, 6144, {u0}
        v_and_b32 {u1}, 7, v0
        v_lshlrev_b32 {u1}, 4, {u1}
        s_lshl_b32 {t0}, {s_col0}, 7
        v_add3_u32 {v_wm}, {v_wm}, {u1}, {t0}"""
        pre3 = f"""v_readfirstlane_b32 {s_w}, {u2}
        v_and_b32 {v_l}, 63, v0
        v_and_b32 {v_t}, 31, v0
        v_lshrrev_b32 {v_hh}, 5, {v_l}
        s_lshr_b32 {t0}, {s_idx}, 4
        s_lshl_b32 {s_g}, {t3}, 1
        s_add_u32 {s_g}, {s_g}, {t0}
        s_and_b32 {s_m}, {s_idx}, 15
        s_and_b32 {s_hg}, {s_m}, 7
        s_and_b32 {s_tb}, {s_w}, 1
        s_lshr_b32 {s_kh}, {s_w}, 1
        s_lshl_b32 {s_w1k}, {s_w}, 10
        s_lshl_b32 {s_TB}, {s_g}, 2
        s_lshr_b32 {t0}, {s_m}, 3
        s_lshl_b32 {t0}, {t0}, 1
        s_add_u32 {s_TB}, {s_TB}, {t0}
        s_add_u32 {s_TB}, {s_TB}, {s_tb}"""
        cv = V.alloc(4)
        wmv = V.alloc(16)
        XN = [[None] * 4 for _ in range(5)]
        xn_all = V.alloc_top(184)
        for i in range(5):
            for ch in range(4):
                XN[i][ch] = xn_all.sub((((ch + 3) % 4) * 5 + i) * 8, 8)
        def lines(srd, n, base_code, stride=128):
            return base_code + [f"v_mul_u32_u24 {u0}, {stride}, {v_l}", f"v_cmp_le_u32 vcc, {n}, {v_l}", f"v_add_u32 {u0}, {t0}, {u0}",
                                f"v_cndmask_b32 {u0}, {u0}, -1, vcc",
                                lambda: e(f"buffer_load_dword {a_dummy[0]}, {u0}, {srd}, 0 offen", track=False)]

        def mall(srd, n):
            return lines(srd, n, [f"s_lshl_b32 {t0}, s2, 2", f"s_add_u32 {t0}, {t0}, {s_w}", f"s_mul_i32 {t0}, {t0}, {n * 128}"])

        def touch3(srd, rows, pitch):
            return lines(srd, rows, [f"s_lshl_b32 {t0}, {s_idx}, 2", f"s_add_u32 {t0}, {t0}, {s_w}", f"s_mul_i32 {t0}, {t0}, {rows * pitch}",
                                     f"s_add_u32 {t0}, {t0}, 384"], stride=pitch)

        def run(L):
            for t in L:
                t() if callable(t) else e(t)
        xld = []
        for i in range(5):
            for ch in range(4):
                t = f"buffer_load_dwordx4 {XN[i][ch].sub(4, 4)}, {v_x}, {X}, 0 offen offset:{256 * ch}"
                if ch == 3 and i < 4:
                    t += f"\nv_add_u32 {v_x}, 4096, {v_x}"
                xld.append(t)
        e.wait_all_lg()
        self.stamp("ka")
        self.exp_delay("start")
        if c.touch:
            srd_words(6)
            e(f"""v_and_b32 {u1}, 63, v0
            v_mul_u32_u24 {u0}, 20, {u2}
            v_add3_u32 {u0}, {u0}, {u1}, {t0}
            v_lshlrev_b32 {u0}, 10, {u0}
            s_and_b32 {t1}, {s_idx}, 7
            s_lshl_b32 {t1}, {t1}, 7
            v_cmp_lt_u32 vcc, 19, {u1}
            v_add_u32 {u0}, {t1}, {u0}
            s_min_u32 {t0}, {s_idx}, 23
            v_cndmask_b32 {u0}, {u0}, -1, vcc""")
            e(f"buffer_load_dword {a_dummy[0]}, {u0}, {X}, 0 offen", track=False)
        if c.code_pf0:
            e(f"""s_getpc_b64 vcc
            v_and_b32 {u1}, 63, v0
            v_lshlrev_b32 {u1}, 6, {u1}""")
            e(f"global_load_dword {a_dummy[0]}, {u1}, vcc", track=False)
        for t in xld[:c.nx_pre]:
            e(t)
        xld2 = xld[c.nx_pre:c.nx_first]
        xld = xld[c.nx_first:]
        srd_words(6); srd_words(9)
        e(pre2)
        for i in range(4):
            e(f"buffer_load_ushort {cv[i]}, {v_c}, {CC}, 0 offen offset:{64 * i}")
        wld = [(f"s_mov_b32 {self.s_so}, {i * 32 * 6144}\n" if i else "") +
               f"buffer_load_dwordx4 {wmv.sub(4 * i, 4)}, {v_wm}, {WM}, {self.s_so if i else 0} offen" for i in range(4)]
        if c.w_first:
            e(f"""s_cmp_ge_u32 {s_idx}, {c.w_first}
            s_cselect_b32 s30, 0, s30""")
            run(wld)
        self.stamp("wis")
        e(f"s_load_dword {s_tag}, s[36:37], {WS_E}")
        for i in (1, 2, 3, 4, 5, 7):
            srd_ptr(i)
        for i in (8, 1, 2, 3, 4, 5, 7):
            srd_words(i)
        e(pre3)
        if c.tlb:
            e(f"v_lshlrev_b32 {u0}, 21, {v_l}")
            for srd in (WQ, WS, WO, WG, WU, WD, OUT):
                e(f"buffer_load_dword {a_dummy[0]}, {u0}, {srd}, 0 offen offset:2048", track=False)
        s_st = sa()
        e(f"""s_lshl_b32 {t0}, {s_TB}, 12
        s_lshr_b32 {t1}, {s_hg}, 1
        s_lshl_b32 {t1}, {t1}, 10
        s_add_u32 {t0}, {t0}, {t1}
        s_and_b32 {t1}, {s_hg}, 1
        s_lshl_b32 {t1}, {t1}, 3
        s_add_u32 {t0}, {t0}, {t1}
        s_lshl_b32 {t1}, {s_kh}, 2
        s_add_u32 {t0}, {t0}, {t1}
        s_add_u32 {s_st}, {t0}, {WS_STATS}
        v_lshlrev_b32 {v_l16}, 4, {v_l}
        v_mov_b32 {u3}, -1""")
        for k in range(4):
            e(f"v_accvgpr_write_b32 {a_ones[k]}, -1")
        tok_init = e(f"buffer_store_dword {u3}, {v_l16}, {WS}, {s_st} offen sc1")
        late_ops = []
        if c.code_pf:
            pc = 's[0:1]'
            e(f"""s_getpc_b64 {pc}
            s_lshl_b32 {t0}, {s_idx}, 2
            s_add_u32 {t0}, {t0}, {s_w}
            s_mul_i32 {t0}, {t0}, 320
            v_mul_u32_u24 {u0}, 5, {v_l}
            v_add_u32 {u0}, {t0}, {u0}
            v_and_b32 {u0}, -4, {u0}
            v_min_u32 {u0}, Lcode_end-Lcode_pf-4, {u0}""")
            e.label("Lcode_pf")
            e(f"global_load_dword {a_dummy[0]}, {u0}, {pc}", track=False)
        if c.mall_q:
            if c.mallq_early:
                run(mall(WQ, 12))
            else:
                late_ops += mall(WQ, 12)
        self.lds.add(L_RING, L_END - L_RING)
        UQ = [Unit(f"q{u}", 12288, [(WQ, v_dq, (str(s_rx[u & 3]), 6, (u // 4) * 393216), mt * 1024, mt * 1024) for mt in range(3)]) for u in range(16)]
        s_w3k = sa()
        for u in UQ:
            u.wreg = s_w3k
        UO = [Unit(f"o{s}", 4096, [(WO, v_dw, (str(s_rx[s & 3]), 1, (s // 4) * 65536), 0, 0)]) for s in range(16)]
        v_dA2 = V.alloc()
        vA = lambda u: v_dA2 if (u >> c.gbit) & 1 else v_dA
        uo = lambda u: (u & ~(1 << c.gbit)) * 32 * 3584
        UA = [Unit(f"a{u}", 8192 + 64, [(WG, vA(u), uo(u), 0, 0), (WU, vA(u), uo(u), 0, 4096 + 32)]) for u in range(16)]
        UB = [Unit(f"b{u}", 8192 + 64, [(WG, vA(u), uo(u), 128, 0), (WU, vA(u), uo(u), 128, 4096 + 32)]) for u in range(16)]
        fbA = [8 * mm + cb for mm in range(7) for cb in range(4)]
        fbB = [8 * mm + 4 + cb for mm in range(7) for cb in range(4)]
        fbs = fbA + fbB
        UD = [Unit(f"d{k}", 4096, [(WD, v_dd, (str(s_rx[0 if fb < 48 else 1]), "x", fb * 16384), 0, 0)]) for k, fb in enumerate(fbs)]
        UG = UA + UB
        staged = UG[c.n_dir:c.n_dir + c.n_stage]
        self.stq = list(staged)
        self.queue = UQ + UO + UG[:c.n_dir] + UG[c.n_dir + c.n_stage:] + UD
        v_r8, v_b64 = V.alloc(), V.alloc()
        addr_code = f"""v_lshlrev_b32 {v_r8}, 2, {v_hh}
        v_bfe_u32 {u0}, {v_l}, 2, 2
        v_add_u32 {v_r8}, {v_r8}, {u0}
        v_bfe_u32 {u0}, {v_l}, 4, 1
        v_lshlrev_b32 {u0}, 6, {u0}
        v_and_b32 {u1}, 3, {v_l}
        v_lshlrev_b32 {u1}, 4, {u1}
        v_add_u32 {v_b64}, {u0}, {u1}
        s_lshl_b32 {t0}, {s_w}, 3
        v_add_u32 {u0}, {t0}, {v_r8}
        v_mul_u32_u24 {u1}, 3072, {u0}
        s_lshl_b32 {t2}, {s_hg}, 7
        v_add3_u32 {v_dq}, {u1}, {v_b64}, {t2}
        v_mul_u32_u24 {v_dA}, 3584, {u0}
        s_lshl_b32 {t0}, {s_kh}, 8
        s_lshl_b32 {t1}, {s_tb}, 3
        s_add_u32 {t0}, {t0}, {t1}
        v_add_u32 {u0}, {t0}, {v_r8}
        v_lshlrev_b32 {u0}, 10, {u0}
        v_add3_u32 {v_dw}, {u0}, {v_b64}, {t2}
        s_mul_i32 {t0}, {s_kh}, {56 * 16}
        s_add_u32 {t0}, {t0}, {t1}
        v_add_u32 {u0}, {t0}, {v_r8}
        v_lshlrev_b32 {u0}, 10, {u0}
        v_add3_u32 {v_dd}, {u0}, {v_b64}, {t2}
        s_lshl_b32 {t3}, {s_m}, 8
        v_lshlrev_b32 {u0}, 5, {v_hh}
        v_xor_b32 {u0}, {u0}, {v_b64}
        v_add3_u32 {v_dA}, {v_dA}, {u0 if c.p3_16 else v_b64}, {t3}
        s_lshr_b32 {t3}, {s_idx}, 4
        s_mul_i32 {t3}, {t3}, {(32 * 3584 << c.gbit) if c.rot & 2 else 0}
        s_sub_u32 {t2}, {32 * 3584 << c.gbit}, {t3}
        v_add_u32 {v_dA2}, {t2}, {v_dA}
        v_add_u32 {v_dA}, {t3}, {v_dA}"""
        addr_code += f"""
        s_mul_i32 {s_w3k}, {s_w}, 3072
        v_and_b32 {u0}, 3, {v_l}
        v_lshlrev_b32 {u0}, 3, {u0}
        v_bfe_u32 {u1}, {v_l}, 2, 2
        v_lshlrev_b32 {u1}, 6, {u1}
        v_add_u32 {u0}, {u0}, {u1}
        v_bfe_u32 {u1}, {v_l}, 4, 1
        v_lshlrev_b32 {u1}, 5, {u1}
        v_add_u32 {v_trn}, {u0}, {u1}
        s_lshl_b32 {t0}, {s_g}, 11
        s_and_b32 {t1}, {s_TB}, 3
        s_lshl_b32 {t1}, {t1}, 7
        s_add_u32 {t0}, {t0}, {t1}
        s_add_u32 {s_flb}, {t0}, {WS_FLAGS}
        s_lshl_b32 {t1}, {s_hg}, 3
        s_lshl_b32 {t2}, {s_kh}, 2
        s_add_u32 {t1}, {t1}, {t2}
        s_add_u32 {t1}, {t1}, {s_flb}
        v_mov_b32 {v_fl}, {t1}"""
        al = [l.strip() for l in addr_code.split("\n")]
        run(al)
        if c.rot & 1:
            e(f"s_lshr_b32 {s_rx[0]}, {s_idx}, 3\ns_lshl_b32 {s_rx[0]}, {s_rx[0]}, 14")
        else:
            e(f"s_mov_b32 {s_rx[0]}, 0")
        for k in range(1, 4):
            e(f"s_xor_b32 {s_rx[k]}, {s_rx[0]}, {16384 * k}")
        parked = {}

        def park(name, reg):
            parked[name] = A.alloc(1)
            e(f"v_accvgpr_write_b32 {parked[name]}, {reg}")

        def unpark(name, reg, keep=False):
            t = f"v_accvgpr_read_b32 {reg}, {parked[name]}"
            return t

        def addr_of(L, name):
            run(L[:-1])
            park(name, u0)
        addr_of(mall(WO, 4), "m4"); addr_of(mall(WG, 14), "m14"); addr_of(touch3(WQ, 12, 1024), "t3q")
        w0, w1 = v_r8, v_b64
        e(f"""s_lshl_b32 {t0}, {s_tb}, 5
        s_add_u32 {t0}, {t0}, 16
        v_add_u32 {u1}, {t0}, {v_t}
        v_mul_u32_u24 {u1}, 272, {u1}
        v_lshlrev_b32 {u0}, 4, {v_hh}
        v_add_u32 {w0}, {u0}, {u1}
        v_and_b32 {u1}, 15, {v_l}
        v_mul_u32_u24 {u2}, 272, {u1}
        v_add_u32 {w1}, {u0}, {u2}""")
        park("hm", w0); park("hhalo", w1)
        e(f"""v_lshlrev_b32 {w0}, 5, {u1}
        v_lshrrev_b32 {u2}, 4, {v_l}
        s_mul_i32 {t0}, {s_w}, 20
        v_add_u32 {u2}, {t0}, {u2}
        v_mul_u32_u24 {u2}, 272, {u2}
        s_lshr_b32 {t0}, {s_rx[0]}, 12
        v_xor_b32 {u3}, {t0}, {u1}
        v_lshl_add_u32 {w1}, {u3}, 4, {u2}""")
        park("cst", w0); park("hw", w1)
        e(f"""v_mul_u32_u24 {u0}, 3072, {v_hh}
        s_lshl_b32 {t0}, {s_kh}, 8
        v_add3_u32 {w0}, {v_trn}, {u0}, {t0}
        s_and_b32 {t0}, s2, {NCOPY - 1}
        s_mul_i32 {t0}, {t0}, {GCOPY}
        s_add_u32 {t0}, {t0}, {WS_G}
        v_lshl_add_u32 {w1}, v0, 4, {t0}""")
        park("wq", w0); park("g1", w1)

        def deferred(f0, f1, f2, f3, f4):
            def pk(name, reg):
                parked[name] = A.alloc(1)
                return f"v_accvgpr_write_b32 {parked[name]}, {reg}"

            def t3(name, rows):
                return f"""s_lshl_b32 {t0}, {s_idx}, 2
                s_add_u32 {t0}, {t0}, {s_w}
                s_mul_i32 {t0}, {t0}, {rows * 1024}
                s_add_u32 {t0}, {t0}, 384
                v_lshl_add_u32 {f0}, {v_l}, 10, {t0}
                v_sub_u32 {f1}, {rows - 1}, {v_l}
                v_and_b32 {f1}, 0x80000000, {f1}
                v_or_b32 {f0}, {f0}, {f1}
                {pk(name, f0)}"""
            T = f"""s_and_b32 {t0}, s2, {NCOPY - 1}
            s_mul_i32 {t0}, {t0}, {GCOPY}
            s_lshl_b32 {t2}, {s_w}, 11
            s_lshl_b32 {t1}, {s_hg}, 8
            s_add_u32 {t1}, {t1}, {t0}
            s_add_u32 {t1}, {t1}, {t2}
            s_add_u32 {t1}, {t1}, {WS_G + 4096}
            v_and_b32 {f4}, 15, {v_l}
            v_lshl_add_u32 {f0}, {f4}, 4, {t1}
            {pk("g2", f0)}
            s_lshl_b32 {t0}, {s_g}, 6
            v_lshl_add_u32 {f0}, {f4}, 2, {t0}
            {pk("gx", f0)}
            {t3("t3o", 4)}
            {t3("t3d", 14)}
            s_sub_u32 {t1}, {s_TB}, {s_tb}
            s_lshl_b32 {t1}, {t1}, 5
            s_lshl_b32 {t2}, {s_w}, 4
            s_add_u32 {t1}, {t1}, {t2}
            v_lshrrev_b32 {f0}, 3, {v_l}
            v_add_u32 {f1}, {t1}, {f0}
            v_lshlrev_b32 {f1}, 10, {f1}
            v_and_b32 {f2}, 7, {v_l}
            v_lshlrev_b32 {f2}, 4, {f2}
            s_lshl_b32 {t1}, {s_hg}, 7
            v_add3_u32 {f1}, {f1}, {f2}, {t1}
            v_add_u32 {f0}, {t2}, {f0}
            v_mul_u32_u24 {f0}, 144, {f0}
            v_add_u32 {f0}, {f0}, {f2}
            {pk("xl", f1)}
            {pk("xw", f0)}
            s_lshl_b32 {t0}, {s_TB}, 5
            s_lshl_b32 {t1}, {s_hg}, 2
            s_add_u32 {t0}, {t0}, {t1}
            s_lshl_b32 {t1}, {s_kh}, 1
            s_add_u32 {t0}, {t0}, {t1}
            s_lshl_b32 {t0}, {t0}, 10
            s_add_u32 {s_tile}, {t0}, {WS_O}
            v_lshlrev_b32 {f0}, 10, {v_hh}
            v_lshlrev_b32 {f1}, 4, {v_t}
            v_add3_u32 {v_o}, {f0}, {f1}, {s_tile}
            s_lshl_b32 {t0}, {s_g}, 11
            s_add_u32 {t0}, {t0}, {WS_FLAGS}
            s_lshl_b32 {t1}, {s_w}, 9
            s_add_u32 {t0}, {t0}, {t1}
            v_lshl_add_u32 {f0}, {v_l}, 3, {t0}
            {pk("fpre", f0)}
            s_lshl_b32 {t0}, {s_TB}, 5
            v_add_u32 {f0}, {t0}, {v_t}
            v_lshlrev_b32 {f0}, 10, {f0}
            s_lshl_b32 {t0}, {s_hg}, 7
            s_lshl_b32 {t1}, {s_kh}, 6
            s_add_u32 {t0}, {t0}, {t1}
            v_lshlrev_b32 {f1}, 4, {v_hh}
            v_add3_u32 {f0}, {f0}, {f1}, {t0}
            {pk("xres", f0)}
            s_lshl_b32 {t0}, {s_g}, 2
            s_add_u32 {t0}, {t0}, {s_w}
            s_mul_i32 {t0}, {t0}, 112
            s_lshl_b32 {t1}, {s_m}, 3
            s_add_u32 {t0}, {t0}, {t1}
            s_lshl_b32 {t0}, {t0}, 10
            s_add_u32 {s_hh}, {t0}, {WS_HH}
            s_cmp_ge_u32 {s_m}, 14|s_cselect_b32 {s_hh}, 0x40000000, {s_hh}
            s_lshl_b32 {t0}, {s_tb}, 5
            s_add_u32 {t0}, {t0}, 16
            v_add_u32 {f2}, {t0}, {v_t}
            v_mul_u32_u24 {f3}, 144, {f2}
            v_mul_u32_u24 {f2}, 272, {f2}
            s_lshl_b32 {t1}, {s_kh}, 7
            s_lshl_b32 {t2}, {s_kh}, 6
            v_add3_u32 {v_vw}, {f1}, {f2}, {t1}
            v_add3_u32 {v_kw}, {f1}, {f3}, {t2}
            v_lshlrev_b32 {f0}, 6, {v_hh}
            v_add3_u32 {v_vr}, {f0}, {f2}, {t1}
            v_subrev_u32 {v_vr}, {14 * 272}, {v_vr}
            v_lshlrev_b32 {f0}, 5, {v_hh}
            v_add3_u32 {v_kr}, {f0}, {f3}, {t2}
            v_subrev_u32 {v_kr}, {14 * 144}, {v_kr}
            s_lshl_b32 {t0}, {s_tb}, 7
            s_add_u32 {t0}, {t0}, 144
            s_lshl_b32 {t1}, {t2}, {s_tb}
            v_mul_u32_u24 {f2}, {t0}, {f4}
            v_add3_u32 {v_kh}, {f1}, {f2}, {t1}"""
            return [t.strip().replace("|", "\n") for t in T.split("\n") if t.strip()]
        V.release(v_r8, v_b64, v_c)
        run(xld2)
        late_ops2 = [lambda: run(late_ops)]
        self.stamp("iss")
        st = V.alloc(16)
        rm = V.alloc(4)

        def unpack_acc(i):
            L = []
            o = 8 * (i & 1)
            for ch in range(4):
                r = XN[i][ch]
                for j in range(3):
                    L.append(f"v_lshlrev_b32 {r[2 * j]}, 16, {r[4 + j]}")
                    L.append(f"v_and_b32 {r[2 * j + 1]}, 0xffff0000, {r[4 + j]}")
                L.append(f"v_lshlrev_b32 {r[6]}, 16, {r[7]}")
                L.append(f"v_and_b32 {r[7]}, 0xffff0000, {r[7]}")
                for j in range(4):
                    sm, sq = st.sub(o + 2 * (j & 1), 2), st.sub(o + 4 + 2 * (j & 1), 2)
                    p = r.sub(2 * j, 2)
                    if ch == 0 and j < 2:
                        L.append(f"v_pk_add_f32 {sm}, {p}, {r.sub(2 * j + 4, 2)}")
                        L.append(f"v_pk_mul_f32 {sq}, {p}, {p}")
                    else:
                        if ch:
                            L.append(f"v_pk_add_f32 {sm}, {sm}, {p}")
                        L.append(f"v_pk_fma_f32 {sq}, {p}, {p}, {sq}")
            return L

        def reduce_norm(i):
            o = 8 * (i & 1)
            sm, sq = st[o], st[o + 4]
            L = [f"v_pk_add_f32 {st.sub(o, 2)}, {st.sub(o, 2)}, {st.sub(o + 2, 2)}",
                 f"v_pk_add_f32 {st.sub(o + 4, 2)}, {st.sub(o + 4, 2)}, {st.sub(o + 6, 2)}",
                 f"v_add_f32 {sm}, {sm}, {st[o + 1]}", f"v_add_f32 {sq}, {sq}, {st[o + 5]}"]
            for ror in (8, 4, 2, 1):
                L.append(f"v_add_f32_dpp {sm}, {sm}, {sm} row_ror:{ror} row_mask:0xf bank_mask:0xf")
                L.append(f"v_add_f32_dpp {sq}, {sq}, {sq} row_ror:{ror} row_mask:0xf bank_mask:0xf")
            pr = rm.sub(2 * (i & 1), 2)
            L += self.finish_stats(sm, sq, pr[0], pr[1], 512)
            for ch in range(4):
                for j in range(4):
                    p = XN[i][ch].sub(2 * j, 2)
                    L.append(f"v_pk_fma_f32 {p}, {p}, {pr}, {pr} op_sel:[0,0,1] op_sel_hi:[1,0,1]")
            return L

        def ln_stage(i):
            a, b = (unpack_acc(i) if i < 5 else []), (reduce_norm(i - 1) if i else [])
            m = []
            while a or b:
                if a: m.append(a.pop(0))
                if a: m.append(a.pop(0))
                if b: m.append(b.pop(0))
            return m
        sv = xn_all.sub(160, 8)
        P = []
        P += [f"v_lshlrev_b32 {cv[i]}, 16, {cv[i]}" for i in range(4)]
        P += [f"v_mul_f32 {sv[2 * i]}, 0xbfb8aa3b, {cv[i]}" for i in range(4)]
        P += [f"v_exp_f32 {sv[2 * i]}, {sv[2 * i]}" for i in range(4)]
        P += [f"v_add_f32 {sv[2 * i]}, 1.0, {sv[2 * i]}" for i in range(4)]
        P += [f"v_rcp_f32 {sv[2 * i]}, {sv[2 * i]}" for i in range(4)]
        P += [f"v_mul_f32 {sv[2 * i]}, {cv[i]}, {sv[2 * i]}" for i in range(4)]
        P += [self.bf16r(sv[2 * i], sv[2 * i])[0] for i in range(4)] + [self.bf16r(sv[2 * i], sv[2 * i])[1] for i in range(4)]
        P.append(lambda: self.stamp("silu"))
        pa = xn_all.sub(168, 8)
        wf = xn_all.sub(176, 8)
        for i in range(4):
            if i == 1:
                P.append(lambda: self.stamp("w0"))
            for j in range(4):
                P.append(f"v_lshlrev_b32 {wf[2 * j]}, 16, {wmv[4 * i + j]}")
                P.append(f"v_and_b32 {wf[2 * j + 1]}, 0xffff0000, {wmv[4 * i + j]}")
            for j in range(4):
                if i == 0:
                    P.append(f"v_pk_mul_f32 {pa.sub(2 * j, 2)}, {wf.sub(2 * j, 2)}, {sv.sub(0, 2)} op_sel_hi:[1,0]")
                else:
                    P.append(f"v_pk_fma_f32 {pa.sub(2 * j, 2)}, {wf.sub(2 * j, 2)}, {sv.sub(2 * i, 2)}, {pa.sub(2 * j, 2)} op_sel_hi:[1,0,1]")
        P.append(lambda: self.stamp("w3"))
        P += [f"v_and_b32 {u0}, 7, {v_l}", f"v_lshlrev_b32 {u0}, 5, {u0}"]
        P += [f"v_permlane32_swap_b32 {pa[j]}, {pa[j + 4]}" for j in range(4)]
        P += [f"v_add_f32 {pa[j]}, {pa[j]}, {pa[j + 4]}" for j in range(4)]
        P += [f"v_lshrrev_b32 {u1}, 4, {v_l}"]
        P += [f"v_permlane16_swap_b32 {pa[j]}, {pa[j + 2]}" for j in range(2)]
        P += [f"v_add_f32 {pa[j]}, {pa[j]}, {pa[j + 2]}" for j in range(2)]
        P += [f"v_lshl_add_u32 {u0}, {u1}, 3, {u0}", f"s_lshl_b32 {t0}, {s_w}, 8"]
        P += [f"v_add_f32_dpp {pa[j]}, {pa[j]}, {pa[j]} row_ror:8 row_mask:0xf bank_mask:0xf" for j in range(2)]
        P += [f"v_add_u32 {u0}, {t0}, {u0}", f"ds_write_b64 {u0}, {pa.sub(0, 2)} offset:{L_PART}"]
        s_tb4 = [sa() for _ in range(4)]
        pre_txt = []
        rec = e.out
        n0 = len(e.out)
        keep = (e.vm_issued, e.vm_done, list(e.hist), e.n_ins)
        for _ in range(c.n_pre):
            m = len(e.out)
            assert self.dma_step()
            pre_txt.append("\n".join(o.text for o in e.out[m:]))
        del e.out[n0:]
        e.vm_issued, e.vm_done, e.hist, e.n_ins = keep
        for u in UQ:
            if u.tok:
                u.tok = 0

        def p0(bg, rate):
            bg = self.interleave(P, bg, rate)
            pub()
            return bg

        def pub():
            e.wait_all_lg()
            e(f"""s_mul_i32 {s_tag}, {s_tag}, 0x9E3779B1
            s_add_u32 {s_tag}, {s_tag}, 0x7F4A7C18
            s_and_b32 {s_tag}, {s_tag}, 0xFFFFFFF8
            v_mov_b32 {self.v_tag}, {s_tag}
            s_lshr_b32 {s_tb4[0]}, {s_tag}, 3
            s_lshr_b32 {s_tb4[1]}, {s_tag}, 10
            s_lshr_b32 {s_tb4[2]}, {s_tag}, 17
            s_lshr_b32 {s_tb4[3]}, {s_tag}, 24""")
            self.stamp("tag")
            e.wait(vm=tok_init)
            self.barrier()
            Lsk = e.newlabel("Lnot0")
            e(f"s_cmp_lg_u32 {s_w}, 0")
            e(f"s_cbranch_scc1 {Lsk}")
            e.begin_cond(allow_lg=True)
            e.optional += 1
            e(f"""v_and_b32 {u0}, 15, {v_l}
            v_lshlrev_b32 {u1}, 4, {u0}""")
            pw = wmv
            for k in range(4):
                e(f"ds_read_b128 {pw.sub(4 * k, 4)}, {u1} offset:{L_PART + 256 * k}")
            e(f"""v_lshrrev_b32 {u2}, 4, {v_l}
            v_mul_u32_u24 {u2}, {GCOPY}, {u2}
            s_lshl_b32 {t0}, {s_col0}, 8
            s_and_b32 {t1}, {s_idx}, 3
            s_mul_i32 {t1}, {t1}, {GQ}
            s_add_u32 {t0}, {t0}, {t1}
            s_add_u32 {t0}, {t0}, {WS_G}
            v_add3_u32 {u2}, {u2}, {u1}, {t0}
            v_mov_b32 {u0}, 0xff""")
            for h in range(2):
                e(f"v_pk_add_f32 {pw.sub(2 * h, 2)}, {pw.sub(2 * h, 2)}, {pw.sub(4 + 2 * h, 2)}")
                e(f"v_pk_add_f32 {pw.sub(8 + 2 * h, 2)}, {pw.sub(8 + 2 * h, 2)}, {pw.sub(12 + 2 * h, 2)}")
            for h in range(2):
                e(f"v_pk_add_f32 {pw.sub(2 * h, 2)}, {pw.sub(2 * h, 2)}, {pw.sub(8 + 2 * h, 2)}")
            for k in range(4):
                e(f"v_bfi_b32 {pw[k]}, {u0}, {s_tb4[k]}, {pw[k]}")
            e(f"s_cmp_ge_u32 {s_idx}, 24")
            Lnp = e.newlabel("Lnopub")
            e(f"s_cbranch_scc1 {Lnp}")
            e(f"buffer_store_dwordx4 {pw.sub(0, 4)}, {u2}, {WS}, 0 offen sc1")
            e.label(Lnp)
            e(f"""s_getreg_b32 {t0}, hwreg(HW_REG_XCC_ID)
            s_and_b32 {t0}, {t0}, 7
            s_or_b32 {t0}, {t0}, {s_tag}
            v_mov_b32 {u0}, {t0}
            s_lshl_b32 {t1}, {s_g}, 4
            s_add_u32 {t1}, {t1}, {s_m}
            s_lshl_b32 {t1}, {t1}, 2
            v_mov_b32 {u1}, {t1}
            s_mov_b64 exec, 1
            buffer_store_dword {u0}, {u1}, {WS}, 0 offen offset:{WS_XID} sc1
            s_mov_b64 exec, -1""")
            e.optional -= 1
            e.end_cond(Lsk)
            e.wait_all_lg()

        def t3q():
            if c.t3 & 1:
                e(unpark("t3q", u0))
                e(f"buffer_load_dword {a_dummy[0]}, {u0}, {WQ}, 0 offen", track=False)

        def ln(i, bg, rate):
            L = ln_stage(i)
            e(L[0])
            bg = self.interleave(L[1:], bg, rate)
            self.stamp(f"x{i}")
            return bg
        bg = list(xld)
        for i in range(c.nq_k):
            bg = ln(i, bg, c.x_rate0)
        bg = p0(bg, c.x_rate)
        self.stamp("pub")
        run(bg)
        bg = list(late_ops2) + [t3q] + list(pre_txt)
        for i in range(c.nq_k, 6):
            bg = ln(i, bg, c.pre_rate)
        run(bg)
        V.release(cv, wmv, v_x, v_wm)
        V.release(st, rm)
        v_cst, v_hw, v_hm, v_hhalo = V.alloc(), V.alloc(), V.alloc(), V.alloc()
        v_wq, v_w1, v_w2 = V.alloc(3, align=1), V.alloc(3, align=1), V.alloc(3, align=1)
        run([unpark("cst", v_cst), unpark("hw", v_hw), unpark("hm", v_hm), unpark("hhalo", v_hhalo), unpark("wq", v_wq[0])])
        e(f"""s_lshl_b32 {t0}, {s_tb}, 10
        s_add_u32 {t1}, {t0}, 1024
        s_sub_u32 {t0}, 2048, {t0}
        v_add_u32 {v_wq[1]}, {WIN}, {v_wq[0]}
        v_add_u32 {v_wq[2]}, {2 * WIN}, {v_wq[0]}""")
        for k in range(3):
            e(f"v_add_u32 {v_w1[k]}, {t1}, {v_wq[k]}")
            e(f"v_add_u32 {v_w2[k]}, {t0}, {v_wq[k]}")

        self.stamp("ln1")
        gq = V.alloc(16)
        s_q = [Reg('s', 3, 1), Reg('s', 0, 1), Reg('s', 1, 1)]
        for k in range(3):
            e(f"s_mov_b32 {s_q[k]}, {(k + 1) * GQ}")

        def g_loads(r, ad):
            return [f"buffer_load_dwordx4 {r.sub(4 * k, 4)}, {ad}, {WS}, {s_q[k - 1] if k else 0} offen sc1" for k in range(4)]

        def g_check(r, a, b):
            L = [f"v_xor_b32 {a}, {s_tb4[0]}, {r[0]}", f"v_xor_b32 {b}, {s_tb4[1]}, {r[1]}"]
            for k in range(2, 16):
                d = (a, b)[k & 1]
                L.append(f"v_bitop3_b32 {d}, {r[k]}, {s_tb4[k & 3]}, {d} bitop3:0xbe")
            L += [f"v_or_b32 {a}, {a}, {b}", f"v_and_b32 {a}, 0xff, {a}"]
            return L

        def g_sum(r, packed):
            L = [f"v_and_b32 {r[k]}, 0xffffff00, {r[k]}" for k in range(16)]
            for x, y in ((0, 4), (8, 12), (0, 8)):
                if packed:
                    L += [f"v_pk_add_f32 {r.sub(x + 2 * h, 2)}, {r.sub(x + 2 * h, 2)}, {r.sub(y + 2 * h, 2)}" for h in range(2)]
                else:
                    L += [f"v_add_f32 {r[x + h]}, {r[x + h]}, {r[y + h]}" for h in range(4)]
            L += [f"v_cvt_pk_bf16_f32 {r[0]}, {r[0]}, {r[1]}", f"v_cvt_pk_bf16_f32 {r[2]}, {r[2]}, {r[3]}"]
            return L
        run([unpark("g1", u1), f"v_lshlrev_b32 {u0}, 4, v0"])
        TO = L_TBL
        if c.h_full:
            TO = L_TBL - WIN
            v_hm2, v_hh2 = V.alloc(), V.alloc()
            e(f"""v_add_u32 {u0}, {WIN}, {u0}
            v_add_u32 {v_cst}, {WIN}, {v_cst}
            v_add_u32 {v_hm2}, {2 * HB}, {v_hm}
            v_add_u32 {v_hh2}, {2 * HB}, {v_hhalo}""")
        self.poll(g_loads(gq, u1), [], pre=g_check(gq, u2, u3) + [f"v_cmp_ne_u32 vcc, 0, {u2}"])
        self.stamp("mod")
        self.exp_delay("mod")
        self.bg_on(c.post_every, limit=[UQ[7]], stage=False)
        tv = V.alloc(4)

        def unp(d, a, b):
            return f"""v_lshlrev_b32 {d[0]}, 16, {a}
            v_and_b32 {d[1]}, 0xffff0000, {a}
            v_lshlrev_b32 {d[2]}, 16, {b}
            v_and_b32 {d[3]}, 0xffff0000, {b}"""
        run(g_sum(gq, True))
        e(unp(tv, gq[0], gq[2]))
        Lno = e.newlabel("Lnoa")
        e(f"s_cmp_lt_u32 {s_w}, 2")
        e(f"s_cbranch_scc1 {Lno}")
        e.begin_cond()
        e(f"""v_pk_add_f32 {tv.sub(0, 2)}, {tv.sub(0, 2)}, 1.0 op_sel_hi:[1,0]
        v_pk_add_f32 {tv.sub(2, 2)}, {tv.sub(2, 2)}, 1.0 op_sel_hi:[1,0]
        v_cvt_pk_bf16_f32 {gq[0]}, {tv[0]}, {tv[1]}
        v_cvt_pk_bf16_f32 {gq[2]}, {tv[2]}, {tv[3]}""")
        e(unp(tv, gq[0], gq[2]))
        e.end_cond(Lno)
        tok_tbl = e(f"ds_write_b128 {u0}, {tv} offset:{TO}")
        self.barrier(lg=tok_tbl)
        cst = V.alloc(16)
        cst1 = xn_all.sub(160, 16)

        def cst_reads(ch, r):
            return [f"ds_read_b128 {r.sub(0, 4)}, {v_cst} offset:{TO + 512 * ch}",
                    f"ds_read_b128 {r.sub(8, 4)}, {v_cst} offset:{TO + 2048 + 512 * ch}",
                    f"ds_read_b128 {r.sub(4, 4)}, {v_cst} offset:{TO + 512 * ch + 16}",
                    f"ds_read_b128 {r.sub(12, 4)}, {v_cst} offset:{TO + 2048 + 512 * ch + 16}"]

        def apply_valu(ch, i, r, packed):
            L = []
            for j in range(4):
                p = XN[i][ch].sub(2 * j, 2)
                if packed:
                    L.append(f"v_pk_fma_f32 {p}, {p}, {r.sub(8 + 2 * j, 2)}, {r.sub(2 * j, 2)}")
                else:
                    for h in range(2):
                        L.append(f"v_fma_f32 {p[h]}, {p[h]}, {r[8 + 2 * j + h]}, {r[2 * j + h]}")
            for j in range(4):
                L.append(f"v_cvt_pk_bf16_f32 {XN[i][ch][j]}, {XN[i][ch][2 * j]}, {XN[i][ch][2 * j + 1]}")
            return L

        wtok = {}

        def apply_write(ch, i):
            def f():
                if LH[ch] > 60000:
                    if i == 0:
                        e(f"v_add_u32 {v_hw}, {2 * HB}, {v_hw}")
                    wtok[ch] = e(f"ds_write_b128 {v_hw}, {XN[i][ch].sub(0, 4)} offset:{LH[ch] - 2 * HB + i * 4 * 272}")
                    return
                wtok[ch] = e(f"ds_write_b128 {v_hw}, {XN[i][ch].sub(0, 4)} offset:{LH[ch] + i * 4 * 272}")
            f.solo = True
            return f

        npre_ch = c.pre_chunks
        a_xr = A.alloc(8)

        def bgl(name, *loads):
            L = []
            for k, (t, trk) in enumerate(loads):
                L.append(lambda t=t, trk=trk, k=k: ((e(unpark(name, u0)) if name and k == 0 else None), e(t, track=trk)))
            return L
        tch = lambda srd: (f"buffer_load_dword {a_dummy[0]}, {u0}, {srd}, 0 offen", False)
        qhi = []

        def make_bg():
            pf = (bgl("m4", tch(WO)) + bgl("m14", tch(WG), tch(WU), tch(WD))) if c.mall_pf == 2 else []
            pf.append(lambda: e(f"s_cmp_ge_u32 {s_m}, 14\ns_cselect_b32 s18, 0, s18\ns_cselect_b32 s22, 0, s22"))
            if c.t3 & 2:
                pf += bgl("t3o", tch(WO))
            misc = bgl("xl", (f"buffer_load_dwordx4 {a_xr.sub(0, 4)}, {u0}, {X}, 0 offen", True),
                       (f"s_mov_b32 {t3}, 8192\nbuffer_load_dwordx4 {a_xr.sub(4, 4)}, {u0}, {X}, {t3} offen", True))
            if c.preread:
                misc += bgl(None, *[(f"buffer_load_dwordx4 {a_dummy}, {v_l16}, {WS}, {s_tile} offen offset:{1024 * k} sc1", False) for k in range(2)])
                misc += bgl("fpre", (f"buffer_load_dword {a_dummy[0]}, {u0}, {WS}, 0 offen sc1", False))
            if c.hh_fast == 2:
                misc += bgl("l128", (f"buffer_load_dword {a_dummy[0]}, {u0}, {WS}, {s_hh} offen sc1", False))
            if c.hh_fast == 1:
                misc += [lambda: (e(unpark("l128", u0)), e(f"v_or_b32 {u0}, 4096, {u0}"),
                                  e(f"buffer_load_dword {a_dummy[0]}, {u0}, {WS}, {s_hh} offen sc1", track=False))]
            def hh_init(k):
                def f():
                    e(f"s_add_u32 {t3}, {s_hh}, {(k >> 2) * 4096}")
                    hinit["tok"] = e(f"buffer_store_dwordx4 {a_ones}, {v_l16}, {WS}, {t3} offen offset:{1024 * (k & 3)} sc1")
                return f
            marks = [hh_init(k) for k in range(8) if c.sent & (1 << (k >> 2))]
            qhi.extend((pf + misc + marks) if c.pf_first else (misc + pf + marks))

        run(cst_reads(0, cst) + (cst_reads(1, cst1) if npre_ch > 1 else []))
        V.release(gq, tv)
        v_kw, v_vw, v_kh, v_kr, v_vr, v_o = [V.alloc() for _ in range(6)]
        dfr = deferred(*[xn_all[16 + k] for k in range(5)])
        make_bg()
        assert c.pf_first and c.bg_n <= 5 and c.q_hi0 >= 12 and c.st_g2 >= 6 and not c.sent and not c.hh_fast
        nt = 0
        for ch in range(npre_ch):
            for i in range(5):
                if c.bg_early and nt % c.bg_early == 0 and qhi and nt // c.bg_early < c.bg_n:
                    qhi.pop(0)()
                nt += 1
                run(apply_valu(ch, i, (cst, cst1)[ch & 1], True))
                apply_write(ch, i)()
            if ch + 2 < npre_ch:
                run(cst_reads(ch + 2, (cst, cst1)[ch & 1]))
            elif npre_ch < 4 and ch == (npre_ch - 1) // 2 * 2:
                run(cst_reads(npre_ch, cst))
        if npre_ch < 4:
            for i in range(c.pre_tiles):
                run(apply_valu(npre_ch, i, cst, True))
        accQ, accS1, accS2, accH = [xn_all.sub(120 + 16 * k, 16) for k in range(4)]
        fr = [[A.alloc(4) for _ in range(5)] for _ in range(3)]
        steps = []
        for s in range(32):
            u, sp = s // 2, s % 2
            ch, sc = s // 8, s % 8
            f = fr[s % 3]

            def reads(u=u, sp=sp, ch=ch, sc=sc, f=f):
                aq = UQ[u].addr + sp * 6144
                hbase = LH[ch]
                wi, o = divmod(aq, WIN)
                assert o + 512 < 65536
                return [f"ds_read_b128 {f[3]}, {v_hm if hbase < 44000 else v_hm2} offset:{hbase + 32 * sc - (0 if hbase < 44000 else 2 * HB)}",
                        f"ds_read_b64_tr_b16 {f[0].sub(0, 2)}, {v_wq[wi]} offset:{o}",
                        f"ds_read_b64_tr_b16 {f[0].sub(2, 2)}, {v_wq[wi]} offset:{o + 512}",
                        f"ds_read_b64_tr_b16 {f[1].sub(0, 2)}, {v_w1[wi]} offset:{o}",
                        f"ds_read_b64_tr_b16 {f[1].sub(2, 2)}, {v_w1[wi]} offset:{o + 512}",
                        f"ds_read_b128 {f[4]}, {v_hhalo if hbase < 44000 else v_hh2} offset:{hbase + 32 * sc - (0 if hbase < 44000 else 2 * HB)}",
                        f"ds_read_b64_tr_b16 {f[2].sub(0, 2)}, {v_w2[wi]} offset:{o}",
                        f"ds_read_b64_tr_b16 {f[2].sub(2, 2)}, {v_w2[wi]} offset:{o + 512}"]
            cz = (lambda a: "0") if s == 0 else (lambda a: a)
            mf = [f"v_mfma_f32_32x32x16_bf16 {accS1}, {f[1]}, {f[3]}, {cz(accS1)}",
                  f"v_mfma_f32_32x32x16_bf16 {accH}, {f[1]}, {f[4]}, {cz(accH)}",
                  f"v_mfma_f32_32x32x16_bf16 {accS2}, {f[2]}, {f[3]}, {cz(accS2)}",
                  f"v_mfma_f32_32x32x16_bf16 {accQ}, {f[0]}, {f[3]}, {cz(accQ)}"]
            d = dict(reads=reads, mfmas=mf, units=[UQ[u]])
            if s % c.q_span == 0:
                d["bar"] = True
                d["span"] = c.q_span
                if s % 8 == 0:
                    d["lg"] = (lambda ch=ch: wtok[max(ch, npre_ch - 1)])
            steps.append(d)
        if c.h_full:
            def region(a, n):
                u = Unit("reg", n, [])
                u.addr = a
                return u
            steps[0]["release"] = [region(L_TBL, 4096)] if npre_ch == 4 else []
            steps[12]["release"] = [region(LH[0], HB)]
            steps[20]["release"] = [region(LH[1], HB - 80 * 144)]
            if npre_ch < 4:
                steps[28]["release"] = [region(L_TBL, 4096)]
        mk = Mark()
        fill = list(dfr) + [mk]
        steps[c.q_hi0].setdefault("pre", []).append(lambda: self.drain_to(fill, mk))
        for ch in range(npre_ch, 4):
            gate, mark = Gate(), Mark()
            first = c.pre_tiles if ch == npre_ch else 0
            held = [apply_write(ch, i) for i in range(first)]
            for i in range(first, 5):
                fill += apply_valu(ch, i, cst, False)
                held.append(apply_write(ch, i))
                if i >= 1:
                    if gate not in fill:
                        fill.append(gate)
                    if i == 4 and ch + 1 < 4:
                        fill += cst_reads(ch + 1, cst)
                    fill += held
                    held = []
            fill += [mark]
            if ch == 1 or c.h_full:
                gate.open()
            else:
                steps[8 * (ch - 1) + 4]["postbar"] = gate.open
            steps[8 * ch]["prebar"] = (lambda mark=mark: self.drain_to(fill, mark))
        g2, gx, tw, tv = xn_all.sub(0, 16), V.alloc(2), V.alloc(4), V.alloc(4)
        assert npre_ch == 4
        ga2, gax = V.alloc(), V.alloc()
        g2ld = g_loads(g2, ga2) + [f"buffer_load_dword {gx[0]}, {gax}, {WS}, 0 offen offset:{WS_XID} sc1"]
        g2ck = g_check(g2, tw[0], tw[1]) + [f"v_and_b32 {gx[1]}, -8, {gx[0]}", f"v_xor_b32 {gx[1]}, {gx[1]}, {self.v_tag}",
                                            f"v_or_b32 {tw[0]}, {tw[0]}, {gx[1]}", f"v_cmp_ne_u32 vcc, 0, {tw[0]}"]

        def g2check():
            Ls, Lb = e.newlabel("Lretry"), e.newlabel("Lback")
            e(g2ck[-1])
            e(f"s_cbranch_vccnz {Ls}")
            e.label(Lb)
            self.ool.append(f"{Ls}:\n    s_mov_b32 {self.s_spin}, 0\n{Ls}_1:\n    s_add_u32 {self.s_spin}, {self.s_spin}, 1\n"
                            f"    s_cmp_gt_u32 {self.s_spin}, {c.spin}\n    s_cbranch_scc1 Lexit\n" + "".join(f"    {t}\n" for t in g2ld) +
                            "    s_waitcnt vmcnt(0)\n" + "".join(f"    {t}\n" for t in g2ck) + f"    s_cbranch_vccnz {Ls}_1\n    s_branch {Lb}\n")
        gG, gC = Gate(), Gate()
        steps[c.st_g2].setdefault("pre", []).append(gG.open)
        steps[c.st_g2 + 8].setdefault("pre", []).append(gC.open)
        fill += [gG, unpark("g2", ga2), unpark("gx", gax)] + g2ld + [gC] + g2ck[:-1] + [g2check] + g_sum(g2, False)
        if c.preread:
            fill += bgl(None, (f"buffer_load_dword {a_dummy[0]}, {v_l16}, {WS}, {s_st} offen sc1", False))
        fill += [t.strip() for t in unp(tw, g2[0], g2[2]).split("\n")]
        fill += [f"s_cmp_eq_u32 {s_w}, 2\ns_cselect_b32 {t0}, 1.0, 0"] + [f"v_add_f32 {tv[k]}, {t0}, {tw[k]}" for k in range(4)]
        fill += [f"v_cvt_pk_bf16_f32 {g2[0]}, {tv[0]}, {tv[1]}", f"v_cvt_pk_bf16_f32 {g2[2]}, {tv[2]}, {tv[3]}"]
        fill += [t.strip() for t in unp(tw, g2[0], g2[2]).split("\n")]
        fill += [f"v_and_b32 {gx[1]}, 15, {v_l}", f"s_lshl_b32 {t0}, {s_w}, 8", f"v_lshl_add_u32 {gx[1]}, {gx[1]}, 4, {t0}"]
        fill += [f"ds_write_b128 {gx[1]}, {tw} offset:{L_TBL2}",
                 f"s_getreg_b32 {t0}, hwreg(HW_REG_XCC_ID)", f"s_and_b32 {t0}, {t0}, 7", f"s_or_b32 {t0}, {t0}, {s_tag}",
                 f"v_cmp_ne_u32 vcc, {t0}, {gx[0]}\ns_nop 1\ns_cmp_eq_u64 vcc, 0\ns_cselect_b32 {self.s_mode}, {0 if c.force_slow else 1}, 0"]
        self.bg_off()
        self.loop_prologue(steps)
        self.stamp("p1s")
        self.lname = "Q"
        self.mfma_loop(steps, fill, lambda i, h: (c.q_hi if i >= c.q_hi0 else 0, c.q_dma if c.q_dma0 <= i < c.q_dma1 else 0, c.q_stage), hi=qhi)
        self.drain_to(fill, None)
        run(qhi)
        self.stamp("p1e")
        S.release(*s_tb4, s_col0, s_w3k)
        V.release(cst, v_cst, v_hw, v_hm, v_hhalo, v_wq, v_w1, v_w2, gx, tw, tv, ga2, gax)
        if c.h_full:
            V.release(v_hm2, v_hh2)
        for f in fr:
            A.release(*f)
        lg = V.alloc(16)
        kp = xn_all.sub(0, 16)

        def kwrite(acc, ad, o):
            for j in range(8):
                e(f"v_cvt_pk_bf16_f32 {kp[o + j]}, {acc[2 * j]}, {acc[2 * j + 1]}")
            for j in range(2):
                e(f"ds_write_b128 {ad}, {kp.sub(o + 4 * j, 4)} offset:{L_K + 32 * j}")

        def vwrite(acc, ad):
            for j in range(2):
                for jj in range(2):
                    e(f"ds_write_b128 {ad}, {acc.sub(8 * j + 4 * jj, 4)} offset:{L_V + j * 64 + jj * 32}")
        L1, L2 = e.newlabel("Ltb1"), e.newlabel("Lkv")
        e(f"s_cmp_lg_u32 {s_tb}, 0")
        e(f"s_cbranch_scc1 {L1}")
        save = (e.lg_issued, list(e.hist))
        kwrite(accS1, v_kw, 0); kwrite(accH, v_kh, 8); vwrite(accS2, v_vw)
        e(f"s_branch {L2}")
        e.label(L1)
        e.lg_issued, e.hist = save
        vwrite(accS1, v_vw); vwrite(accH, v_kh); kwrite(accS2, v_kw, 0)
        e.label(L2)
        qp = xn_all.sub(16, 8)
        e("s_nop 3")
        for j in range(8):
            e(f"v_cvt_pk_bf16_f32 {qp[j]}, {accQ[2 * j]}, {accQ[2 * j + 1]}")
        for j in range(4):
            e(f"v_permlane32_swap_b32 {qp[j]}, {qp[4 + j]}")
        e._push(Ins("s_waitcnt lgkmcnt(0)"))
        e.lg_done = e.lg_issued
        self.barrier(ready=[] if c.uo_late else UO, release=UQ + ([region(LH[3], HB)] if c.h_full else []))
        self.stamp("kv")
        self.bg_on(c.att_every, limit=[UG[c.n_dir - 1]], nmax=c.att_n)
        V.release(v_kh, v_kw, v_vw)
        kb = [accS1.sub(0, 8), accS1.sub(8, 8), accS2.sub(0, 8), accS2.sub(8, 8), accH.sub(0, 8), accH.sub(8, 8), kp.sub(0, 8), kp.sub(8, 8)]
        vb = [xn_all.sub(24 + 16 * k, 16) for k in range(6)] + [accS1, accS2]

        def kread(wd):
            return [f"ds_read_b128 {kb[wd].sub(4 * h, 4)}, {v_kr} offset:{L_K + (14 - 2 * wd) * 144 + 16 * h}" for h in range(2)]

        def vread(wd):
            return [f"ds_read_b128 {vb[wd].sub(4 * dq, 4)}, {v_vr} offset:{L_V + (14 - 2 * wd) * 272 + 16 * dq}" for dq in range(4)]

        def qk(ws):
            L = []
            for j in range(8):
                for wd in ws:
                    L.append(f"v_dot2_f32_bf16 {lg[2 * wd]}, {qp[j]}, {kb[wd][j]}, {'0' if j == 0 else lg[2 * wd]}")
            return L
        for wd in range(7):
            run(kread(wd))
        self.interleave(qk((0, 1, 2, 3)), kread(7) + vread(0) + vread(1) + vread(2)[:2], 0.4)
        self.interleave(qk((4, 5, 6, 7)), vread(2)[2:] + vread(3) + vread(4) + vread(5)[:2], 0.4)
        Lnm = e.newlabel("Lnomask")
        e(f"s_cmp_lg_u32 {s_TB}, 0")
        e(f"s_cbranch_scc1 {Lnm}")
        e.begin_cond()
        e(f"v_mov_b32 {u0}, 0x{f2u(-4e9):08x}")
        for wd in range(1, 8):
            e(f"v_cmp_gt_u32 vcc, {2 * wd}, {v_t}")
            e(f"v_cndmask_b32 {lg[2 * wd]}, {lg[2 * wd]}, {u0}, vcc")
        e.end_cond(Lnm)
        mx = lg[1]
        SM = [f"s_mov_b32 {t0}, 0x{f2u(0.25 * math.log2(math.e)):08x}",
              f"v_max3_f32 {mx}, {lg[0]}, {lg[2]}, {lg[4]}",
              f"v_max3_f32 {lg[3]}, {lg[6]}, {lg[8]}, {lg[10]}",
              f"v_max3_f32 {mx}, {mx}, {lg[12]}, {lg[14]}",
              f"v_max_f32 {mx}, {mx}, {lg[3]}",
              f"v_mul_f32 {mx}, {t0}, {mx}"]
        SM += [f"v_fma_f32 {lg[2 * wd]}, {lg[2 * wd]}, {t0}, -{mx}" for wd in range(8)]
        SM += [f"v_exp_f32 {lg[2 * wd]}, {lg[2 * wd]}" for wd in range(8)]
        self.interleave(SM, vread(5)[2:] + vread(6) + vread(7), 0.6)
        ov = accQ
        SUM = f"""v_add_f32 {lg[1]}, {lg[0]}, {lg[2]}
        v_add_f32 {lg[3]}, {lg[4]}, {lg[6]}
        v_add_f32 {lg[5]}, {lg[8]}, {lg[10]}
        v_add_f32 {lg[7]}, {lg[12]}, {lg[14]}
        v_add_f32 {lg[1]}, {lg[1]}, {lg[3]}
        v_add_f32 {lg[5]}, {lg[5]}, {lg[7]}
        v_add_f32 {lg[1]}, {lg[1]}, {lg[5]}
        v_rcp_f32 {lg[1]}, {lg[1]}""".split("\n")
        PV = []
        for wd in range(8):
            for j in range(8):
                p = ov.sub(2 * j, 2)
                if wd == 0:
                    PV.append(f"v_pk_mul_f32 {p}, {vb[wd].sub(2 * j, 2)}, {lg.sub(0, 2)} op_sel_hi:[1,0]")
                else:
                    PV.append(f"v_pk_fma_f32 {p}, {vb[wd].sub(2 * j, 2)}, {lg.sub(2 * wd, 2)}, {p} op_sel_hi:[1,0,1]")
        self.interleave(PV, SUM, 0.25)
        ob = lg.sub(8, 8)
        for j in range(8):
            p = ov.sub(2 * j, 2)
            e(f"v_pk_mul_f32 {p}, {p}, {lg.sub(0, 2)} op_sel:[0,1] op_sel_hi:[1,1]")
        self.bg_off()
        for j in range(8):
            e(f"v_cvt_pk_bf16_f32 {ob[j]}, {ov[2 * j]}, {ov[2 * j + 1]}")
        self.stamp("att")
        tok = self.store2([f"buffer_store_dwordx4 {ob.sub(0, 4)}, {v_o}, {WS}, 0 offen" + "{f}",
                           f"buffer_store_dwordx4 {ob.sub(4, 4)}, {v_o}, {WS}, 0 offen offset:512" + "{f}"])
        V.release(xn_all, v_kr, v_vr, v_o)
        ga, gB, gs = V.alloc(16), V.alloc(16), V.alloc(16)
        x1 = V.alloc(16)
        gb = V.alloc(16)
        v_pf = V.alloc()
        v_s0, v_s1 = V.alloc(3, align=1), V.alloc(3, align=1)
        v_act, v_red = V.alloc(), V.alloc()
        e(f"""v_lshlrev_b32 {u0}, 4, {v_hh}
        s_lshl_b32 {t0}, {s_kh}, 7
        v_add_u32 {u0}, {t0}, {u0}""")
        for vec, r in ((0, ga), (1, gs), (2, gB), (3, gb)):
            for j in range(4):
                e(f"ds_read_b128 {r.sub(4 * j, 4)}, {u0} offset:{L_TBL2 + 256 * vec + 32 * j}")
        e(f"""v_and_b32 {u1}, 7, {v_l}
        v_lshlrev_b32 {u1}, 2, {u1}
        s_lshl_b32 {t0}, {s_kh}, 5
        s_add_u32 {t0}, {t0}, {s_flb}
        v_add_u32 {v_pf}, {t0}, {u1}""")
        e(f"""v_lshlrev_b32 {u0}, 10, {v_hh}
        s_lshl_b32 {t0}, {s_kh}, 11
        s_lshl_b32 {t1}, {s_kh}, 8
        s_add_u32 {t2}, {t0}, {t1}
        v_add3_u32 {v_s0[0]}, {v_trn}, {u0}, {t2}
        s_sub_u32 {t2}, {t0}, {t1}
        s_add_u32 {t2}, {t2}, 256
        v_add3_u32 {v_s1[0]}, {v_trn}, {u0}, {t2}""")
        for k in (1, 2):
            e(f"v_add_u32 {v_s0[k]}, {k * WIN}, {v_s0[0]}")
            e(f"v_add_u32 {v_s1[k]}, {k * WIN}, {v_s1[0]}")
        e(f"""s_lshl_b32 {t0}, {s_TB}, 5
        s_lshl_b32 {t1}, {s_kh}, 4
        s_add_u32 {t0}, {t0}, {t1}
        s_lshl_b32 {t0}, {t0}, 10
        s_add_u32 {t0}, {t0}, {WS_O}
        v_add_u32 {v_act}, {t0}, {v_l16}
        v_add_u32 {v_red}, {s_w1k}, {v_l16}
        v_lshlrev_b32 {v_red}, 2, {v_red}
        v_mul_u32_u24 {u0}, 48, {v_l}
        v_sub_u32 {v_red}, {v_red}, {u0}""")
        e(f"""s_lshl_b32 {t0}, {s_tb}, 5
        v_add_u32 {u1}, {t0}, {v_t}
        v_mul_u32_u24 {u1}, 144, {u1}
        s_lshl_b32 {t0}, {s_kh}, 6
        v_lshlrev_b32 {u2}, 3, {v_hh}
        v_add3_u32 {u2}, {u1}, {u2}, {t0}""")
        v_w16 = V.alloc(3, align=1)
        e(f"v_add_u32 {v_w16[0]}, {s_w1k}, {v_l16}")
        for k in (1, 2):
            e(f"v_add_u32 {v_w16[k]}, {k * WIN}, {v_w16[0]}")
        v_h2, v_hs = V.alloc(), V.alloc()
        e(f"""v_and_b32 {u0}, 15, {v_l}
        v_bfe_u32 {u1}, {v_l}, 4, 1
        v_lshlrev_b32 {v_h2}, 4, {u0}
        v_lshl_add_u32 {v_hs}, {u1}, 9, {v_h2}
        v_lshl_add_u32 {v_hs}, {v_hh}, 8, {v_hs}
        v_lshl_add_u32 {v_h2}, {u1}, 10, {v_h2}
        v_lshl_add_u32 {v_h2}, {v_hh}, 8, {v_h2}""")
        e(unpark("xw", u3))
        e.wait(vm=tok)
        self.flag_store(v_fl, F_O * 512)
        self.stamp("fo")
        V.release(lg)
        self.barrier(ready=UO)
        self.lds.add(L_RED + 16384, (L_V + HB if c.h_full else L_RING) - L_RED - 16384)
        xr = V.alloc(8)
        xs = Unit("xs", 64 * 144, [])
        xs.addr = L_RED + 16384
        assert any(iv[0] <= xs.addr and iv[1] >= xs.addr + xs.size for iv in self.lds.free)
        for iv in self.lds.free:
            if iv[0] <= xs.addr < iv[1]:
                hi_end = iv[1]
                iv[1] = xs.addr
                self.lds.free.append([xs.addr + xs.size, hi_end])
                break
        self.lds.free = sorted(iv for iv in self.lds.free if iv[1] > iv[0])
        e(f"ds_write_b128 {u3}, {a_xr.sub(0, 4)} offset:{xs.addr}")
        e(f"ds_write_b128 {u3}, {a_xr.sub(4, 4)} offset:{xs.addr + 8 * 144}")
        A.release(a_xr)
        done = [u for u in staged if u.next >= len(u.dmas)]
        for f in self.commit(done, v_w16):
            f()
        self.barrier()
        for j in range(4):
            e(f"ds_read_b64 {xr.sub(2 * j, 2)}, {u2} offset:{xs.addr + 16 * j}")
        self.dma_all(limit=c.n_alpha)
        for j in range(8):
            e(f"v_lshlrev_b32 {x1[2 * j]}, 16, {xr[j]}")
            e(f"v_and_b32 {x1[2 * j + 1]}, 0xffff0000, {xr[j]}")
        V.release(xr)
        A.release(a_ones, *[r for n, r in parked.items() if n not in ("xres", "t3d")])
        fr = [[A.alloc(4) for _ in range(4)] for _ in range(3)]
        acc0, acc1 = V.alloc(16), V.alloc(16)

        def kloop(units, act, rdoff, nk, first=True, base=0):
            steps = []
            for i in range(nk // 2):
                f = fr[(base + i) % 3]

                def reads(i=i, f=f):
                    L = []
                    for h in range(2):
                        ad = units[2 * i + h].addr
                        wi, o = divmod(ad, WIN)
                        assert o + rdoff < 65536
                        for sl, base in ((0, v_s0), (1, v_s1)):
                            L.append(f"ds_read_b64_tr_b16 {f[2 * h + sl].sub(0, 2)}, {base[wi]} offset:{o}")
                            L.append(f"ds_read_b64_tr_b16 {f[2 * h + sl].sub(2, 2)}, {base[wi]} offset:{o + rdoff}")
                    return L
                mf = []
                for h in range(2):
                    for sl, acc in ((0, acc0), (1, acc1)):
                        cin = "0" if (first and i == 0 and h == 0) else acc
                        mf.append(f"v_mfma_f32_32x32x16_bf16 {acc}, {f[2 * h + sl]}, {act[2 * i + h]}, {cin}")
                steps.append(dict(reads=reads, mfmas=mf, units=[units[2 * i], units[2 * i + 1]]))
            return steps

        s_ao = sa()

        cur_ao = [None]

        def act_loads(regs, vaddr, offs):
            L = []
            for r, o in zip(regs, offs):
                def f(r=r, o=o):
                    if (c.exp_nohh and vaddr is not v_act) or (c.exp_noh2 and len(regs) == 32):
                        return
                    va = vaddr
                    if isinstance(o, tuple) and len(o) == 4:
                        e(f"s_xor_b32 {s_ao}, {o[0]}, {o[1]}")
                        cur_ao[0], o = None, 0
                    elif isinstance(o, tuple) and len(o) == 3:
                        e(f"s_lshr_b32 {s_ao}, {o[0]}, 4\ns_add_u32 {s_ao}, {s_ao}, {o[1]}")
                        cur_ao[0], o = None, 0
                    elif isinstance(o, tuple):
                        b, o = o
                        if b != cur_ao[0]:
                            e(f"s_lshr_b32 {s_ao}, {b}, 4")
                            cur_ao[0] = b
                    else:
                        if len(regs) == 32 and (o >> (11 + c.gbit)) & 1:
                            va = v_act2
                        b = o & ~4095
                        if b != cur_ao[0]:
                            e(f"s_mov_b32 {s_ao}, {b}")
                            cur_ao[0] = b
                    e(f"buffer_load_dwordx4 {r}, {va}, {CC if len(regs) == 32 else WS}, {s_ao} offen offset:{o & 4095}{c.act_fl}")
                L.append(f)
            return L

        actf = [A.alloc(4) for k in range(16)]
        steps = kloop(UO, actf, 512, 16)
        self.loop_prologue(steps)
        self.poll([f"buffer_load_dword {u1}, {v_pf}, {WS}, 0 offen offset:{F_O * 512} sc1"], [u1])
        self.stamp("po")
        self.lname = "O"
        hl = act_loads(actf[:16], v_act, [(str(s_rx[k & 3]), (k // 4) * 4096, 0) for k in range(16)])
        run(hl[:c.p2_lead])
        hi = hl[c.p2_lead:]
        for i in range(c.p2_lead // 2, 8):
            def f(n=14 - 2 * i):
                while len(hi) > n + c.n_beta:
                    hi.pop(0)()
            steps[i]["pre"] = [f]
        nb = [0]

        def beta():
            if nb[0] < c.n_beta:
                nb[0] += bool(self.stage_step())
        hi += [beta] * c.n_beta
        self.mfma_loop(steps, [], lambda i, h: (1, 0, 0), hi=hi)
        rest = [u for u in self.stq if u.next == 0]
        while self.stq and self.stq[0].next:
            if self.stq[0].next >= len(self.stq[0].dmas):
                self.stq.pop(0)
            else:
                self.stage_step()
        self.stq = []
        k = 0
        while k < len(self.queue) and (self.queue[k].addr is not None or self.queue[k] in UG[:c.n_dir]):
            k += 1
        self.queue[k:k] = rest
        staged = [u for u in staged if u not in rest]

        def reduce_pair():
            for j in range(4):
                e(f"ds_write_b128 {v_red}, {acc1.sub(4 * j, 4)} offset:{L_RED + 1024 * j}")
            e(f"v_xor_b32 {u0}, 8192, {v_red}")

        def reduce_read():
            for j in range(4):
                e(f"ds_read_b128 {acc1.sub(4 * j, 4)}, {u0} offset:{L_RED + 1024 * j}")
            for j in range(8):
                e(f"v_pk_add_f32 {acc0.sub(2 * j, 2)}, {acc0.sub(2 * j, 2)}, {acc1.sub(2 * j, 2)}")
        reduce_pair()
        self.barrier(release=UO + [xs])
        reduce_read()
        self.stamp("p2m")
        for j in range(8):
            e(f"v_pk_fma_f32 {x1.sub(2 * j, 2)}, {acc0.sub(2 * j, 2)}, {ga.sub(2 * j, 2)}, {x1.sub(2 * j, 2)}")
        sm, sq = acc1.sub(0, 4), acc1.sub(4, 4)
        for j in range(8):
            p = x1.sub(2 * j, 2)
            a, b = sm.sub(2 * (j & 1), 2), sq.sub(2 * (j & 1), 2)
            if j < 2:
                e(f"v_pk_add_f32 {a}, {p}, {x1.sub(2 * j + 4, 2)}")
                e(f"v_pk_mul_f32 {b}, {p}, {p}")
            else:
                if j >= 4:
                    e(f"v_pk_add_f32 {a}, {a}, {p}")
                e(f"v_pk_fma_f32 {b}, {p}, {p}, {b}")
        gr = acc1[8]
        e(f"""v_pk_add_f32 {sm.sub(0, 2)}, {sm.sub(0, 2)}, {sm.sub(2, 2)}
        v_pk_add_f32 {sq.sub(0, 2)}, {sq.sub(0, 2)}, {sq.sub(2, 2)}
        s_lshl_b32 {t0}, {s_TB}, 12
        v_add_f32 {sm[0]}, {sm[0]}, {sm[1]}
        v_add_f32 {sq[0]}, {sq[0]}, {sq[1]}
        s_add_u32 {t0}, {t0}, {WS_STATS}
        v_permlane32_swap_b32 {sm[0]}, {sq[0]}
        v_add_f32 {gr}, {sm[0]}, {sq[0]}
        v_min_u32 {gr}, -2, {gr}""")
        self.store2([f"buffer_store_dword {gr}, {v_l16}, {WS}, {s_st} offen" + "{f}"])
        sg = V.alloc(16)
        def commit2():
            for f in self.commit(staged, v_w16):
                f()
            assert all(u.addr is not None for u in staged), "staged units left"
            V.release(v_w16)
        if not c.commit_late:
            commit2()
        tm = self.v_tmp
        pre = [f"v_max3_u32 {tm}, {sg[0]}, {sg[1]}, {sg[2]}", f"v_max3_u32 {u0}, {sg[3]}, {sg[4]}, {sg[5]}",
               f"v_max3_u32 {tm}, {tm}, {sg[6]}, {sg[7]}", f"v_max3_u32 {u0}, {u0}, {sg[8]}, {sg[9]}",
               f"v_max3_u32 {tm}, {tm}, {sg[10]}, {sg[11]}", f"v_max3_u32 {u0}, {u0}, {sg[12]}, {sg[13]}",
               f"v_max3_u32 {tm}, {tm}, {sg[14]}, {sg[15]}", f"v_max_u32 {tm}, {tm}, {u0}", f"v_cmp_eq_u32 vcc, -1, {tm}"]
        self.poll([f"buffer_load_dwordx4 {sg.sub(4 * k, 4)}, {v_l16}, {WS}, {t0} offen offset:{1024 * k} sc1" for k in range(4)], [], pre=pre)
        self.stamp("pst")
        for k in range(4):
            e(f"v_pk_add_f32 {sg.sub(2 * k, 2)}, {sg.sub(2 * k, 2)}, {sg.sub(8 + 2 * k, 2)}")
        e(f"""v_pk_add_f32 {sg.sub(0, 2)}, {sg.sub(0, 2)}, {sg.sub(4, 2)}
        v_pk_add_f32 {sg.sub(2, 2)}, {sg.sub(2, 2)}, {sg.sub(6, 2)}
        v_pk_add_f32 {sg.sub(0, 2)}, {sg.sub(0, 2)}, {sg.sub(2, 2)}
        v_add_f32 {sg[0]}, {sg[0]}, {sg[1]}
        v_mov_b32 {sg[1]}, {sg[0]}
        v_permlane32_swap_b32 {sg[0]}, {sg[1]}""")
        pr = sg.sub(2, 2)
        for t in self.finish_stats(sg[0], sg[1], pr[0], pr[1], 512):
            e(t)
        for j in range(8):
            e(f"v_pk_fma_f32 {acc0.sub(2 * j, 2)}, {x1.sub(2 * j, 2)}, {pr}, {pr} op_sel:[0,0,1] op_sel_hi:[1,0,1]")
        for j in range(8):
            e(f"v_pk_fma_f32 {acc0.sub(2 * j, 2)}, {acc0.sub(2 * j, 2)}, {gB.sub(2 * j, 2)}, {gs.sub(2 * j, 2)}")
        for j in range(8):
            e(f"v_cvt_pk_bf16_f32 {acc1[j]}, {acc0[2 * j]}, {acc0[2 * j + 1]}")
        if c.sent:
            e.wait(vm=hinit["tok"])
        tok = self.store2([f"buffer_store_dwordx4 {acc1.sub(0, 4)}, {v_h2 if c.p3_16 else v_l16}, {WS}, {s_tile} offen" + "{f}",
                           f"buffer_store_dwordx4 {acc1.sub(4, 4)}, {v_h2 if c.p3_16 else v_l16}, {WS}, {s_tile} offen offset:{512 if c.p3_16 else 1024}" + "{f}"])
        V.release(sg, ga, gB, gs)
        if c.rot & 8:
            e(f"""s_lshr_b32 {t0}, {s_idx}, 3
            s_lshl_b32 {t0}, {t0}, {c.rsh}
            s_xor_b32 {t0}, {t0}, {s_hg}
            s_and_b32 {t1}, {t0}, 3
            s_lshl_b32 {s_rx[1]}, {t1}, 14
            s_and_b32 {t0}, {t0}, {4 if c.rsh else 0}
            s_lshl_b32 {t0}, {t0}, 15
            s_or_b32 {s_rx[0]}, {s_rx[1]}, {t0}""")
        else:
            e(f"s_mov_b32 {s_rx[0]}, 0\ns_mov_b32 {s_rx[1]}, 0")
        e(f"s_lshr_b32 {s_rx[2]}, {s_rx[0]}, 4\ns_lshr_b32 {s_rx[3]}, {s_rx[1]}, 4")
        cur_ao[0] = None
        self.cur_so = None
        assert all(u.next == 0 for u in UD)
        if c.commit_late:
            commit2()
        self.dma_all(limit=c.n_gamma)
        v_ta = V.alloc(3, align=1)
        v_p3f, v_p3s, v_hha, v_chk, v_act2 = [V.alloc() for _ in range(5)]
        if c.p3_16:
            v_tb = V.alloc(3, align=1)
            e(f"""v_bfe_u32 {u2}, {v_l}, 4, 1
            v_lshl_add_u32 {v_ta[0]}, {u2}, 9, {v_trn}
            v_lshl_add_u32 {v_ta[0]}, {v_hh}, 11, {v_ta[0]}
            v_xor_b32 {v_tb[0]}, 32, {v_ta[0]}""")
            for k in (1, 2):
                e(f"v_add_u32 {v_ta[k]}, {k * WIN}, {v_ta[0]}")
                e(f"v_add_u32 {v_tb[k]}, {k * WIN}, {v_tb[0]}")
        else:
            e(f"""v_and_b32 {u0}, 3, {v_l}
            v_lshlrev_b32 {u0}, 3, {u0}
            v_bfe_u32 {u1}, {v_l}, 2, 2
            v_bfe_u32 {u2}, {v_l}, 4, 1
            v_lshlrev_b32 {u3}, 6, {u1}
            v_add_u32 {u3}, {u3}, {u0}
            v_mul_u32_u24 {v_ta[0]}, {4096 + 32}, {u2}
            v_lshlrev_b32 {v_ta[1]}, 9, {v_hh}
            v_add3_u32 {v_ta[0]}, {v_ta[0]}, {v_ta[1]}, {u3}""")
            for k in (1, 2):
                e(f"v_add_u32 {v_ta[k]}, {k * WIN}, {v_ta[0]}")
        e(f"""s_lshl_b32 {t0}, {s_g}, 2
        s_add_u32 {t0}, {t0}, {s_w}
        s_lshl_b32 {t1}, {t0}, 15
        s_add_u32 {t1}, {t1}, {WS_H2}
        s_lshr_b32 {t2}, {s_idx}, 4
        s_mul_i32 {t2}, {t2}, {(2048 << c.gbit) if c.rot & 2 else 0}
        v_add_u32 {v_act}, {t1}, {v_l16}
        v_subrev_u32 {v_act2}, {t2}, {v_act}
        v_add_u32 {v_act}, {t2}, {v_act}
        s_lshl_b32 {t0}, {s_g}, 11
        s_lshl_b32 {t1}, {s_w}, 7
        s_add_u32 {t0}, {t0}, {t1}
        s_add_u32 {t0}, {t0}, {WS_FLAGS}
        v_and_b32 {u0}, 15, {v_l}
        v_lshlrev_b32 {u0}, 2, {u0}
        v_add_u32 {v_p3f}, {t0}, {u0}
        s_lshl_b32 {t1}, {s_m}, 2
        s_add_u32 {t0}, {t0}, {t1}
        v_mov_b32 {v_p3s}, {t0}""")
        e(f"""v_lshlrev_b32 {u0}, 9, {v_hh}
        s_lshl_b32 {t0}, {s_kh}, 11
        s_lshl_b32 {t1}, {s_kh}, 8
        s_add_u32 {t2}, {t0}, {t1}
        v_add3_u32 {v_s0[0]}, {v_trn}, {u0}, {t2}
        s_sub_u32 {t2}, {t0}, {t1}
        s_add_u32 {t2}, {t2}, 256
        v_add3_u32 {v_s1[0]}, {v_trn}, {u0}, {t2}""")
        for k in (1, 2):
            e(f"v_add_u32 {v_s0[k]}, {k * WIN}, {v_s0[0]}")
            e(f"v_add_u32 {v_s1[k]}, {k * WIN}, {v_s1[0]}")
        e(f"""s_mul_i32 {t0}, {s_TB}, 112
        s_mul_i32 {t1}, {s_kh}, 56
        s_add_u32 {t0}, {t0}, {t1}
        s_lshl_b32 {t0}, {t0}, 10
        s_add_u32 {t0}, {t0}, {WS_HH}
        v_add_u32 {v_hha}, {t0}, {v_l16}
        v_and_b32 {u1}, 7, {v_l}
        v_min_u32 {u1}, 6, {u1}
        v_lshlrev_b32 {u1}, 2, {u1}
        s_mul_i32 {t0}, {s_kh}, 28
        s_add_u32 {t0}, {t0}, {s_flb}
        v_add_u32 {v_pf}, {t0}, {u1}""")
        e.wait(vm=tok)
        self.flag_store(v_fl, F_H * 512)
        self.stamp("fh")
        if c.stop == "p2":
            return self.finish()
        actf += [A.alloc(4) for k in range(16)]
        e("s_mov_b32 s40, s36\ns_mov_b32 s41, s37\ns_mov_b32 s42, s38")
        if c.idle_pf:
            Li = e.newlabel("Lbusy")
            e(f"s_cmp_lt_u32 {s_m}, 14")
            e(f"s_cbranch_scc1 {Li}")
            e.begin_cond()
            e(f"""s_and_b32 {t0}, {s_g}, 1
            s_lshl_b32 {t0}, {t0}, 1
            s_add_u32 {t0}, {t0}, {s_m}
            s_sub_u32 {t0}, {t0}, 14""")
            if c.idle_pf & 1:
                e(f"""s_lshl_b32 {t1}, {t0}, 12
                s_add_u32 {t1}, {t1}, {c.idle_off - 128}
                v_lshl_add_u32 {v_dA}, v0, 4, {t1}
                s_mov_b32 s16, s24
                s_mov_b32 s17, s25
                s_mov_b32 s18, s26
                s_add_u32 s20, s24, 16384
                s_addc_u32 s21, s25, 0
                s_sub_u32 s22, s26, 16384""")
            if c.idle_pf & 2:
                e(f"""s_lshl_b32 {t0}, {t0}, 2
                s_add_u32 {t0}, {t0}, {s_w}
                s_and_b32 {t1}, {t0}, 1
                s_lshl_b32 {t1}, {t1}, 15
                s_lshr_b32 {t0}, {t0}, 1
                s_lshr_b32 {t2}, {t0}, 2
                s_mul_i32 {t2}, {t2}, 3
                s_add_u32 {t0}, {t0}, {t2}
                s_lshl_b32 {t0}, {t0}, 17
                s_add_u32 {t0}, {t0}, {t1}
                v_add_u32 {v_act}, {t0}, {v_l16}
                s_mov_b32 s40, s24
                s_mov_b32 s41, s25
                s_mov_b32 s42, s26""")
            e.end_cond(Li)
        accA = [V.alloc(16) for _ in range(4)]
        accB = [V.alloc(16) for _ in range(4)]
        steps = []
        for ph, (UU, accs) in enumerate(((UA, accA), (UB, accB))):
            for s in range(32):
                f = fr[len(steps) % 3]

                def reads(s=s, f=f, UU=UU):
                    ad = UU[s // 2].addr + (s % 2) * 2048
                    wi, o = divmod(ad, WIN)
                    L = []
                    for cb in range(4):
                        for rd in range(2):
                            L.append(f"ds_read_b64_tr_b16 {f[cb].sub(2 * rd, 2)}, {v_ta[wi]} offset:{o + rd * 1024 + (cb >> 1) * 256 + (cb & 1) * 32}")
                    return L
                mf = [f"v_mfma_f32_32x32x16_bf16 {accs[cb]}, {f[cb]}, {actf[s]}, {'0' if s == 0 else accs[cb]}" for cb in range(4)]
                d = dict(reads=reads, mfmas=mf, units=[UU[s // 2]])
                if c.p3_16:
                    def reads16(s=s, f=f, UU=UU):
                        L = []
                        for par in range(2):
                            for mat in range(2):
                                for rd in range(2):
                                    wi, o = divmod(UU[s // 2].addr + (s % 2) * 256 + mat * 4128 + rd * 1024, WIN)
                                    L.append(f"ds_read_b64_tr_b16 {f[2 * par + mat].sub(2 * rd, 2)}, {(v_ta, v_tb)[par][wi]} offset:{o}")
                        return L
                    mf = []
                    for par in range(2):
                        for mat in range(2):
                            for a in range(2):
                                ac = accs[2 * (s % 2) + par].sub(8 * mat + 4 * a, 4)
                                mf.append(f"v_mfma_f32_16x16x32_bf16 {ac}, {f[2 * par + mat]}, {actf[(s & ~1) + a]}, {'0' if s < 2 else ac}")
                    d = dict(reads=reads16, mfmas=mf, units=[UU[s // 2]], slots=c.slots16, rscale=0.5)
                if s % 4 == 0:
                    d["bar"], d["span"] = True, 4
                steps.append(d)
        red_unit = Unit("red", 16384, [])
        red_unit.addr = L_RED
        steps[0]["release"] = [red_unit]
        hx = [A.alloc(4) for _ in range(12)]
        actH = hx + [accA[k // 4].sub(4 * (k % 4), 4) for k in range(16)] + actf[:28]
        s4 = kloop(UD, actH, 1024, 56, base=64)
        for i in range(0, 28, 4):
            s4[i]["bar"], s4[i]["span"] = True, 4
        steps += s4
        stok = {}

        def glu(acc, imm, key):
            L = [f"v_mul_f32 {acc[v]}, {acc[v]}, {acc[v + 8]}" for v in range(8)]
            L += [f"v_cvt_pk_bf16_f32 {acc[8 + j]}, {acc[2 * j]}, {acc[2 * j + 1]}" for j in range(4)]
            if c.p3_16:
                L += [f"v_permlane32_swap_b32 {acc[8]}, {acc[10]}", f"v_permlane32_swap_b32 {acc[9]}, {acc[11]}"]

            def st():
                if c.hh_fast == 2 or (c.hh_fast == 1 and key == "B"):
                    stok[key] = self.store2([f"buffer_store_dwordx4 {acc.sub(8, 4)}, {v_l16}, {WS}, {s_hh} offen offset:{imm}" + "{f}"])
                else:
                    stok[key] = e(f"buffer_store_dwordx4 {acc.sub(8, 4)}, {v_hs if c.p3_16 else v_l16}, {WS}, {s_hh} offen offset:{imm} sc1")
            return L + [st]
        gA, gFA, gB, gFB, gHA, gHB = [Gate() for _ in range(6)]
        fill = (bgl("t3d", tch(WD)) if c.t3 & 4 else []) + [gA]
        for cb in range(4):
            fill += glu(accA[cb], 1024 * cb, "A")
        fill += [f"s_add_u32 {s_hh}, {s_hh}, 4096", gB]
        for cb in range(4):
            fill += glu(accB[cb], 1024 * cb, "B")
        issA, chkA = self.opt_check(v_pf, F_A * 512, v_chk)
        issB, chkB = self.opt_check(v_pf, F_B * 512, v_chk)

        def hook(i, f):
            steps[i].setdefault("pre", []).append(f)
        hook(33, gA.open)
        if c.sent & 1:
            hook(c.st_ca, lambda: (self.drain_to(fill, gB), fill.insert(0, gB), gHA.open(), self.stamp("ca")))
        else:
            hook(c.st_fa, lambda: (self.drain_to(fill, gB), fill.insert(0, gB), e.wait(vm=stok["A"]), self.flag_store(v_p3s, F_A * 512), self.stamp("fa")))
            hook(c.st_ia, issA)
            hook(c.st_ca, lambda: (chkA(), gHA.open(), self.stamp("ca")))
        if c.burst_b:
            hook(64, lambda: (gB.open(), self.drain_to(fill, None)))
        else:
            hook(65, gB.open)
        if c.burst_a:
            hook(33, lambda: (self.drain_to(fill, gB), fill.insert(0, gB)))
        if c.wb_at:
            def wb():
                Lw = e.newlabel("Lnowb")
                e(f"s_lshl_b32 {t0}, {s_idx}, 2\ns_add_u32 {t0}, {t0}, {s_w}\ns_cmp_lg_u32 {t0}, {c.wb_who}")
                e(f"s_cbranch_scc1 {Lw}")
                e.optional += 1
                e("buffer_wbl2 sc1")
                e.optional -= 1
                e.label(Lw)
            hook(c.wb_at, wb)
        if c.sent & 2:
            hook(c.st_cb, lambda: (self.drain_to(fill, None), gHB.open(), self.stamp("cb")))
        else:
            hook(c.st_fb, lambda: (self.drain_to(fill, None), e.wait(vm=stok["B"]), self.flag_store(v_p3s, F_B * 512), self.stamp("fb")))
            hook(c.st_ib, issB)
            hook(c.st_cb, lambda: (chkB(), gHB.open(), self.stamp("cb")))
        hl = act_loads(actf, v_act, [1024 * k for k in range(32)])
        hi = hl[c.act_lead:] + [gHA] + act_loads(actH[:28], v_hha, [(str(s_rx[2 if fb < 48 else 3]), fb * 1024, 0, 0) for fb in fbA]) + [gHB]
        hb = act_loads(actH[28:], v_hha, [(str(s_rx[2 if fb < 48 else 3]), fb * 1024, 0, 0) for fb in fbB])
        hook(c.st_cb, lambda: run(hb[:c.lead_b]))
        hi += hb[c.lead_b:]

        def need(i, n):
            def f():
                while len(hi) > n:
                    t = hi.pop(0)
                    if isinstance(t, Gate):
                        assert t.is_open, f"gate closed at step {i}"
                    else:
                        t()
            hook(i, f)
        total = len(hi)
        pos = {}
        k = c.act_lead
        seq = list(range(c.act_lead, 32)) + [None] + list(range(64 * 2, 64 * 2 + 28)) + [None] + list(range(64 * 2 + 28 + c.lead_b, 64 * 2 + 56))
        for n, q in enumerate(seq):
            if q is not None:
                st_i = (q & ~1 if c.p3_16 else q) if q < 32 else q // 2
                need(st_i, total - n - 1)
        for i in range(28):
            if c.sent & (1 if i < 14 else 2):
                hook(64 + i, lambda i=i: self.verify([(actH[2 * i + h], 1024 * fbs[2 * i + h]) for h in range(2)], v_hha))
                steps[64 + i]["resv"] = 3 if 6 <= i < 14 else 4
        Lidle, Ljoin = e.newlabel("Lidle"), e.newlabel("Lp4")
        if c.skip_idle:
            self.dma_flush()
            e(f"s_cmp_ge_u32 {s_m}, 14")
            e(f"s_cbranch_scc1 {Lidle}")
            n_p3 = len(e.out)
        self.loop_prologue(steps)
        self.poll([f"buffer_load_dword {u1}, {v_p3f}, {WS}, 0 offen offset:{F_H * 512} sc1"], [u1])
        self.stamp("ph")
        self.exp_delay("ph")
        self.lname = "G"
        run(hl[:c.act_lead])

        def g_rates(i, h):
            if any(p0 <= i < p1 for p0, p1 in c.pauses):
                return (c.g_hi[2] if i >= 64 else c.g_hi[i // 32], 0, 0)
            reg = min(i // 32, 2)
            if i >= c.st_cb:
                return (c.g_hi[2], c.g_end, c.g_end) if h else (0, c.g_dma[2], 0)
            return (c.g_hi[reg], c.g_mix[reg] if h else c.g_dma[reg], 0)
        self.mfma_loop(steps, fill, g_rates, rng=(0, 64), hi=hi)
        if c.skip_idle:
            body = [o.text for o in e.out[n_p3:] if isinstance(o, Ins)]
            alt, m0 = [], None
            for k, t in enumerate(body):
                if t.startswith("s_add_u32 m0") or (len(t.split()) > 1 and t.split()[1] == f"{self.s_so},"):
                    alt.append(t)
                elif t.endswith(" lds") and WD in t:
                    alt += ["s_nop 0", t]
            keep = []
            for k, t in enumerate(alt):
                if t.startswith("s_add_u32 m0") and any(u.startswith("s_add_u32 m0") for u in alt[k + 1:k + 3]) :
                    continue
                keep.append(t)
            alt = keep
            alt2 = [t for t in body if t.startswith(f"s_xor_b32 {s_ao},") or (t.startswith("buffer_load_dwordx4") and f" {v_hha}," in t)]
            rd = steps[64]["reads"]() + steps[65]["reads"]()
            Lw = Lidle + "_w"
            self.ool.append(f"{Lidle}:\n    s_waitcnt vmcnt(0) lgkmcnt(0)\n    s_barrier\n" + "".join(f"    {t}\n" for t in alt) +
                            f"    s_mov_b32 {self.s_spin}, 0\n{Lw}:\n    s_sleep 8\n    s_add_u32 {self.s_spin}, {self.s_spin}, 1\n    s_cmp_gt_u32 {self.s_spin}, {c.spin}\n"
                            f"    s_cbranch_scc1 Lexit\n    buffer_load_dword {v_chk}, {v_pf}, s[36:39], 0 offen offset:{F_A * 512} sc1\n    s_waitcnt vmcnt(0)\n"
                            f"    v_cmp_ne_u32 vcc, {s_tag}, {v_chk}\n    s_cbranch_vccnz {Lw}\n" + "".join(f"    {t}\n" for t in alt2) +
                            "    s_barrier\n" + "".join(f"    {t}\n" for t in rd) + f"    s_waitcnt vmcnt(0) lgkmcnt(0)\n    s_branch {Ljoin}\n")
            e.label(Ljoin)
        self.stamp("p3e")
        self.mfma_loop(steps, fill, g_rates, rng=(64, 92), hi=hi)
        self.stamp("p4e")
        self.barrier()
        reduce_pair()
        e(unpark("xres", u1))
        self.barrier()
        reduce_read()
        for j in range(8):
            e(f"v_pk_fma_f32 {x1.sub(2 * j, 2)}, {acc0.sub(2 * j, 2)}, {gb.sub(2 * j, 2)}, {x1.sub(2 * j, 2)}")
        for j in range(8):
            e(f"v_cvt_pk_bf16_f32 {acc1[j]}, {x1[2 * j]}, {x1[2 * j + 1]}")
        for a, b in ((0, 2), (1, 3), (4, 6), (5, 7)):
            e(f"v_permlane32_swap_b32 {acc1[a]}, {acc1[b]}")
        e(f"buffer_store_dwordx4 {acc1.sub(0, 4)}, {u1}, {OUT}, 0 offen{c.out_fl.replace('_', ' ')}")
        e(f"buffer_store_dwordx4 {acc1.sub(4, 4)}, {u1}, {OUT}, 0 offen offset:32{c.out_fl.replace('_', ' ')}")
        Lnb = e.newlabel("Lnobump")
        e(f"s_or_b32 {t0}, s2, {s_w}")
        e(f"s_cmp_lg_u32 {t0}, 0")
        e(f"s_cbranch_scc1 {Lnb}")
        xi = acc0.sub(0, 4)
        self.poll([f"buffer_load_dwordx4 {xi}, {v_l16}, {WS}, 0 offen offset:{WS_XID} sc1"], [xi[k] for k in range(4)],
                  pre=[f"v_and_b32 {xi[k]}, -8, {xi[k]}" for k in range(4)])
        e(f"""v_mov_b32 {u0}, 0
        s_mov_b64 exec, 1
        buffer_store_dword {self.v_tag}, {u0}, {WS}, 0 offen offset:{WS_E} sc1
        s_mov_b64 exec, -1""")
        e.label(Lnb)
        return self.finish()

    def finish(self):
        e, c = self.e, self.c
        if c.stamps:
            self.stamp("end")
            e(f"s_memrealtime {self.rt1}")
            e.wait_all_lg()
            t = self.v_tmp
            e("s_mov_b64 exec, 1")
            e(f"v_lshrrev_b32 {t}, 6, v0")
            e(f"v_lshlrev_b32 {t}, 6, {t}")
            e(f"s_lshl_b32 s3, s2, 8")
            e(f"v_add_u32 {t}, s3, {t}")
            e(f"v_add_u32 {t}, {WS_STAMP}, {t}")
            e(f"v_mov_b32 {self.v_tag}, {self.rt0[0]}")
            e(f"buffer_store_dword {self.v_tag}, {t}, s[36:39], 0 offen offset:60")
            e(f"v_mov_b32 {self.v_tag}, {self.rt1[0]}")
            e(f"buffer_store_dword {self.v_tag}, {t}, s[36:39], 0 offen offset:56")
            for k in range(len(self.stamp_names)):
                r = self.stamp_regs[k]
                e(f"s_sub_u32 s3, {r[0]}, {self.rt0[0] if self.stamp_names[k][0] == 'r' and c.rt else self.stamp_regs[0][0]}")
                e(f"v_mov_b32 {self.v_tag}, s3")
                e(f"buffer_store_dword {self.v_tag}, {t}, s[36:39], 0 offen offset:{4 * k}")
        if c.dbg:
            e("s_memtime s[4:5]\ns_memrealtime s[6:7]")
            e.wait_all_lg()
            e(f"""s_sub_u32 s4, s4, {self.d0[0]}
            s_sub_u32 s5, s6, {self.d1[0]}
            v_mov_b32 v2, s4
            v_mov_b32 v3, s5
            s_and_b32 s8, s2, 7
            s_lshl_b32 s8, s8, 3
            v_mov_b32 v4, s8
            s_mov_b64 exec, 1
            global_store_dwordx2 v4, v[2:3], {self.dp}""")
        e.label("Lexit")
        e("s_endpgm")
        return e.text() + "".join(self.ool) + "Lcode_end:\n"


def kernel_file(body, hdr):
    k = NAME + "_kernel"
    return f"""{hdr}; @launch grid=(256,1,1) block=(256,1,1) lds=163840
.amdgcn_target "amdgcn-amd-amdhsa--gfx950"
.text
.globl {k}
.p2align 8
.type {k},@function
{k}:
{body}.section .rodata,"a"
.p2align 6
.amdhsa_kernel {k}
  .amdhsa_next_free_vgpr 512
  .amdhsa_next_free_sgpr 102
  .amdhsa_accum_offset 256
  .amdhsa_group_segment_fixed_size 0
  .amdhsa_kernarg_size 96
  .amdhsa_user_sgpr_count 2
  .amdhsa_user_sgpr_kernarg_segment_ptr 1
  .amdhsa_system_sgpr_workgroup_id_x 1
.end_amdhsa_kernel
"""


if __name__ == "__main__":
    ap = argparse.ArgumentParser()
    ap.add_argument("-o", default="k.s")
    ap.add_argument("--stop")
    ap.add_argument("--stamps")
    ap.add_argument("--log", action="store_true")
    ap.add_argument("--set", nargs="*", default=[])
    a = ap.parse_args()
    c = Cfg()
    c.stop = a.stop
    c.stamps = a.stamps.split(",") if a.stamps else None
    for kv in a.set:
        k, v = kv.split("=")
        setattr(c, k, eval(v))
    g = Gen(c)
    body = g.build()
    hdr = "; stamps: " + " ".join(g.stamp_names) + "\n" if c.stamps else ""
    open(a.o, "w").write(kernel_file(body, hdr))
    print("instrs", g.e.n_ins, "nops", g.e.nops, "barriers", g.nbar, "vgpr hi", g.V.hi, "agpr hi", g.A.hi, "sgpr hi", g.S.hi)
    if a.log:
        print("\n".join(g.log))
```

```python
import sys, math, argparse, struct
sys.path.insert(0, "gen")
from emit import *

NAME = "adaLN_cond__sliding_local_dilated__glu_gated_bilinear__prompt"

WS_E, WS_XID, WS_FLAGS, WS_G, WS_STATS = 0x0, 0x400, 0x1000, 0x10000, 0x80000
WS_O, WS_H2, WS_HH, WS_STAMP, WS_SIZE = 0x100000, 0x100000, 0x500000, 0xC00000, 0xD00000
GQ = 0x3000
GCOPY = 4 * GQ
NCOPY = 4
F_O, F_H, F_A, F_B = 0, 1, 2, 3
L_TBL2 = 0
L_PART = 1024
L_TBL = 2048
L_K = L_TBL
HB = 80 * 272
L_H0 = L_K + 80 * 144
L_V = L_H0
L_H1 = L_H0 + HB
L_RING = L_H1 + HB
L_END = 163840
L_RED = L_TBL
SLOTS = 5
WIN = 61440


def f2u(x):
    return struct.unpack("<I", struct.pack("<f", x))[0]


class Cfg:
    mimic = True
    stamps = None
    stop = None
    force_slow = False
    hh_sc1 = True
    preread = True
    spin = 1 << 16
    dma_every = 2
    pre_chunks = 4
    nx_first = 8
    nw_first = 0
    x_rate0 = 0.06
    x_rate = 1 / 12
    pre_rate = 1 / 14
    dma_hop1 = 8
    dma_hop2 = 8
    dma_hop3 = 8
    exp_nodma = False
    exp_skip = ''
    exp_nohh = False
    exp_noh2 = False
    act_fl = ' sc1'
    code_pf = True
    touch = 1
    tlb = 0
    touchq = 0
    mall_q = True
    t3 = 7
    n_pre = 15
    n_alpha, n_beta, n_gamma = 6, 8, 6
    lead_b = 12
    pauses = ()
    q_dma, q_dma0, q_stage = 0.75, 0, 0
    g_hi = (0.27, 0.3, 0.5)
    g_mix = (0.3, 0.15, 0.5)
    g_dma = (0.34, 0.4, 0.5)
    pre_tiles = 2
    pf_first = True
    p3_16 = True
    slots16 = 3
    q_slots = 4
    fslots16 = 2
    q_fill = 3
    rot = 11
    rsh = 1
    gbit = 2
    exp_stagger = ()
    skip_idle = True
    rt = False
    psleep = 0
    p2_lead = 10
    sent = 0
    commit_late = True
    att_n = 1000
    dbg = False
    out_fl = ''
    nq_k = 1
    w_first = 24
    mallq_early = False
    np0 = 4
    n_rate = 0.12
    st_g2 = 14
    code_pf0 = True
    nx_pre = 4
    idle_pf = 0
    idle_off = 65536
    burst_a = False
    burst_b = True
    g_end = 0.4
    bg_early = 1
    bg_n = 5
    q_dma1 = 26
    uo_late = True
    hh_fast = 0
    wb_at = 0
    wb_who = 60
    h_full = True
    q_span = 2
    tq2 = 9
    q_hi, q_hi0 = 0.3, 26
    solo_reads = 0
    mall_pf = 2
    dma_p1 = 2
    dma_p3 = 3
    dma_p4 = 2
    dma_att = 0
    act_lead = 8
    dma_p2 = 0
    n_dir, n_stage = 8, 4
    stage_p1 = 0
    att_every = 20
    post_every = 0
    hi3, mix3 = 3, 3
    hi4, mix4 = 2, 2
    st_fa, st_ia, st_ca = 47, 50, 53
    st_fb, st_ib, st_cb = 74, 76, 78


class Lds:
    def __init__(self):
        self.free = []

    def add(self, a, n):
        for iv in self.free:
            assert a + n <= iv[0] or a >= iv[1], "double free"
        self.free.append([a, a + n])
        self.free.sort()
        m = []
        for iv in self.free:
            if m and m[-1][1] == iv[0]:
                m[-1][1] = iv[1]
            else:
                m.append(iv)
        self.free = m

    def alloc(self, n, span=0):
        for iv in self.free:
            a = iv[0]
            if iv[1] - a >= n:
                iv[0] += n
                if iv[0] == iv[1]:
                    self.free.remove(iv)
                return a
        return None


class Gate:
    is_open = False

    def open(self):
        self.is_open = True


class Mark:
    pass


class Skip:
    def __init__(self, n):
        self.n = n


class Unit:
    def __init__(self, name, size, dmas):
        self.name, self.size, self.dmas = name, size, dmas
        self.addr = None
        self.next = 0
        self.tok = None
        self.ready = False
        self.released = False


class Gen:
    def __init__(self, cfg):
        self.c = cfg
        self.e = Emit()
        self.V = RegAlloc("v", 256, first=1)
        self.A = RegAlloc("a", 256)
        self.S = RegAlloc("s", 102, first=44)
        self.lds = Lds()
        self.queue = []
        self.stamp_names = []
        self.nbar = 0
        self.cur_so = None
        self.dq = []
        self.log = []
        self.ool = []
        self.stq = []
        self.cur_so2 = None
        self.cur_m0 = None
        self.lname = 'L'

    def dma_prepare(self):
        while self.queue and self.queue[0].next >= len(self.queue[0].dmas):
            self.queue.pop(0)
        if not self.queue:
            return []
        u = self.queue[0]
        if u.addr is None:
            u.addr = self.lds.alloc(u.size)
            if u.addr is None:
                return []
        srd, vreg, soff, imm, loff = u.dmas[u.next]
        u.next += 1
        e = self.e
        L = []
        m0v = (str(getattr(u, "wreg", self.s_w1k)), u.addr + loff - imm)
        if m0v != self.cur_m0:
            L.append(lambda: e(f"s_add_u32 m0, {m0v[0]}, {m0v[1]}"))
            self.cur_m0 = m0v
        if callable(soff):
            soff = soff()
        if soff and soff != self.cur_so:
            for t in self.so_code(self.s_so, soff):
                L.append(lambda t=t: e(t))
            self.cur_so = soff
        so = self.s_so if soff else 0
        im = f" offset:{imm}" if imm else ""

        if (self.c.exp_nodma and getattr(self, "in_loop", False)) or u.name[0] in self.c.exp_skip:
            u.tok = u.tok or 0
            return [lambda: None]

        def ld():
            u.tok = e(f"buffer_load_dwordx4 {vreg}, {srd}, {so} offen{im} lds")
            u.pending_piece = False
        u.pending_piece = True
        L.append(ld)
        return L

    def so_code(self, d, soff):
        if not isinstance(soff, tuple):
            return [f"s_mov_b32 {d}, {soff}"]
        r, m, k = soff
        if m == "x":
            return [f"s_xor_b32 {d}, {r}, {k}"]
        if m == 1:
            return [f"s_add_u32 {d}, {r}, {k}"]
        return [f"s_mul_i32 {d}, {r}, {m}"] + ([f"s_add_u32 {d}, {d}, {k}"] if k else [])

    def stage_prepare(self):
        while self.stq and self.stq[0].next >= len(self.stq[0].dmas):
            self.stq.pop(0)
        if not self.stq:
            return []
        u = self.stq[0]
        srd, vreg, soff, imm, loff = u.dmas[u.next]
        r = self.A.alloc(4)
        u.sregs = getattr(u, "sregs", []) + [(r, loff)]
        u.next += 1
        e = self.e
        L = []
        if soff != self.cur_so2:
            L.append(lambda: e(f"s_mov_b32 {self.s_so2}, {soff}"))
            self.cur_so2 = soff
        im = f" offset:{imm}" if imm else ""
        L.append(lambda: e(f"buffer_load_dwordx4 {r}, {vreg}, {srd}, {self.s_so2} offen{im}"))
        return L

    def stage_step(self):
        self.dma_flush()
        L = self.stage_prepare()
        for f in L:
            f()
        return bool(L)

    def commit(self, units, v_w16):
        L = []
        for u in units:
            if u.addr is not None:
                continue
            assert u.next >= len(u.dmas), "commit of a unit that is not fully staged"
            u.addr = self.lds.alloc(u.size)
            if u.addr is None:
                break
            for r, loff in u.sregs:
                def w(u=u, r=r, loff=loff):
                    wi, o = divmod(u.addr + loff, WIN)
                    u.ltok = self.e(f"ds_write_b128 {v_w16[wi]}, {r} offset:{o}")
                    self.A.release(r)
                L.append(w)
            u.staged = True
        return L

    def dma_flush(self):
        while self.dq:
            self.dq.pop(0)()

    def dma_step(self):
        self.dma_flush()
        L = self.dma_prepare()
        for f in L:
            f()
        return bool(L)

    def dma_all(self, limit=10 ** 9):
        n = 0
        while n < limit and self.dma_step():
            n += 1
        return n

    def barrier(self, ready=(), release=(), lg=sys.maxsize, tag=""):
        e = self.e
        ready = [u for u in ready if not u.ready]
        late = 0
        for u in ready:
            if getattr(u, "staged", False):
                u.ready = True
                lg = max(lg or 0, u.ltok)
        ready = [u for u in ready if not u.ready]
        for u in ready:
            if getattr(u, "pending_piece", False):
                self.dma_flush()
            while u.next < len(u.dmas):
                assert self.dma_step(), f"LDS ring deadlock at unit {u.name}"
                late += 1
        self.stamp(f"b{self.nbar}a")
        if ready:
            tk = max(u.tok for u in ready)
            self.log.append(f"bar {self.nbar} {tag}: ready {ready[0].name}..{ready[-1].name} late={late} younger_vm={e.vm_issued - tk} ins={e.n_ins}")
            e.wait(vm=tk)
        self.stamp(f"b{self.nbar}v")
        if lg is not None:
            e.wait(lg=min(lg, e.lg_issued))
        e("s_barrier")
        self.stamp(f"b{self.nbar}e")
        self.nbar += 1
        for u in ready:
            u.ready = True
        for u in release:
            if not u.released:
                u.released = True
                self.lds.add(u.addr, u.size)

    def stamp(self, name):
        if self.c.stamps and (name in self.c.stamps or self.c.stamps == "all" and len(self.stamp_names) < 15 or name in ("t0", "end")):
            r = self.stamp_regs[len(self.stamp_names)]
            self.e(f"s_memtime {r}")
            self.stamp_names.append(name)
            if self.c.rt and name not in ("t0", "end"):
                self.e(f"s_memrealtime {self.stamp_regs[len(self.stamp_names)]}")
                self.stamp_names.append("r" + name)

    def interleave(self, main, fill, ratio):
        acc = 0.0
        fill = list(fill)
        for m in main:
            m() if callable(m) else self.e(m)
            acc += ratio
            while acc >= 1.0 and fill:
                f = fill.pop(0)
                f() if callable(f) else self.e(f)
                acc -= 1.0
        return fill

    def bg_on(self, every, limit, stage=True, nmax=1000):
        e = self.e
        st = dict(n=0, busy=False)

        def hook():
            if st["busy"] or e.in_cond or e.hist[-1].op.startswith(("s_cmp", "s_cbranch")):
                return
            st["n"] += 1
            if st["n"] >= every and st.get("c", 0) < nmax:
                st["c"] = st.get("c", 0) + 1
                st["n"] = 0
                st["busy"] = True
                lim = limit[0]
                if not (lim.next < len(lim.dmas) and self.dma_step()) and stage:
                    self.stage_step()
                st["busy"] = False
        e.hook = hook if every else None

    def bg_off(self):
        self.e.hook = None

    def exp_delay(self, where):
        n = dict(self.c.exp_stagger).get(where, 0)
        if n:
            e = self.e
            L = e.newlabel("Lst")
            e("s_bitcmp1_b32 s2, 7")
            e(f"s_cbranch_scc0 {L}")
            for _ in range(n):
                e("s_sleep 8")
            e.label(L)

    def bf16r(self, d, s):
        return [f"v_cvt_pk_bf16_f32 {d}, {s}, {s}", f"v_and_b32 {d}, 0xffff0000, {d}"]

    def poll(self, loads, checks, pre=None):
        e = self.e
        self.dma_flush()
        L = e.newlabel("Lpoll")
        e(f"s_mov_b32 {self.s_spin}, 0")
        if self.c.psleep:
            L2 = e.newlabel("Lfirst")
            e(f"s_branch {L2}")
        e.label(L)
        if self.c.psleep:
            e(f"s_sleep {self.c.psleep}")
            e.label(L2)
        e(f"s_add_u32 {self.s_spin}, {self.s_spin}, 1")
        e(f"s_cmp_gt_u32 {self.s_spin}, {self.c.spin}")
        e("s_cbranch_scc1 Lexit")
        for t in loads:
            e(t)
        e.force_vm0()
        for t in pre or []:
            e(t)
        if not checks:
            pass
        elif len(checks) == 1:
            e(f"v_cmp_ne_u32 vcc, {self.s_tag}, {checks[0]}")
        else:
            t = self.v_tmp
            e(f"v_xor_b32 {t}, {checks[0]}, {self.v_tag}")
            rest = list(checks[1:])
            for r in rest:
                e(f"v_xor_b32 {r}, {r}, {self.v_tag}")
            while len(rest) >= 2:
                e(f"v_or3_b32 {t}, {t}, {rest.pop()}, {rest.pop()}")
            if rest:
                e(f"v_or_b32 {t}, {t}, {rest.pop()}")
            e(f"v_cmp_ne_u32 vcc, 0, {t}")
        e(f"s_cbranch_vccnz {L}")

    def store2(self, fmt_list):
        e = self.e
        Ls, Lj = e.newlabel("Lslow"), e.newlabel("Ljoin")
        e(f"s_cmp_eq_u32 {self.s_mode}, 0")
        e(f"s_cbranch_scc1 {Ls}")
        save = (e.vm_issued, e.vm_done, list(e.hist))
        n0 = len(e.out)
        tok = None
        for t in fmt_list:
            tok = e(t.format(f="")) or tok
        for o in e.out[n0:]:
            assert o.op != "s_waitcnt", "operand of mode-dependent store not ready"
        e(f"s_branch {Lj}")
        e.label(Ls)
        e.vm_issued, e.vm_done, e.hist = save
        for t in fmt_list:
            e(t.format(f=" sc1"))
        e.label(Lj)
        return tok

    def flag_store(self, vaddr, off):
        e = self.e
        e("s_mov_b64 exec, 1")
        self.store2([f"buffer_store_dword {self.v_tag}, {vaddr}, s[36:39], 0 offen offset:{off}" + "{f}"])
        e("s_mov_b64 exec, -1")

    def loop_prologue(self, steps, PD=2):
        for i in range(min(PD, len(steps))):
            self._bar_for(steps, i, -1)
            steps[i]["tok"] = [self.e(r) for r in steps[i]["reads"]()][-1]

    def _bar_for(self, steps, i, cur):
        st = steps[i]
        need = [u for u in st["units"] if not u.ready]
        if st.get("bar") or need:
            if st.get("prebar"):
                st["prebar"]()
            k = i
            ready = []
            for k in range(i, min(i + st.get("span", 1), len(steps))):
                ready += [u for u in steps[k]["units"] if u not in ready]
            live = {id(u) for s2 in steps[cur + 1:] for u in s2["units"]}
            dead = [u for s2 in steps[:cur + 1] for u in s2["units"] if id(u) not in live] + st.get("release", [])
            self.barrier(ready=ready, release=dead, lg=st["lg"]() if st.get("lg") else None, tag=f"step{i}")
            if st.get("postbar"):
                st["postbar"]()

    def mfma_loop(self, steps, fill, rates, PD=2, rng=None, hi=None):
        e = self.e
        cnt = 0
        self.in_loop = True
        a, b = rng or (0, len(steps))
        hi = hi if hi is not None else []
        cred = [0.0, 0.0, 0.0]
        for i in range(a, b):
            st = steps[i]
            nxt = steps[i + PD] if i + PD < len(steps) else None
            rq = []
            nm = len(st["mfmas"])
            self.stamp(f"{getattr(self, 'lname', 'L')}{i}")
            for j, mf in enumerate(st["mfmas"]):
                if j == 0:
                    for f in st.get("pre", []):
                        f()
                    vm = None
                    for m2 in st["mfmas"][:st.get("wspan", 2)]:
                        for r in Ins(m2).src:
                            t = e.pend.get(r)
                            if t and t[0] == "vm":
                                vm = max(vm or 0, t[1])
                    e.wait(vm=vm, lg=st["tok"])
                e(mf)
                cnt += 1
                n0 = e.n_ins
                if j == 0 and nxt:
                    self._bar_for(steps, i + PD, i)
                    rq = list(nxt["reads"]())
                while fill and (isinstance(fill[0], Mark) or (isinstance(fill[0], Gate) and fill[0].is_open)):
                    fill.pop(0)
                if fill and getattr(fill[0], "solo", False) and j < nm - 1 and e.n_ins == n0:
                    fill.pop(0)()
                    for _ in range(min(self.c.solo_reads, len(rq))):
                        nxt["tok"] = e(rq.pop(0))
                    continue
                k = math.ceil(len(rq) / (nm - j))
                for _ in range(k):
                    tk = e(rq.pop(0))
                    nxt["tok"] = tk
                budget = st.get("slots", SLOTS) - ((1 + (steps[i + 1].get("resv", 0) if i + 1 < len(steps) else 0)) if j == nm - 1 else 0)
                while hi and isinstance(hi[0], Gate) and hi[0].is_open:
                    hi.pop(0)
                hi_ok = bool(hi) and not isinstance(hi[0], Gate)
                hr, dr, sr = [x * st.get("rscale", 1.0) for x in rates(i, hi_ok)]
                cred[0] = min(cred[0] + hr, 1.9) if hi_ok else 0.0
                cred[1] = min(cred[1] + dr, 1.9)
                cred[2] = min(cred[2] + sr, 1.9)
                if hi_ok and cred[0] >= 0.999 and (e.n_ins - n0 < budget or cred[0] >= 1.5):
                    cred[0] -= 1.0
                    hi.pop(0)()
                elif not self.dq:
                    if cred[1] >= 0.999:
                        self.dq = self.dma_prepare()
                        if self.dq:
                            cred[1] -= 1.0
                    if not self.dq and cred[2] >= 0.999:
                        self.dq = self.stage_prepare()
                        if self.dq:
                            cred[2] -= 1.0
                while e.n_ins - n0 < budget and self.dq:
                    self.dq.pop(0)()
                if "fslots" in st:
                    budget -= st["slots"] - st["fslots"]
                while e.n_ins - n0 < budget and fill:
                    if isinstance(fill[0], Gate):
                        if not fill[0].is_open:
                            break
                        fill.pop(0)
                        continue
                    if isinstance(fill[0], Mark):
                        fill.pop(0)
                        continue
                    if isinstance(fill[0], Skip):
                        fill[0].n -= 1
                        if fill[0].n <= 0:
                            fill.pop(0)
                        break
                    if getattr(fill[0], "solo", False):
                        break
                    f = fill.pop(0)
                    f() if callable(f) else e(f)
        self.dma_flush()

    def verify(self, frags, vaddr):
        e = self.e
        tm, t2 = self.v_tmp, self.v_tmp2

        def chk():
            L = []
            src = []
            for k, (r, o) in enumerate(frags):
                if r.kind == "a":
                    d = (tm, t2)[k]
                    L.append(f"v_accvgpr_read_b32 {d}, {r[0]}")
                    src.append(d)
                else:
                    src.append(r[0])
            if len(src) == 2:
                L.append(f"v_max_u32 {tm}, {src[0]}, {src[1]}")
                src = [tm]
            L.append(f"v_cmp_eq_u32 vcc, -1, {src[0]}")
            return L
        Ls, Lb = e.newlabel("Lretry"), e.newlabel("Lback")
        for t in chk():
            e(t)
        e(f"s_cbranch_vccnz {Ls}")
        e.label(Lb)
        ld = "".join(f"    s_mov_b32 {self.s_rt}, {o}\n    buffer_load_dwordx4 {r}, {vaddr}, s[36:39], {self.s_rt} offen sc1\n" for r, o in frags)
        ck = "".join(f"    {t}\n" for t in chk())
        self.ool.append(f"""{Ls}:
    s_mov_b32 {self.s_spin}, 0
{Ls}_1:
    s_add_u32 {self.s_spin}, {self.s_spin}, 1
    s_cmp_gt_u32 {self.s_spin}, {self.c.spin}
    s_cbranch_scc1 Lexit
{ld}    s_waitcnt vmcnt(0)
{ck}    s_cbranch_vccnz {Ls}_1
    s_branch {Lb}
""")

    def opt_check(self, vaddr, off, reg):
        e = self.e
        box = {}

        def issue():
            box["tok"] = e(f"buffer_load_dword {reg}, {vaddr}, s[36:39], 0 offen offset:{off} sc1")

        def check():
            Ls, Lb = e.newlabel("Lretry"), e.newlabel("Lback")
            e(f"v_cmp_ne_u32 vcc, {self.s_tag}, {reg}")
            e(f"s_cbranch_vccnz {Ls}")
            e.label(Lb)
            self.ool.append(f"""{Ls}:
    s_mov_b32 {self.s_spin}, 0
{Ls}_1:
    s_add_u32 {self.s_spin}, {self.s_spin}, 1
    s_cmp_gt_u32 {self.s_spin}, {self.c.spin}
    s_cbranch_scc1 Lexit
    buffer_load_dword {reg}, {vaddr}, s[36:39], 0 offen offset:{off} sc1
    s_waitcnt vmcnt(0)
    v_cmp_ne_u32 vcc, {self.s_tag}, {reg}
    s_cbranch_vccnz {Ls}_1
    s_branch {Lb}
""")
        return issue, check

    def drain_to(self, fill, mark):
        if mark is not None and mark not in fill:
            return
        while fill:
            f = fill.pop(0)
            if f is mark:
                return
            if isinstance(f, Gate):
                assert f.is_open
            elif not isinstance(f, (Mark, Skip)):
                f() if callable(f) else self.e(f)

    def finish_stats(self, sm, sq, rho, nmr, n):
        L = [f"v_mul_f32 {sm}, 0x{f2u(1.0 / n):08x}, {sm}",
             f"v_mul_f32 {sq}, 0x{f2u(1.0 / n):08x}, {sq}",
             f"v_fma_f32 {sq}, -{sm}, {sm}, {sq}",
             f"v_max_f32 {sq}, 0, {sq}"]
        if self.c.mimic:
            L += self.bf16r(sq, sq)
            L += [f"v_add_f32 {sq}, 0x{f2u(1e-5):08x}, {sq}"]
            L += self.bf16r(sq, sq)
            L += [f"v_sqrt_f32 {sq}, {sq}"]
            L += self.bf16r(sm, sm)
            L += self.bf16r(sq, sq)
            L += [f"v_rcp_f32 {rho}, {sq}"]
        else:
            L += [f"v_add_f32 {sq}, 0x{f2u(1e-5):08x}, {sq}", f"v_rsq_f32 {rho}, {sq}"]
        L += [f"v_mul_f32_e64 {nmr}, -{sm}, {rho}"]
        return L

    def build(self):
        c, e, V, A, S = self.c, self.e, self.V, self.A, self.S
        global L_TBL, L_K, L_H0, L_V, L_H1, L_RING, L_RED
        if c.h_full:
            L_H0 = 2048
            L_H1 = L_H0 + HB
            L_V = L_H0 + 2 * HB
            L_K = L_V - 80 * 144
            L_TBL = L_H0 + 4 * HB
            L_RING = L_TBL + 4096
            L_RED = L_K
            LH = [L_H0 + k * HB for k in range(4)]
        else:
            LH = [L_H0, L_H1, L_H0, L_H1]
        X, WQ, WO, WG, WU, WD, WM, OUT, WS, CC = [f"s[{4 + 4 * i}:{7 + 4 * i}]" for i in range(10)]
        e("s_cmp_ge_u32 s2, 256")
        e("s_cbranch_scc1 Lexit")
        if c.stamps:
            self.stamp_regs = [S.alloc(2) for _ in range(min(14, len(c.stamps) * (2 if c.rt else 1) + 2))]
            self.rt0, self.rt1 = S.alloc(2), S.alloc(2)
            e(f's_memrealtime {self.rt0}')
        self.stamp("t0")
        if c.dbg:
            self.d0, self.d1, self.dp = S.alloc(2), S.alloc(2), S.alloc(2)
            e(f"s_memtime {self.d0}\ns_memrealtime {self.d1}\ns_load_dwordx2 {self.dp}, s[0:1], 80")
        srds = {0: (0, 2048 * 1024), 6: (64, 512 * 6144), 9: (56, 1024), 8: (88, WS_SIZE), 1: (8, 512 * 3072), 2: (16, 512 * 1024),
                3: (32, 512 * 3584), 4: (40, 512 * 3584), 5: (48, 1792 * 1024), 7: (72, 2048 * 1024)}

        def srd_ptr(i):
            e(f"s_load_dwordx2 s[{4 + 4 * i}:{5 + 4 * i}], s[0:1], {srds[i][0]}")

        def srd_words(i):
            e(f"s_mov_b32 s{6 + 4 * i}, {srds[i][1]}")
            e(f"s_mov_b32 s{7 + 4 * i}, 0x20000")
        for i in (0, 6, 9, 8):
            srd_ptr(i)
        sa = lambda: S.alloc(1)
        s_w, s_tb, s_kh, s_g, s_m, s_hg, s_TB = [sa() for _ in range(7)]
        self.s_w1k, self.s_so, self.s_spin, self.s_tag, self.s_mode, self.s_so2 = [sa() for _ in range(6)]
        s_w1k, s_tag = self.s_w1k, self.s_tag
        t0, t1, t2, t3 = [sa() for _ in range(4)]
        s_idx, s_col0, s_flb, s_tile, s_hh = sa(), sa(), sa(), sa(), sa()
        v_l, v_t, v_hh = V.alloc(), V.alloc(), V.alloc()
        self.v_tmp, self.v_tmp2 = V.alloc(), V.alloc()
        self.s_rt = Reg('s', 3, 1)
        self.v_tag = V.alloc()
        u0, u1, u2, u3 = [V.alloc() for _ in range(4)]
        v_dq, v_dw, v_dd, v_dA = [V.alloc() for _ in range(4)]
        v_fl, v_l16, v_trn = V.alloc(), V.alloc(), V.alloc()
        a_dummy = A.alloc_top(4)
        a_ones = A.alloc_top(4)
        hinit = {}
        v_c, v_wm, v_x = V.alloc(), V.alloc(), V.alloc()
        e(f"""s_and_b32 {t3}, s2, 7
        s_lshr_b32 {s_idx}, s2, 3
        s_lshr_b32 {t0}, {s_idx}, 3
        s_lshl_b32 {t0}, {t0}, 6
        s_lshl_b32 {t1}, {t3}, 8
        s_add_u32 {t0}, {t0}, {t1}
        s_sub_u32 {t0}, {t0}, 16
        v_lshrrev_b32 {u2}, 6, v0
        v_mul_u32_u24 {u0}, 20, {u2}
        v_bfe_u32 {u1}, v0, 4, 2
        v_add3_u32 {u0}, {u0}, {u1}, {t0}
        v_and_b32 {u1}, 15, v0
        v_lshlrev_b32 {u0}, 10, {u0}
        v_lshl_add_u32 {v_x}, {u1}, 4, {u0}""")
        srd_words(0)
        s_rx = [sa() for _ in range(4)]
        pre2 = f"""s_min_u32 {t0}, {s_idx}, 23
        s_lshr_b32 {t1}, {t0}, 2
        s_lshl_b32 {t1}, {t1}, 3
        s_add_u32 {s_col0}, {t1}, {t3}
        s_and_b32 {t0}, {t0}, 3
        s_lshl_b32 {t0}, {t0}, 7
        v_lshrrev_b32 {u0}, 3, v0
        v_add_u32 {u0}, {t0}, {u0}
        v_lshlrev_b32 {v_c}, 1, {u0}
        v_mul_u32_u24 {v_wm}, 6144, {u0}
        v_and_b32 {u1}, 7, v0
        v_lshlrev_b32 {u1}, 4, {u1}
        s_lshl_b32 {t0}, {s_col0}, 7
        v_add3_u32 {v_wm}, {v_wm}, {u1}, {t0}"""
        pre3 = f"""v_readfirstlane_b32 {s_w}, {u2}
        v_and_b32 {v_l}, 63, v0
        v_and_b32 {v_t}, 31, v0
        v_lshrrev_b32 {v_hh}, 5, {v_l}
        s_lshr_b32 {t0}, {s_idx}, 4
        s_lshl_b32 {s_g}, {t3}, 1
        s_add_u32 {s_g}, {s_g}, {t0}
        s_and_b32 {s_m}, {s_idx}, 15
        s_and_b32 {s_hg}, {s_m}, 7
        s_and_b32 {s_tb}, {s_w}, 1
        s_lshr_b32 {s_kh}, {s_w}, 1
        s_lshl_b32 {s_w1k}, {s_w}, 10
        s_lshl_b32 {s_TB}, {s_g}, 2
        s_lshr_b32 {t0}, {s_m}, 3
        s_lshl_b32 {t0}, {t0}, 1
        s_add_u32 {s_TB}, {s_TB}, {t0}
        s_add_u32 {s_TB}, {s_TB}, {s_tb}"""
        cv = V.alloc(4)
        wmv = V.alloc(16)
        XN = [[None] * 4 for _ in range(5)]
        xn_all = V.alloc_top(184)
        for i in range(5):
            for ch in range(4):
                XN[i][ch] = xn_all.sub((((ch + 3) % 4) * 5 + i) * 8, 8)
        def lines(srd, n, base_code, stride=128):
            return base_code + [f"v_mul_u32_u24 {u0}, {stride}, {v_l}", f"v_cmp_le_u32 vcc, {n}, {v_l}", f"v_add_u32 {u0}, {t0}, {u0}",
                                f"v_cndmask_b32 {u0}, {u0}, -1, vcc",
                                lambda: e(f"buffer_load_dword {a_dummy[0]}, {u0}, {srd}, 0 offen", track=False)]

        def mall(srd, n):
            return lines(srd, n, [f"s_lshl_b32 {t0}, s2, 2", f"s_add_u32 {t0}, {t0}, {s_w}", f"s_mul_i32 {t0}, {t0}, {n * 128}"])

        def touch3(srd, rows, pitch):
            return lines(srd, rows, [f"s_lshl_b32 {t0}, {s_idx}, 2", f"s_add_u32 {t0}, {t0}, {s_w}", f"s_mul_i32 {t0}, {t0}, {rows * pitch}",
                                     f"s_add_u32 {t0}, {t0}, 384"], stride=pitch)

        def run(L):
            for t in L:
                t() if callable(t) else e(t)
        xld = []
        for i in range(5):
            for ch in range(4):
                t = f"buffer_load_dwordx4 {XN[i][ch].sub(4, 4)}, {v_x}, {X}, 0 offen offset:{256 * ch}"
                if ch == 3 and i < 4:
                    t += f"\nv_add_u32 {v_x}, 4096, {v_x}"
                xld.append(t)
        e.wait_all_lg()
        self.stamp("ka")
        self.exp_delay("start")
        if c.touch:
            srd_words(6)
            e(f"""v_and_b32 {u1}, 63, v0
            v_mul_u32_u24 {u0}, 20, {u2}
            v_add3_u32 {u0}, {u0}, {u1}, {t0}
            v_lshlrev_b32 {u0}, 10, {u0}
            s_and_b32 {t1}, {s_idx}, 7
            s_lshl_b32 {t1}, {t1}, 7
            v_cmp_lt_u32 vcc, 19, {u1}
            v_add_u32 {u0}, {t1}, {u0}
            s_min_u32 {t0}, {s_idx}, 23
            v_cndmask_b32 {u0}, {u0}, -1, vcc""")
            e(f"buffer_load_dword {a_dummy[0]}, {u0}, {X}, 0 offen", track=False)
        if c.code_pf0:
            e(f"""s_getpc_b64 vcc
            v_and_b32 {u1}, 63, v0
            v_lshlrev_b32 {u1}, 6, {u1}""")
            e(f"global_load_dword {a_dummy[0]}, {u1}, vcc", track=False)
        for t in xld[:c.nx_pre]:
            e(t)
        xld2 = xld[c.nx_pre:c.nx_first]
        xld = xld[c.nx_first:]
        srd_words(6); srd_words(9)
        e(pre2)
        for i in range(4):
            e(f"buffer_load_ushort {cv[i]}, {v_c}, {CC}, 0 offen offset:{64 * i}")
        wld = [(f"s_mov_b32 {self.s_so}, {i * 32 * 6144}\n" if i else "") +
               f"buffer_load_dwordx4 {wmv.sub(4 * i, 4)}, {v_wm}, {WM}, {self.s_so if i else 0} offen" for i in range(4)]
        if c.w_first:
            e(f"""s_cmp_ge_u32 {s_idx}, {c.w_first}
            s_cselect_b32 s30, 0, s30""")
            run(wld)
        self.stamp("wis")
        e(f"s_load_dword {s_tag}, s[36:37], {WS_E}")
        for i in (1, 2, 3, 4, 5, 7):
            srd_ptr(i)
        for i in (8, 1, 2, 3, 4, 5, 7):
            srd_words(i)
        e(pre3)
        if c.tlb:
            e(f"v_lshlrev_b32 {u0}, 21, {v_l}")
            for srd in (WQ, WS, WO, WG, WU, WD, OUT):
                e(f"buffer_load_dword {a_dummy[0]}, {u0}, {srd}, 0 offen offset:2048", track=False)
        s_st = sa()
        e(f"""s_lshl_b32 {t0}, {s_TB}, 12
        s_lshr_b32 {t1}, {s_hg}, 1
        s_lshl_b32 {t1}, {t1}, 10
        s_add_u32 {t0}, {t0}, {t1}
        s_and_b32 {t1}, {s_hg}, 1
        s_lshl_b32 {t1}, {t1}, 3
        s_add_u32 {t0}, {t0}, {t1}
        s_lshl_b32 {t1}, {s_kh}, 2
        s_add_u32 {t0}, {t0}, {t1}
        s_add_u32 {s_st}, {t0}, {WS_STATS}
        v_lshlrev_b32 {v_l16}, 4, {v_l}
        v_mov_b32 {u3}, -1""")
        for k in range(4):
            e(f"v_accvgpr_write_b32 {a_ones[k]}, -1")
        tok_init = e(f"buffer_store_dword {u3}, {v_l16}, {WS}, {s_st} offen sc1")
        late_ops = []
        if c.code_pf:
            pc = 's[0:1]'
            e(f"""s_getpc_b64 {pc}
            s_lshl_b32 {t0}, {s_idx}, 2
            s_add_u32 {t0}, {t0}, {s_w}
            s_mul_i32 {t0}, {t0}, 320
            v_mul_u32_u24 {u0}, 5, {v_l}
            v_add_u32 {u0}, {t0}, {u0}
            v_and_b32 {u0}, -4, {u0}
            v_min_u32 {u0}, Lcode_end-Lcode_pf-4, {u0}""")
            e.label("Lcode_pf")
            e(f"global_load_dword {a_dummy[0]}, {u0}, {pc}", track=False)
        if c.mall_q:
            if c.mallq_early:
                run(mall(WQ, 12))
            else:
                late_ops += mall(WQ, 12)
        self.lds.add(L_RING, L_END - L_RING)
        UQ = [Unit(f"q{u}", 12288, [(WQ, v_dq, (str(s_rx[u & 3]), 6, (u // 4) * 393216), mt * 1024, mt * 1024) for mt in range(3)]) for u in range(16)]
        s_w3k = sa()
        for u in UQ:
            u.wreg = s_w3k
        s_mo = sa()
        UO = [Unit(f"o{i}", 8192, [(WO, v_dw, (str(s_mo), "x", (2 * i + h) * 16384), 0, 4096 * h) for h in range(2)]) for i in range(8)]
        v_dA2 = V.alloc()
        vA = lambda u: v_dA2 if (u >> c.gbit) & 1 else v_dA
        uo = lambda u: (u & ~(1 << c.gbit)) * 32 * 3584
        UA = [Unit(f"a{u}", 8192 + 64, [(WG, vA(u), uo(u), 0, 0), (WU, vA(u), uo(u), 0, 4096 + 32)]) for u in range(16)]
        UB = [Unit(f"b{u}", 8192 + 64, [(WG, vA(u), uo(u), 128, 0), (WU, vA(u), uo(u), 128, 4096 + 32)]) for u in range(16)]
        fbA = [8 * mm + cb for mm in range(7) for cb in range(4)]
        fbB = [8 * mm + 4 + cb for mm in range(7) for cb in range(4)]
        fbs = fbA + fbB
        UD = [Unit(f"d{i}", 8192, [(WD, v_dd, (str(s_rx[0 if fbs[2 * i] < 48 else 1]), "x", fbs[2 * i + h] * 16384), 0, 4096 * h) for h in range(2)])
              for i in range(28)]
        UG = UA + UB
        staged = UG[c.n_dir:c.n_dir + c.n_stage]
        self.stq = list(staged)
        self.queue = UQ + UO + UG[:c.n_dir] + UG[c.n_dir + c.n_stage:] + UD
        v_r8, v_b64 = V.alloc(), V.alloc()
        addr_code = f"""v_lshlrev_b32 {v_r8}, 2, {v_hh}
        v_bfe_u32 {u0}, {v_l}, 2, 2
        v_add_u32 {v_r8}, {v_r8}, {u0}
        v_bfe_u32 {u0}, {v_l}, 4, 1
        v_lshlrev_b32 {u0}, 6, {u0}
        v_and_b32 {u1}, 3, {v_l}
        v_lshlrev_b32 {u1}, 4, {u1}
        v_add_u32 {v_b64}, {u0}, {u1}
        s_lshl_b32 {t0}, {s_w}, 3
        v_add_u32 {u0}, {t0}, {v_r8}
        v_mul_u32_u24 {u1}, 3072, {u0}
        s_lshl_b32 {t2}, {s_hg}, 7
        s_lshl_b32 {t1}, {s_tb}, 5
        v_xor_b32 {u2}, {t1}, {v_b64}
        v_add3_u32 {v_dq}, {u1}, {u2}, {t2}
        v_mul_u32_u24 {v_dA}, 3584, {u0}
        s_lshl_b32 {t0}, {s_kh}, 8
        s_lshl_b32 {t1}, {s_tb}, 3
        s_add_u32 {t0}, {t0}, {t1}
        v_add_u32 {u0}, {t0}, {v_r8}
        v_lshlrev_b32 {u0}, 10, {u0}
        v_add3_u32 {v_dw}, {u0}, {u2}, {t2}
        s_mul_i32 {t0}, {s_kh}, {56 * 16}
        s_add_u32 {t0}, {t0}, {t1}
        v_add_u32 {u0}, {t0}, {v_r8}
        v_lshlrev_b32 {u0}, 10, {u0}
        v_lshlrev_b32 {u1}, 5, {v_hh}
        v_xor_b32 {u1}, {u1}, {v_b64}
        v_add3_u32 {v_dd}, {u0}, {u1}, {t2}
        s_lshl_b32 {t3}, {s_m}, 8
        v_add3_u32 {v_dA}, {v_dA}, {u1}, {t3}
        s_lshr_b32 {t3}, {s_idx}, 4
        s_mul_i32 {t3}, {t3}, {(32 * 3584 << c.gbit) if c.rot & 2 else 0}
        s_sub_u32 {t2}, {32 * 3584 << c.gbit}, {t3}
        v_add_u32 {v_dA2}, {t2}, {v_dA}
        v_add_u32 {v_dA}, {t3}, {v_dA}"""
        addr_code += f"""
        s_mul_i32 {s_w3k}, {s_w}, 3072
        v_and_b32 {u0}, 3, {v_l}
        v_lshlrev_b32 {u0}, 3, {u0}
        v_bfe_u32 {u1}, {v_l}, 2, 2
        v_lshlrev_b32 {u1}, 6, {u1}
        v_add_u32 {u0}, {u0}, {u1}
        v_bfe_u32 {u1}, {v_l}, 4, 1
        v_lshlrev_b32 {u1}, 5, {u1}
        v_add_u32 {v_trn}, {u0}, {u1}
        s_lshl_b32 {t0}, {s_g}, 11
        s_and_b32 {t1}, {s_TB}, 3
        s_lshl_b32 {t1}, {t1}, 7
        s_add_u32 {t0}, {t0}, {t1}
        s_add_u32 {s_flb}, {t0}, {WS_FLAGS}
        s_lshl_b32 {t1}, {s_hg}, 3
        s_lshl_b32 {t2}, {s_kh}, 2
        s_add_u32 {t1}, {t1}, {t2}
        s_add_u32 {t1}, {t1}, {s_flb}
        v_mov_b32 {v_fl}, {t1}"""
        al = [l.strip() for l in addr_code.split("\n")]
        run(al)
        if c.rot & 1:
            e(f"s_lshr_b32 {s_rx[0]}, {s_idx}, 3\ns_lshl_b32 {s_rx[0]}, {s_rx[0]}, 14")
        else:
            e(f"s_mov_b32 {s_rx[0]}, 0")
        for k in range(1, 4):
            e(f"s_xor_b32 {s_rx[k]}, {s_rx[0]}, {16384 * k}")
        e(f"s_lshl_b32 {s_mo}, {s_rx[0]}, 1")
        parked = {}

        def park(name, reg):
            parked[name] = A.alloc(1)
            e(f"v_accvgpr_write_b32 {parked[name]}, {reg}")

        def unpark(name, reg, keep=False):
            t = f"v_accvgpr_read_b32 {reg}, {parked[name]}"
            return t

        def addr_of(L, name):
            run(L[:-1])
            park(name, u0)
        addr_of(mall(WO, 4), "m4"); addr_of(mall(WG, 14), "m14"); addr_of(touch3(WQ, 12, 1024), "t3q")
        w0, w1 = v_r8, v_b64
        e(f"""s_mul_i32 {t0}, {s_tb}, {32 * 272}
        s_add_u32 {t0}, {t0}, {16 * 272}
        v_and_b32 {u1}, 15, {v_l}
        v_mul_u32_u24 {u2}, 272, {u1}
        v_and_b32 {u0}, 48, {v_l}
        v_add_u32 {w1}, {u0}, {u2}
        v_add_u32 {w0}, {t0}, {w1}""")
        park("hm", w0); park("hhalo", w1)
        e(f"""v_lshlrev_b32 {w0}, 5, {u1}
        v_lshrrev_b32 {u2}, 4, {v_l}
        s_mul_i32 {t0}, {s_w}, 20
        v_add_u32 {u2}, {t0}, {u2}
        v_mul_u32_u24 {u2}, 272, {u2}
        s_lshr_b32 {t0}, {s_rx[0]}, 12
        v_xor_b32 {u3}, {t0}, {u1}
        v_lshl_add_u32 {w1}, {u3}, 4, {u2}""")
        park("cst", w0); park("hw", w1)
        e(f"""v_lshrrev_b32 {u0}, 4, {v_l}
        v_mul_u32_u24 {u0}, 3072, {u0}
        s_lshl_b32 {t1}, {s_tb}, 5
        v_xor_b32 {u2}, {t1}, {v_trn}
        s_lshl_b32 {t0}, {s_kh}, 8
        v_add3_u32 {w0}, {u2}, {u0}, {t0}
        s_and_b32 {t0}, s2, {NCOPY - 1}
        s_mul_i32 {t0}, {t0}, {GCOPY}
        s_add_u32 {t0}, {t0}, {WS_G}
        v_lshl_add_u32 {w1}, v0, 4, {t0}""")
        park("wq", w0); park("g1", w1)

        def deferred(f0, f1, f2, f3, f4):
            def pk(name, reg):
                parked[name] = A.alloc(1)
                return f"v_accvgpr_write_b32 {parked[name]}, {reg}"

            def t3(name, rows):
                return f"""s_lshl_b32 {t0}, {s_idx}, 2
                s_add_u32 {t0}, {t0}, {s_w}
                s_mul_i32 {t0}, {t0}, {rows * 1024}
                s_add_u32 {t0}, {t0}, 384
                v_lshl_add_u32 {f0}, {v_l}, 10, {t0}
                v_sub_u32 {f1}, {rows - 1}, {v_l}
                v_and_b32 {f1}, 0x80000000, {f1}
                v_or_b32 {f0}, {f0}, {f1}
                {pk(name, f0)}"""
            T = f"""s_and_b32 {t0}, s2, {NCOPY - 1}
            s_mul_i32 {t0}, {t0}, {GCOPY}
            s_lshl_b32 {t2}, {s_w}, 11
            s_lshl_b32 {t1}, {s_hg}, 8
            s_add_u32 {t1}, {t1}, {t0}
            s_add_u32 {t1}, {t1}, {t2}
            s_add_u32 {t1}, {t1}, {WS_G + 4096}
            v_and_b32 {f4}, 15, {v_l}
            v_lshl_add_u32 {f0}, {f4}, 4, {t1}
            {pk("g2", f0)}
            s_lshl_b32 {t0}, {s_g}, 6
            v_lshl_add_u32 {f0}, {f4}, 2, {t0}
            {pk("gx", f0)}
            {t3("t3o", 4)}
            {t3("t3d", 14)}
            s_sub_u32 {t1}, {s_TB}, {s_tb}
            s_lshl_b32 {t1}, {t1}, 5
            s_lshl_b32 {t2}, {s_w}, 4
            s_add_u32 {t1}, {t1}, {t2}
            v_lshrrev_b32 {f0}, 3, {v_l}
            v_add_u32 {f1}, {t1}, {f0}
            v_lshlrev_b32 {f1}, 10, {f1}
            v_and_b32 {f2}, 7, {v_l}
            v_lshlrev_b32 {f2}, 4, {f2}
            s_lshl_b32 {t1}, {s_hg}, 7
            v_add3_u32 {f1}, {f1}, {f2}, {t1}
            v_add_u32 {f0}, {t2}, {f0}
            v_mul_u32_u24 {f0}, 144, {f0}
            v_add_u32 {f0}, {f0}, {f2}
            {pk("xl", f1)}
            {pk("xw", f0)}
            s_lshl_b32 {t0}, {s_TB}, 5
            s_lshl_b32 {t1}, {s_hg}, 2
            s_add_u32 {t0}, {t0}, {t1}
            s_lshl_b32 {t1}, {s_kh}, 1
            s_add_u32 {t0}, {t0}, {t1}
            s_lshl_b32 {t0}, {t0}, 10
            s_add_u32 {s_tile}, {t0}, {WS_O}
            v_xor_b32 {f3}, {s_tb}, {v_hh}
            v_lshlrev_b32 {f0}, 9, {f3}
            v_bfe_u32 {f1}, {v_l}, 4, 1
            v_lshl_add_u32 {f0}, {f1}, 10, {f0}
            v_lshlrev_b32 {f1}, 4, {f4}
            v_add3_u32 {v_o}, {f0}, {f1}, {s_tile}
            s_lshl_b32 {t0}, {s_g}, 11
            s_add_u32 {t0}, {t0}, {WS_FLAGS}
            s_lshl_b32 {t1}, {s_w}, 9
            s_add_u32 {t0}, {t0}, {t1}
            v_lshl_add_u32 {f0}, {v_l}, 3, {t0}
            {pk("fpre", f0)}
            s_lshl_b32 {t0}, {s_TB}, 5
            v_add_u32 {f0}, {t0}, {v_t}
            v_lshlrev_b32 {f0}, 10, {f0}
            s_lshl_b32 {t0}, {s_hg}, 7
            s_lshl_b32 {t1}, {s_kh}, 6
            s_add_u32 {t0}, {t0}, {t1}
            v_lshlrev_b32 {f1}, 4, {v_hh}
            v_add3_u32 {f0}, {f0}, {f1}, {t0}
            {pk("xres", f0)}
            s_lshl_b32 {t0}, {s_g}, 2
            s_add_u32 {t0}, {t0}, {s_w}
            s_mul_i32 {t0}, {t0}, 112
            s_lshl_b32 {t1}, {s_m}, 3
            s_add_u32 {t0}, {t0}, {t1}
            s_lshl_b32 {t0}, {t0}, 10
            s_add_u32 {s_hh}, {t0}, {WS_HH}
            s_cmp_ge_u32 {s_m}, 14|s_cselect_b32 {s_hh}, 0x40000000, {s_hh}
            s_lshl_b32 {t0}, {s_tb}, 5
            s_add_u32 {t0}, {t0}, 2
            v_add_u32 {f2}, {t0}, {v_t}
            v_mul_u32_u24 {f0}, 144, {f2}
            v_mul_u32_u24 {f2}, 272, {f2}
            s_lshl_b32 {t1}, {s_kh}, 7
            s_lshl_b32 {t2}, {s_kh}, 6
            v_lshl_add_u32 {f0}, {f3}, 5, {f0}
            v_lshl_add_u32 {f2}, {f3}, 6, {f2}
            v_add_u32 {v_kr}, {t2}, {f0}
            v_add_u32 {v_vr}, {t1}, {f2}
            s_lshl_b32 {t0}, {s_tb}, 5
            s_add_u32 {t2}, {t2}, {t0}
            s_lshl_b32 {t1}, {t2}, 1
            v_mul_u32_u24 {f0}, 144, {f4}
            v_mul_u32_u24 {f2}, 272, {f4}
            v_and_b32 {f1}, 48, {v_l}
            v_add3_u32 {v_vh}, {f2}, {f1}, {t1}
            v_lshrrev_b32 {f1}, 1, {f1}
            v_add3_u32 {v_kh}, {f0}, {f1}, {t2}
            s_mul_i32 {t0}, {s_tb}, {32 * 144}
            s_add_u32 {t0}, {t0}, {16 * 144}
            v_add_u32 {v_kw[0]}, {t0}, {v_kh}
            s_mul_i32 {t0}, {s_tb}, {32 * 144 - 64}
            s_add_u32 {t0}, {t0}, {16 * 144 + 32}
            v_add_u32 {v_kw[1]}, {t0}, {v_kh}
            s_mul_i32 {t0}, {s_tb}, {32 * 272}
            s_add_u32 {t0}, {t0}, {16 * 272}
            v_add_u32 {v_vw[0]}, {t0}, {v_vh}
            s_mul_i32 {t0}, {s_tb}, {32 * 272 - 128}
            s_add_u32 {t0}, {t0}, {16 * 272 + 64}
            v_add_u32 {v_vw[1]}, {t0}, {v_vh}"""
            return [t.strip().replace("|", "\n") for t in T.split("\n") if t.strip()]
        V.release(v_r8, v_b64, v_c)
        run(xld2)
        late_ops2 = [lambda: run(late_ops)]
        self.stamp("iss")
        st = V.alloc(16)
        rm = V.alloc(4)

        def unpack_acc(i):
            L = []
            o = 8 * (i & 1)
            for ch in range(4):
                r = XN[i][ch]
                for j in range(3):
                    L.append(f"v_lshlrev_b32 {r[2 * j]}, 16, {r[4 + j]}")
                    L.append(f"v_and_b32 {r[2 * j + 1]}, 0xffff0000, {r[4 + j]}")
                L.append(f"v_lshlrev_b32 {r[6]}, 16, {r[7]}")
                L.append(f"v_and_b32 {r[7]}, 0xffff0000, {r[7]}")
                for j in range(4):
                    sm, sq = st.sub(o + 2 * (j & 1), 2), st.sub(o + 4 + 2 * (j & 1), 2)
                    p = r.sub(2 * j, 2)
                    if ch == 0 and j < 2:
                        L.append(f"v_pk_add_f32 {sm}, {p}, {r.sub(2 * j + 4, 2)}")
                        L.append(f"v_pk_mul_f32 {sq}, {p}, {p}")
                    else:
                        if ch:
                            L.append(f"v_pk_add_f32 {sm}, {sm}, {p}")
                        L.append(f"v_pk_fma_f32 {sq}, {p}, {p}, {sq}")
            return L

        def reduce_norm(i):
            o = 8 * (i & 1)
            sm, sq = st[o], st[o + 4]
            L = [f"v_pk_add_f32 {st.sub(o, 2)}, {st.sub(o, 2)}, {st.sub(o + 2, 2)}",
                 f"v_pk_add_f32 {st.sub(o + 4, 2)}, {st.sub(o + 4, 2)}, {st.sub(o + 6, 2)}",
                 f"v_add_f32 {sm}, {sm}, {st[o + 1]}", f"v_add_f32 {sq}, {sq}, {st[o + 5]}"]
            for ror in (8, 4, 2, 1):
                L.append(f"v_add_f32_dpp {sm}, {sm}, {sm} row_ror:{ror} row_mask:0xf bank_mask:0xf")
                L.append(f"v_add_f32_dpp {sq}, {sq}, {sq} row_ror:{ror} row_mask:0xf bank_mask:0xf")
            pr = rm.sub(2 * (i & 1), 2)
            L += self.finish_stats(sm, sq, pr[0], pr[1], 512)
            for ch in range(4):
                for j in range(4):
                    p = XN[i][ch].sub(2 * j, 2)
                    L.append(f"v_pk_fma_f32 {p}, {p}, {pr}, {pr} op_sel:[0,0,1] op_sel_hi:[1,0,1]")
            return L

        def ln_stage(i):
            a, b = (unpack_acc(i) if i < 5 else []), (reduce_norm(i - 1) if i else [])
            m = []
            while a or b:
                if a: m.append(a.pop(0))
                if a: m.append(a.pop(0))
                if b: m.append(b.pop(0))
            return m
        sv = xn_all.sub(160, 8)
        P = []
        P += [f"v_lshlrev_b32 {cv[i]}, 16, {cv[i]}" for i in range(4)]
        P += [f"v_mul_f32 {sv[2 * i]}, 0xbfb8aa3b, {cv[i]}" for i in range(4)]
        P += [f"v_exp_f32 {sv[2 * i]}, {sv[2 * i]}" for i in range(4)]
        P += [f"v_add_f32 {sv[2 * i]}, 1.0, {sv[2 * i]}" for i in range(4)]
        P += [f"v_rcp_f32 {sv[2 * i]}, {sv[2 * i]}" for i in range(4)]
        P += [f"v_mul_f32 {sv[2 * i]}, {cv[i]}, {sv[2 * i]}" for i in range(4)]
        P += [self.bf16r(sv[2 * i], sv[2 * i])[0] for i in range(4)] + [self.bf16r(sv[2 * i], sv[2 * i])[1] for i in range(4)]
        P.append(lambda: self.stamp("silu"))
        pa = xn_all.sub(168, 8)
        wf = xn_all.sub(176, 8)
        for i in range(4):
            if i == 1:
                P.append(lambda: self.stamp("w0"))
            for j in range(4):
                P.append(f"v_lshlrev_b32 {wf[2 * j]}, 16, {wmv[4 * i + j]}")
                P.append(f"v_and_b32 {wf[2 * j + 1]}, 0xffff0000, {wmv[4 * i + j]}")
            for j in range(4):
                if i == 0:
                    P.append(f"v_pk_mul_f32 {pa.sub(2 * j, 2)}, {wf.sub(2 * j, 2)}, {sv.sub(0, 2)} op_sel_hi:[1,0]")
                else:
                    P.append(f"v_pk_fma_f32 {pa.sub(2 * j, 2)}, {wf.sub(2 * j, 2)}, {sv.sub(2 * i, 2)}, {pa.sub(2 * j, 2)} op_sel_hi:[1,0,1]")
        P.append(lambda: self.stamp("w3"))
        P += [f"v_and_b32 {u0}, 7, {v_l}", f"v_lshlrev_b32 {u0}, 5, {u0}"]
        P += [f"v_permlane32_swap_b32 {pa[j]}, {pa[j + 4]}" for j in range(4)]
        P += [f"v_add_f32 {pa[j]}, {pa[j]}, {pa[j + 4]}" for j in range(4)]
        P += [f"v_lshrrev_b32 {u1}, 4, {v_l}"]
        P += [f"v_permlane16_swap_b32 {pa[j]}, {pa[j + 2]}" for j in range(2)]
        P += [f"v_add_f32 {pa[j]}, {pa[j]}, {pa[j + 2]}" for j in range(2)]
        P += [f"v_lshl_add_u32 {u0}, {u1}, 3, {u0}", f"s_lshl_b32 {t0}, {s_w}, 8"]
        P += [f"v_add_f32_dpp {pa[j]}, {pa[j]}, {pa[j]} row_ror:8 row_mask:0xf bank_mask:0xf" for j in range(2)]
        P += [f"v_add_u32 {u0}, {t0}, {u0}", f"ds_write_b64 {u0}, {pa.sub(0, 2)} offset:{L_PART}"]
        s_tb4 = [sa() for _ in range(4)]
        pre_txt = []
        rec = e.out
        n0 = len(e.out)
        keep = (e.vm_issued, e.vm_done, list(e.hist), e.n_ins)
        for _ in range(c.n_pre):
            m = len(e.out)
            assert self.dma_step()
            pre_txt.append("\n".join(o.text for o in e.out[m:]))
        del e.out[n0:]
        e.vm_issued, e.vm_done, e.hist, e.n_ins = keep
        for u in UQ:
            if u.tok:
                u.tok = 0

        def p0(bg, rate):
            bg = self.interleave(P, bg, rate)
            pub()
            return bg

        def pub():
            e.wait_all_lg()
            e(f"""s_mul_i32 {s_tag}, {s_tag}, 0x9E3779B1
            s_add_u32 {s_tag}, {s_tag}, 0x7F4A7C18
            s_and_b32 {s_tag}, {s_tag}, 0xFFFFFFF8
            v_mov_b32 {self.v_tag}, {s_tag}
            s_lshr_b32 {s_tb4[0]}, {s_tag}, 3
            s_lshr_b32 {s_tb4[1]}, {s_tag}, 10
            s_lshr_b32 {s_tb4[2]}, {s_tag}, 17
            s_lshr_b32 {s_tb4[3]}, {s_tag}, 24""")
            self.stamp("tag")
            e.wait(vm=tok_init)
            self.barrier()
            Lsk = e.newlabel("Lnot0")
            e(f"s_cmp_lg_u32 {s_w}, 0")
            e(f"s_cbranch_scc1 {Lsk}")
            e.begin_cond(allow_lg=True)
            e.optional += 1
            e(f"""v_and_b32 {u0}, 15, {v_l}
            v_lshlrev_b32 {u1}, 4, {u0}""")
            pw = wmv
            for k in range(4):
                e(f"ds_read_b128 {pw.sub(4 * k, 4)}, {u1} offset:{L_PART + 256 * k}")
            e(f"""v_lshrrev_b32 {u2}, 4, {v_l}
            v_mul_u32_u24 {u2}, {GCOPY}, {u2}
            s_lshl_b32 {t0}, {s_col0}, 8
            s_and_b32 {t1}, {s_idx}, 3
            s_mul_i32 {t1}, {t1}, {GQ}
            s_add_u32 {t0}, {t0}, {t1}
            s_add_u32 {t0}, {t0}, {WS_G}
            v_add3_u32 {u2}, {u2}, {u1}, {t0}
            v_mov_b32 {u0}, 0xff""")
            for h in range(2):
                e(f"v_pk_add_f32 {pw.sub(2 * h, 2)}, {pw.sub(2 * h, 2)}, {pw.sub(4 + 2 * h, 2)}")
                e(f"v_pk_add_f32 {pw.sub(8 + 2 * h, 2)}, {pw.sub(8 + 2 * h, 2)}, {pw.sub(12 + 2 * h, 2)}")
            for h in range(2):
                e(f"v_pk_add_f32 {pw.sub(2 * h, 2)}, {pw.sub(2 * h, 2)}, {pw.sub(8 + 2 * h, 2)}")
            for k in range(4):
                e(f"v_bfi_b32 {pw[k]}, {u0}, {s_tb4[k]}, {pw[k]}")
            e(f"s_cmp_ge_u32 {s_idx}, 24")
            Lnp = e.newlabel("Lnopub")
            e(f"s_cbranch_scc1 {Lnp}")
            e(f"buffer_store_dwordx4 {pw.sub(0, 4)}, {u2}, {WS}, 0 offen sc1")
            e.label(Lnp)
            e(f"""s_getreg_b32 {t0}, hwreg(HW_REG_XCC_ID)
            s_and_b32 {t0}, {t0}, 7
            s_or_b32 {t0}, {t0}, {s_tag}
            v_mov_b32 {u0}, {t0}
            s_lshl_b32 {t1}, {s_g}, 4
            s_add_u32 {t1}, {t1}, {s_m}
            s_lshl_b32 {t1}, {t1}, 2
            v_mov_b32 {u1}, {t1}
            s_mov_b64 exec, 1
            buffer_store_dword {u0}, {u1}, {WS}, 0 offen offset:{WS_XID} sc1
            s_mov_b64 exec, -1""")
            e.optional -= 1
            e.end_cond(Lsk)
            e.wait_all_lg()

        def t3q():
            if c.t3 & 1:
                e(unpark("t3q", u0))
                e(f"buffer_load_dword {a_dummy[0]}, {u0}, {WQ}, 0 offen", track=False)

        def ln(i, bg, rate):
            L = ln_stage(i)
            e(L[0])
            bg = self.interleave(L[1:], bg, rate)
            self.stamp(f"x{i}")
            return bg
        bg = list(xld)
        for i in range(c.nq_k):
            bg = ln(i, bg, c.x_rate0)
        bg = p0(bg, c.x_rate)
        self.stamp("pub")
        run(bg)
        bg = list(late_ops2) + [t3q] + list(pre_txt)
        for i in range(c.nq_k, 6):
            bg = ln(i, bg, c.pre_rate)
        run(bg)
        V.release(cv, wmv, v_x, v_wm)
        V.release(st, rm)
        v_cst, v_hw, v_hm, v_hhalo = V.alloc(), V.alloc(), V.alloc(), V.alloc()
        v_wq, v_w1 = V.alloc(3, align=1), V.alloc(3, align=1)
        run([unpark("cst", v_cst), unpark("hw", v_hw), unpark("hm", v_hm), unpark("hhalo", v_hhalo), unpark("wq", v_wq[0])])
        e(f"v_xor_b32 {v_w1[0]}, 32, {v_wq[0]}")
        for k in (1, 2):
            e(f"v_add_u32 {v_wq[k]}, {k * WIN}, {v_wq[0]}")
            e(f"v_add_u32 {v_w1[k]}, {k * WIN}, {v_w1[0]}")
        self.stamp("ln1")
        gq = V.alloc(16)
        s_q = [Reg('s', 3, 1), Reg('s', 0, 1), Reg('s', 1, 1)]
        for k in range(3):
            e(f"s_mov_b32 {s_q[k]}, {(k + 1) * GQ}")

        def g_loads(r, ad):
            return [f"buffer_load_dwordx4 {r.sub(4 * k, 4)}, {ad}, {WS}, {s_q[k - 1] if k else 0} offen sc1" for k in range(4)]

        def g_check(r, a, b):
            L = [f"v_xor_b32 {a}, {s_tb4[0]}, {r[0]}", f"v_xor_b32 {b}, {s_tb4[1]}, {r[1]}"]
            for k in range(2, 16):
                d = (a, b)[k & 1]
                L.append(f"v_bitop3_b32 {d}, {r[k]}, {s_tb4[k & 3]}, {d} bitop3:0xbe")
            L += [f"v_or_b32 {a}, {a}, {b}", f"v_and_b32 {a}, 0xff, {a}"]
            return L

        def g_sum(r, packed):
            L = [f"v_and_b32 {r[k]}, 0xffffff00, {r[k]}" for k in range(16)]
            for x, y in ((0, 4), (8, 12), (0, 8)):
                if packed:
                    L += [f"v_pk_add_f32 {r.sub(x + 2 * h, 2)}, {r.sub(x + 2 * h, 2)}, {r.sub(y + 2 * h, 2)}" for h in range(2)]
                else:
                    L += [f"v_add_f32 {r[x + h]}, {r[x + h]}, {r[y + h]}" for h in range(4)]
            L += [f"v_cvt_pk_bf16_f32 {r[0]}, {r[0]}, {r[1]}", f"v_cvt_pk_bf16_f32 {r[2]}, {r[2]}, {r[3]}"]
            return L
        run([unpark("g1", u1), f"v_lshlrev_b32 {u0}, 4, v0"])
        TO = L_TBL
        if c.h_full:
            TO = L_TBL - WIN
            v_hm2, v_hh2 = V.alloc(), V.alloc()
            e(f"""v_add_u32 {u0}, {WIN}, {u0}
            v_add_u32 {v_cst}, {WIN}, {v_cst}
            v_add_u32 {v_hm2}, {2 * HB}, {v_hm}
            v_add_u32 {v_hh2}, {2 * HB}, {v_hhalo}""")
        self.poll(g_loads(gq, u1), [], pre=g_check(gq, u2, u3) + [f"v_cmp_ne_u32 vcc, 0, {u2}"])
        self.stamp("mod")
        self.exp_delay("mod")
        self.bg_on(c.post_every, limit=[UQ[7]], stage=False)
        tv = V.alloc(4)

        def unp(d, a, b):
            return f"""v_lshlrev_b32 {d[0]}, 16, {a}
            v_and_b32 {d[1]}, 0xffff0000, {a}
            v_lshlrev_b32 {d[2]}, 16, {b}
            v_and_b32 {d[3]}, 0xffff0000, {b}"""
        run(g_sum(gq, True))
        e(unp(tv, gq[0], gq[2]))
        Lno = e.newlabel("Lnoa")
        e(f"s_cmp_lt_u32 {s_w}, 2")
        e(f"s_cbranch_scc1 {Lno}")
        e.begin_cond()
        e(f"""v_pk_add_f32 {tv.sub(0, 2)}, {tv.sub(0, 2)}, 1.0 op_sel_hi:[1,0]
        v_pk_add_f32 {tv.sub(2, 2)}, {tv.sub(2, 2)}, 1.0 op_sel_hi:[1,0]
        v_cvt_pk_bf16_f32 {gq[0]}, {tv[0]}, {tv[1]}
        v_cvt_pk_bf16_f32 {gq[2]}, {tv[2]}, {tv[3]}""")
        e(unp(tv, gq[0], gq[2]))
        e.end_cond(Lno)
        tok_tbl = e(f"ds_write_b128 {u0}, {tv} offset:{TO}")
        self.barrier(lg=tok_tbl)
        cst = V.alloc(16)
        cst1 = xn_all.sub(160, 16)

        def cst_reads(ch, r):
            return [f"ds_read_b128 {r.sub(0, 4)}, {v_cst} offset:{TO + 512 * ch}",
                    f"ds_read_b128 {r.sub(8, 4)}, {v_cst} offset:{TO + 2048 + 512 * ch}",
                    f"ds_read_b128 {r.sub(4, 4)}, {v_cst} offset:{TO + 512 * ch + 16}",
                    f"ds_read_b128 {r.sub(12, 4)}, {v_cst} offset:{TO + 2048 + 512 * ch + 16}"]

        def apply_valu(ch, i, r, packed):
            L = []
            for j in range(4):
                p = XN[i][ch].sub(2 * j, 2)
                if packed:
                    L.append(f"v_pk_fma_f32 {p}, {p}, {r.sub(8 + 2 * j, 2)}, {r.sub(2 * j, 2)}")
                else:
                    for h in range(2):
                        L.append(f"v_fma_f32 {p[h]}, {p[h]}, {r[8 + 2 * j + h]}, {r[2 * j + h]}")
            for j in range(4):
                L.append(f"v_cvt_pk_bf16_f32 {XN[i][ch][j]}, {XN[i][ch][2 * j]}, {XN[i][ch][2 * j + 1]}")
            return L

        wtok = {}

        def apply_write(ch, i):
            def f():
                if LH[ch] > 60000:
                    if i == 0:
                        e(f"v_add_u32 {v_hw}, {2 * HB}, {v_hw}")
                    wtok[ch] = e(f"ds_write_b128 {v_hw}, {XN[i][ch].sub(0, 4)} offset:{LH[ch] - 2 * HB + i * 4 * 272}")
                    return
                wtok[ch] = e(f"ds_write_b128 {v_hw}, {XN[i][ch].sub(0, 4)} offset:{LH[ch] + i * 4 * 272}")
            f.solo = True
            return f

        npre_ch = c.pre_chunks
        a_xr = A.alloc(8)

        def bgl(name, *loads):
            L = []
            for k, (t, trk) in enumerate(loads):
                L.append(lambda t=t, trk=trk, k=k: ((e(unpark(name, u0)) if name and k == 0 else None), e(t, track=trk)))
            return L
        tch = lambda srd: (f"buffer_load_dword {a_dummy[0]}, {u0}, {srd}, 0 offen", False)
        qhi = []

        def make_bg():
            pf = (bgl("m4", tch(WO)) + bgl("m14", tch(WG), tch(WU), tch(WD))) if c.mall_pf == 2 else []
            pf.append(lambda: e(f"s_cmp_ge_u32 {s_m}, 14\ns_cselect_b32 s18, 0, s18\ns_cselect_b32 s22, 0, s22"))
            if c.t3 & 2:
                pf += bgl("t3o", tch(WO))
            misc = bgl("xl", (f"buffer_load_dwordx4 {a_xr.sub(0, 4)}, {u0}, {X}, 0 offen", True),
                       (f"s_mov_b32 {t3}, 8192\nbuffer_load_dwordx4 {a_xr.sub(4, 4)}, {u0}, {X}, {t3} offen", True))
            if c.preread:
                misc += bgl(None, *[(f"buffer_load_dwordx4 {a_dummy}, {v_l16}, {WS}, {s_tile} offen offset:{1024 * k} sc1", False) for k in range(2)])
                misc += bgl("fpre", (f"buffer_load_dword {a_dummy[0]}, {u0}, {WS}, 0 offen sc1", False))
            if c.hh_fast == 2:
                misc += bgl("l128", (f"buffer_load_dword {a_dummy[0]}, {u0}, {WS}, {s_hh} offen sc1", False))
            if c.hh_fast == 1:
                misc += [lambda: (e(unpark("l128", u0)), e(f"v_or_b32 {u0}, 4096, {u0}"),
                                  e(f"buffer_load_dword {a_dummy[0]}, {u0}, {WS}, {s_hh} offen sc1", track=False))]
            def hh_init(k):
                def f():
                    e(f"s_add_u32 {t3}, {s_hh}, {(k >> 2) * 4096}")
                    hinit["tok"] = e(f"buffer_store_dwordx4 {a_ones}, {v_l16}, {WS}, {t3} offen offset:{1024 * (k & 3)} sc1")
                return f
            marks = [hh_init(k) for k in range(8) if c.sent & (1 << (k >> 2))]
            qhi.extend((pf + misc + marks) if c.pf_first else (misc + pf + marks))

        run(cst_reads(0, cst) + (cst_reads(1, cst1) if npre_ch > 1 else []))
        V.release(gq, tv)
        v_kh, v_vh, v_kr, v_vr, v_o = [V.alloc() for _ in range(5)]
        v_kw, v_vw = V.alloc(2, align=1), V.alloc(2, align=1)
        dfr = deferred(*[xn_all[16 + k] for k in range(5)])
        make_bg()
        assert c.pf_first and c.bg_n <= 5 and c.q_hi0 >= 12 and c.st_g2 >= 6 and not c.sent and not c.hh_fast
        nt = 0
        for ch in range(npre_ch):
            for i in range(5):
                if c.bg_early and nt % c.bg_early == 0 and qhi and nt // c.bg_early < c.bg_n:
                    qhi.pop(0)()
                nt += 1
                run(apply_valu(ch, i, (cst, cst1)[ch & 1], True))
                apply_write(ch, i)()
            if ch + 2 < npre_ch:
                run(cst_reads(ch + 2, (cst, cst1)[ch & 1]))
            elif npre_ch < 4 and ch == (npre_ch - 1) // 2 * 2:
                run(cst_reads(npre_ch, cst))
        if npre_ch < 4:
            for i in range(c.pre_tiles):
                run(apply_valu(npre_ch, i, cst, True))
        accQ, accS1, accS2, accH = [xn_all.sub(120 + 16 * k, 16) for k in range(4)]
        fr = [[A.alloc(4) for _ in range(9)] for _ in range(2)]
        steps = []
        for s in range(32):
            u, sl = s // 2, s % 2
            ch = s // 8
            f = fr[u & 1]

            def reads(u=u, sl=sl, ch=ch, f=f):
                L = []
                hb = LH[ch] - (0 if LH[ch] < 44000 else 2 * HB) + 64 * (u & 3)
                hm, hl_ = (v_hm, v_hhalo) if LH[ch] < 44000 else (v_hm2, v_hh2)
                for k, mat in enumerate((1, 2, 0)):
                    if sl == 0:
                        L.append(f"ds_read_b128 {f[k]}, {hm if k < 2 else hl_} offset:{hb + (16 * 272 if k == 1 else 0)}")
                    for rd in range(2):
                        wi, o = divmod(UQ[u].addr + mat * 1024 + rd * 512, WIN)
                        L.append(f"ds_read_b64_tr_b16 {f[3 + 3 * sl + k].sub(2 * rd, 2)}, {(v_wq, v_w1)[sl][wi]} offset:{o}")
                return L
            mf = []
            for k, acc in enumerate((accS1, accS2, accQ)):
                for a in range(3 if (sl == 0 and k < 2) else 2):
                    ac = acc.sub(8 * sl + 4 * a, 4) if a < 2 else accH.sub(4 * k, 4)
                    mf.append(f"v_mfma_f32_16x16x32_bf16 {ac}, {f[3 + 3 * sl + k]}, {f[a]}, {'0' if u == 0 else ac}")
            d = dict(reads=reads, mfmas=mf, units=[UQ[u]], slots=c.q_slots, fslots=c.q_fill, rscale=4 / 7)
            if s % c.q_span == 0:
                d["bar"] = True
                d["span"] = c.q_span
                if s % 8 == 0:
                    d["lg"] = (lambda ch=ch: wtok[max(ch, npre_ch - 1)])
            steps.append(d)
        if c.h_full:
            def region(a, n):
                u = Unit("reg", n, [])
                u.addr = a
                return u
            steps[0]["release"] = [region(L_TBL, 4096)] if npre_ch == 4 else []
            steps[12]["release"] = [region(LH[0], HB)]
            steps[20]["release"] = [region(LH[1], HB - 80 * 144)]
            if npre_ch < 4:
                steps[28]["release"] = [region(L_TBL, 4096)]
        mk = Mark()
        fill = list(dfr) + [mk]
        steps[c.q_hi0].setdefault("pre", []).append(lambda: self.drain_to(fill, mk))
        for ch in range(npre_ch, 4):
            gate, mark = Gate(), Mark()
            first = c.pre_tiles if ch == npre_ch else 0
            held = [apply_write(ch, i) for i in range(first)]
            for i in range(first, 5):
                fill += apply_valu(ch, i, cst, False)
                held.append(apply_write(ch, i))
                if i >= 1:
                    if gate not in fill:
                        fill.append(gate)
                    if i == 4 and ch + 1 < 4:
                        fill += cst_reads(ch + 1, cst)
                    fill += held
                    held = []
            fill += [mark]
            if ch == 1 or c.h_full:
                gate.open()
            else:
                steps[8 * (ch - 1) + 4]["postbar"] = gate.open
            steps[8 * ch]["prebar"] = (lambda mark=mark: self.drain_to(fill, mark))
        g2, gx, tw, tv = xn_all.sub(0, 16), V.alloc(2), V.alloc(4), V.alloc(4)
        assert npre_ch == 4
        ga2, gax = V.alloc(), V.alloc()
        g2ld = g_loads(g2, ga2) + [f"buffer_load_dword {gx[0]}, {gax}, {WS}, 0 offen offset:{WS_XID} sc1"]
        g2ck = g_check(g2, tw[0], tw[1]) + [f"v_and_b32 {gx[1]}, -8, {gx[0]}", f"v_xor_b32 {gx[1]}, {gx[1]}, {self.v_tag}",
                                            f"v_or_b32 {tw[0]}, {tw[0]}, {gx[1]}", f"v_cmp_ne_u32 vcc, 0, {tw[0]}"]

        def g2check():
            Ls, Lb = e.newlabel("Lretry"), e.newlabel("Lback")
            e(g2ck[-1])
            e(f"s_cbranch_vccnz {Ls}")
            e.label(Lb)
            self.ool.append(f"{Ls}:\n    s_mov_b32 {self.s_spin}, 0\n{Ls}_1:\n    s_add_u32 {self.s_spin}, {self.s_spin}, 1\n"
                            f"    s_cmp_gt_u32 {self.s_spin}, {c.spin}\n    s_cbranch_scc1 Lexit\n" + "".join(f"    {t}\n" for t in g2ld) +
                            "    s_waitcnt vmcnt(0)\n" + "".join(f"    {t}\n" for t in g2ck) + f"    s_cbranch_vccnz {Ls}_1\n    s_branch {Lb}\n")
        gG, gC = Gate(), Gate()
        steps[c.st_g2].setdefault("pre", []).append(gG.open)
        steps[c.st_g2 + 8].setdefault("pre", []).append(gC.open)
        fill += [gG, unpark("g2", ga2), unpark("gx", gax)] + g2ld + [gC] + g2ck[:-1] + [g2check] + g_sum(g2, False)
        if c.preread:
            fill += bgl(None, (f"buffer_load_dword {a_dummy[0]}, {v_l16}, {WS}, {s_st} offen sc1", False))
        fill += [t.strip() for t in unp(tw, g2[0], g2[2]).split("\n")]
        fill += [f"s_cmp_eq_u32 {s_w}, 2\ns_cselect_b32 {t0}, 1.0, 0"] + [f"v_add_f32 {tv[k]}, {t0}, {tw[k]}" for k in range(4)]
        fill += [f"v_cvt_pk_bf16_f32 {g2[0]}, {tv[0]}, {tv[1]}", f"v_cvt_pk_bf16_f32 {g2[2]}, {tv[2]}, {tv[3]}"]
        fill += [t.strip() for t in unp(tw, g2[0], g2[2]).split("\n")]
        fill += [f"v_and_b32 {gx[1]}, 15, {v_l}", f"s_lshl_b32 {t0}, {s_w}, 8", f"v_lshl_add_u32 {gx[1]}, {gx[1]}, 4, {t0}"]
        fill += [f"ds_write_b128 {gx[1]}, {tw} offset:{L_TBL2}",
                 f"s_getreg_b32 {t0}, hwreg(HW_REG_XCC_ID)", f"s_and_b32 {t0}, {t0}, 7", f"s_or_b32 {t0}, {t0}, {s_tag}",
                 f"v_cmp_ne_u32 vcc, {t0}, {gx[0]}\ns_nop 1\ns_cmp_eq_u64 vcc, 0\ns_cselect_b32 {self.s_mode}, {0 if c.force_slow else 1}, 0"]
        self.bg_off()
        self.loop_prologue(steps)
        self.stamp("p1s")
        self.lname = "Q"
        self.mfma_loop(steps, fill, lambda i, h: (c.q_hi if i >= c.q_hi0 else 0, c.q_dma if c.q_dma0 <= i < c.q_dma1 else 0, c.q_stage), hi=qhi)
        self.drain_to(fill, None)
        run(qhi)
        self.stamp("p1e")
        S.release(*s_tb4, s_col0, s_w3k)
        V.release(cst, v_cst, v_hw, v_hm, v_hhalo, v_wq, v_w1, gx, tw, tv, ga2, gax)
        if c.h_full:
            V.release(v_hm2, v_hh2)
        for f in fr:
            A.release(*f)
        lg = V.alloc(16)
        kp = xn_all.sub(0, 16)

        for sl in range(2):
            for a in range(2):
                e(f"ds_write_b128 {v_vw[sl]}, {accS2.sub(8 * sl + 4 * a, 4)} offset:{L_V + a * 16 * 272}")
                for h in range(2):
                    e(f"v_cvt_pk_bf16_f32 {kp[4 * sl + 2 * a + h]}, {accS1[8 * sl + 4 * a + 2 * h]}, {accS1[8 * sl + 4 * a + 2 * h + 1]}")
        e(f"ds_write_b128 {v_vh}, {accH.sub(4, 4)} offset:{L_V}")
        for h in range(2):
            e(f"v_cvt_pk_bf16_f32 {kp[8 + h]}, {accH[2 * h]}, {accH[2 * h + 1]}")
        qp = xn_all.sub(16, 8)
        for sl in range(2):
            for a in range(2):
                e(f"ds_write_b64 {v_kw[sl]}, {kp.sub(4 * sl + 2 * a, 2)} offset:{L_K + a * 16 * 144}")
                for h in range(2):
                    e(f"v_cvt_pk_bf16_f32 {qp[4 * sl + 2 * a + h]}, {accQ[8 * sl + 4 * a + 2 * h]}, {accQ[8 * sl + 4 * a + 2 * h + 1]}")
        e(f"ds_write_b64 {v_kh}, {kp.sub(8, 2)} offset:{L_K}")
        for j in range(4):
            e(f"v_permlane32_swap_b32 {qp[j]}, {qp[4 + j]}")
        for b in range(2):
            for h in range(2):
                e(f"v_permlane16_swap_b32 {qp[4 * b + h]}, {qp[4 * b + 2 + h]}")
        e._push(Ins("s_waitcnt lgkmcnt(0)"))
        e.lg_done = e.lg_issued
        self.barrier(ready=[] if c.uo_late else UO, release=UQ + ([region(LH[3], HB)] if c.h_full else []))
        self.stamp("kv")
        self.bg_on(c.att_every, limit=[UG[c.n_dir - 1]], nmax=c.att_n)
        V.release(v_kh, v_vh, v_kw, v_vw)
        kb = [accS1.sub(0, 8), accS1.sub(8, 8), accS2.sub(0, 8), accS2.sub(8, 8), accH.sub(0, 8), accH.sub(8, 8), kp.sub(0, 8), kp.sub(8, 8)]
        vb = [xn_all.sub(24 + 16 * k, 16) for k in range(6)] + [accS1, accS2]

        def kread(wd):
            return [f"ds_read_b128 {kb[wd].sub(4 * h, 4)}, {v_kr} offset:{L_K + (14 - 2 * wd) * 144 + 16 * h}" for h in range(2)]

        def vread(wd):
            return [f"ds_read_b128 {vb[wd].sub(4 * dq, 4)}, {v_vr} offset:{L_V + (14 - 2 * wd) * 272 + 16 * dq}" for dq in range(4)]

        def qk(ws):
            L = []
            for j in range(8):
                for wd in ws:
                    L.append(f"v_dot2_f32_bf16 {lg[2 * wd]}, {qp[j]}, {kb[wd][j]}, {'0' if j == 0 else lg[2 * wd]}")
            return L
        for wd in range(7):
            run(kread(wd))
        self.interleave(qk((0, 1, 2, 3)), kread(7) + vread(0) + vread(1) + vread(2)[:2], 0.4)
        self.interleave(qk((4, 5, 6, 7)), vread(2)[2:] + vread(3) + vread(4) + vread(5)[:2], 0.4)
        Lnm = e.newlabel("Lnomask")
        e(f"s_cmp_lg_u32 {s_TB}, 0")
        e(f"s_cbranch_scc1 {Lnm}")
        e.begin_cond()
        e(f"v_mov_b32 {u0}, 0x{f2u(-4e9):08x}")
        for wd in range(1, 8):
            e(f"v_cmp_gt_u32 vcc, {2 * wd}, {v_t}")
            e(f"v_cndmask_b32 {lg[2 * wd]}, {lg[2 * wd]}, {u0}, vcc")
        e.end_cond(Lnm)
        mx = lg[1]
        SM = [f"s_mov_b32 {t0}, 0x{f2u(0.25 * math.log2(math.e)):08x}",
              f"v_max3_f32 {mx}, {lg[0]}, {lg[2]}, {lg[4]}",
              f"v_max3_f32 {lg[3]}, {lg[6]}, {lg[8]}, {lg[10]}",
              f"v_max3_f32 {mx}, {mx}, {lg[12]}, {lg[14]}",
              f"v_max_f32 {mx}, {mx}, {lg[3]}",
              f"v_mul_f32 {mx}, {t0}, {mx}"]
        SM += [f"v_fma_f32 {lg[2 * wd]}, {lg[2 * wd]}, {t0}, -{mx}" for wd in range(8)]
        SM += [f"v_exp_f32 {lg[2 * wd]}, {lg[2 * wd]}" for wd in range(8)]
        self.interleave(SM, vread(5)[2:] + vread(6) + vread(7), 0.6)
        ov = accQ
        SUM = f"""v_add_f32 {lg[1]}, {lg[0]}, {lg[2]}
        v_add_f32 {lg[3]}, {lg[4]}, {lg[6]}
        v_add_f32 {lg[5]}, {lg[8]}, {lg[10]}
        v_add_f32 {lg[7]}, {lg[12]}, {lg[14]}
        v_add_f32 {lg[1]}, {lg[1]}, {lg[3]}
        v_add_f32 {lg[5]}, {lg[5]}, {lg[7]}
        v_add_f32 {lg[1]}, {lg[1]}, {lg[5]}
        v_rcp_f32 {lg[1]}, {lg[1]}""".split("\n")
        PV = []
        for wd in range(8):
            for j in range(8):
                p = ov.sub(2 * j, 2)
                if wd == 0:
                    PV.append(f"v_pk_mul_f32 {p}, {vb[wd].sub(2 * j, 2)}, {lg.sub(0, 2)} op_sel_hi:[1,0]")
                else:
                    PV.append(f"v_pk_fma_f32 {p}, {vb[wd].sub(2 * j, 2)}, {lg.sub(2 * wd, 2)}, {p} op_sel_hi:[1,0,1]")
        self.interleave(PV, SUM, 0.25)
        ob = lg.sub(8, 8)
        for j in range(8):
            p = ov.sub(2 * j, 2)
            e(f"v_pk_mul_f32 {p}, {p}, {lg.sub(0, 2)} op_sel:[0,1] op_sel_hi:[1,1]")
        self.bg_off()
        for j in range(8):
            e(f"v_cvt_pk_bf16_f32 {ob[j]}, {ov[2 * j]}, {ov[2 * j + 1]}")
        self.stamp("att")
        tok = self.store2([f"buffer_store_dwordx4 {ob.sub(0, 4)}, {v_o}, {WS}, 0 offen" + "{f}",
                           f"buffer_store_dwordx4 {ob.sub(4, 4)}, {v_o}, {WS}, 0 offen offset:256" + "{f}"])
        V.release(xn_all, v_kr, v_vr, v_o)
        ga, gB, gs, gb = [V.alloc(8) for _ in range(4)]
        x1 = V.alloc(16)
        v_pf = V.alloc()
        v_s = [[V.alloc(3, align=1) for _ in range(2)] for _ in range(2)]
        v_act, v_red = V.alloc(), V.alloc()
        e(f"""v_and_b32 {u0}, 48, {v_l}
        s_lshl_b32 {t0}, {s_kh}, 7
        v_add_u32 {u0}, {t0}, {u0}""")
        for vec, r in ((0, ga), (1, gs), (2, gB), (3, gb)):
            for j in range(2):
                e(f"ds_read_b128 {r.sub(4 * j, 4)}, {u0} offset:{L_TBL2 + 256 * vec + 64 * j}")
        e(f"""v_and_b32 {u1}, 7, {v_l}
        v_lshlrev_b32 {u1}, 2, {u1}
        s_lshl_b32 {t0}, {s_kh}, 5
        s_add_u32 {t0}, {t0}, {s_flb}
        v_add_u32 {v_pf}, {t0}, {u1}
        s_lshr_b32 {s_rx[1]}, {s_mo}, 4""")

        def wbases(sh_hi, sh_lo):
            e(f"""v_bfe_u32 {u1}, {v_l}, 4, 1
            v_lshl_add_u32 {u0}, {u1}, {sh_lo}, {v_trn}
            v_lshl_add_u32 {u0}, {v_hh}, {sh_hi}, {u0}
            s_lshl_b32 {t0}, {s_kh}, 11
            s_lshl_b32 {t1}, {s_kh}, 8
            s_add_u32 {t2}, {t0}, {t1}
            v_add_u32 {v_s[0][0][0]}, {t2}, {u0}
            s_sub_u32 {t2}, {t0}, {t1}
            s_add_u32 {t2}, {t2}, 256
            v_add_u32 {v_s[1][0][0]}, {t2}, {u0}""")
            for sl in range(2):
                e(f"v_xor_b32 {v_s[sl][1][0]}, 32, {v_s[sl][0][0]}")
                for par in range(2):
                    for k in (1, 2):
                        e(f"v_add_u32 {v_s[sl][par][k]}, {k * WIN}, {v_s[sl][par][0]}")
        wbases(12, 10)
        e(f"""s_lshl_b32 {t0}, {s_TB}, 5
        s_lshl_b32 {t1}, {s_kh}, 4
        s_add_u32 {t0}, {t0}, {t1}
        s_lshl_b32 {t0}, {t0}, 10
        s_add_u32 {t0}, {t0}, {WS_O}
        v_add_u32 {v_act}, {t0}, {v_l16}
        v_add_u32 {v_red}, {s_w1k}, {v_l16}
        v_lshlrev_b32 {v_red}, 2, {v_red}
        v_mul_u32_u24 {u0}, 48, {v_l}
        v_sub_u32 {v_red}, {v_red}, {u0}""")
        e(f"""v_and_b32 {u1}, 15, {v_l}
        v_mul_u32_u24 {u1}, 144, {u1}
        s_mul_i32 {t0}, {s_tb}, {32 * 144}
        s_lshl_b32 {t1}, {s_kh}, 6
        s_add_u32 {t0}, {t0}, {t1}
        v_lshrrev_b32 {u2}, 4, {v_l}
        v_lshlrev_b32 {u2}, 3, {u2}
        v_add3_u32 {u2}, {u1}, {u2}, {t0}""")
        v_w16 = V.alloc(3, align=1)
        e(f"v_add_u32 {v_w16[0]}, {s_w1k}, {v_l16}")
        for k in (1, 2):
            e(f"v_add_u32 {v_w16[k]}, {k * WIN}, {v_w16[0]}")
        e(unpark("xw", u3))
        e.wait(vm=tok)
        self.flag_store(v_fl, F_O * 512)
        self.stamp("fo")
        V.release(lg)
        self.barrier(ready=UO)
        self.lds.add(L_RED + 16384, (L_V + HB if c.h_full else L_RING) - L_RED - 16384)
        xr = V.alloc(8)
        xs = Unit("xs", 64 * 144, [])
        xs.addr = L_RED + 16384
        assert any(iv[0] <= xs.addr and iv[1] >= xs.addr + xs.size for iv in self.lds.free)
        for iv in self.lds.free:
            if iv[0] <= xs.addr < iv[1]:
                hi_end = iv[1]
                iv[1] = xs.addr
                self.lds.free.append([xs.addr + xs.size, hi_end])
                break
        self.lds.free = sorted(iv for iv in self.lds.free if iv[1] > iv[0])
        e(f"ds_write_b128 {u3}, {a_xr.sub(0, 4)} offset:{xs.addr}")
        e(f"ds_write_b128 {u3}, {a_xr.sub(4, 4)} offset:{xs.addr + 8 * 144}")
        A.release(a_xr)
        done = [u for u in staged if u.next >= len(u.dmas)]
        for f in self.commit(done, v_w16):
            f()
        self.barrier()
        for j in range(4):
            e(f"ds_read_b64 {xr.sub(2 * j, 2)}, {u2} offset:{xs.addr + (j >> 1) * 16 * 144 + (j & 1) * 32}")
        self.dma_all(limit=c.n_alpha)
        for j in range(8):
            e(f"v_lshlrev_b32 {x1[2 * j]}, 16, {xr[j]}")
            e(f"v_and_b32 {x1[2 * j + 1]}, 0xffff0000, {xr[j]}")
        V.release(xr)
        A.release(a_ones, *[r for n, r in parked.items() if n not in ("xres", "t3d")])
        fr = [[A.alloc(4) for _ in range(4)] for _ in range(3)]
        acc0, acc1 = V.alloc(16), V.alloc(16)

        def kloop(units, act, rdoff, nk, first=True, base=0):
            steps = []
            for i in range(nk // 2):
                f = fr[(base + i) % 3]

                def reads(i=i, f=f):
                    L = []
                    for sl in range(2):
                        for par in range(2):
                            for rd in range(2):
                                wi, o = divmod(units[i].addr + rd * rdoff, WIN)
                                L.append(f"ds_read_b64_tr_b16 {f[2 * sl + par].sub(2 * rd, 2)}, {v_s[sl][par][wi]} offset:{o}")
                    return L
                mf = []
                for a in range(2):
                    for sl, acc in ((1, acc1), (0, acc0)):
                        for par in range(2):
                            ac = acc.sub(8 * a + 4 * par, 4)
                            mf.append(f"v_mfma_f32_16x16x32_bf16 {ac}, {f[2 * sl + par]}, {act[2 * i + a]}, {'0' if i == 0 else ac}")
                steps.append(dict(reads=reads, mfmas=mf, units=[units[i]], slots=c.slots16, fslots=c.fslots16, rscale=0.5))
            return steps

        s_ao = sa()

        cur_ao = [None]

        def act_loads(regs, vaddr, offs):
            L = []
            for r, o in zip(regs, offs):
                def f(r=r, o=o):
                    if (c.exp_nohh and vaddr is not v_act) or (c.exp_noh2 and len(regs) == 32):
                        return
                    va = vaddr
                    if isinstance(o, tuple) and len(o) == 4:
                        e(f"s_xor_b32 {s_ao}, {o[0]}, {o[1]}")
                        cur_ao[0], o = None, 0
                    elif isinstance(o, tuple) and len(o) == 3:
                        e(f"s_lshr_b32 {s_ao}, {o[0]}, 4\ns_add_u32 {s_ao}, {s_ao}, {o[1]}")
                        cur_ao[0], o = None, 0
                    elif isinstance(o, tuple):
                        b, o = o
                        if b != cur_ao[0]:
                            e(f"s_lshr_b32 {s_ao}, {b}, 4")
                            cur_ao[0] = b
                    else:
                        if len(regs) == 32 and (o >> (11 + c.gbit)) & 1:
                            va = v_act2
                        b = o & ~4095
                        if b != cur_ao[0]:
                            e(f"s_mov_b32 {s_ao}, {b}")
                            cur_ao[0] = b
                    e(f"buffer_load_dwordx4 {r}, {va}, {CC if len(regs) == 32 else WS}, {s_ao} offen offset:{o & 4095}{c.act_fl}")
                L.append(f)
            return L

        actf = [A.alloc(4) for k in range(16)]
        steps = kloop(UO, actf, 512, 16)
        self.loop_prologue(steps)
        self.poll([f"buffer_load_dword {u1}, {v_pf}, {WS}, 0 offen offset:{F_O * 512} sc1"], [u1])
        self.stamp("po")
        self.lname = "O"
        hl = act_loads(actf[:16], v_act, [(str(s_rx[1]), k * 1024, 0, 0) for k in range(16)])
        run(hl[:c.p2_lead])
        hi = hl[c.p2_lead:]
        for i in range(c.p2_lead // 2, 8):
            def f(n=14 - 2 * i):
                while len(hi) > n + c.n_beta:
                    hi.pop(0)()
            steps[i]["pre"] = [f]
        nb = [0]

        def beta():
            if nb[0] < c.n_beta:
                nb[0] += bool(self.stage_step())
        hi += [beta] * c.n_beta
        self.mfma_loop(steps, [], lambda i, h: (1, 0, 0), hi=hi)
        rest = [u for u in self.stq if u.next == 0]
        while self.stq and self.stq[0].next:
            if self.stq[0].next >= len(self.stq[0].dmas):
                self.stq.pop(0)
            else:
                self.stage_step()
        self.stq = []
        k = 0
        while k < len(self.queue) and (self.queue[k].addr is not None or self.queue[k] in UG[:c.n_dir]):
            k += 1
        self.queue[k:k] = rest
        staged = [u for u in staged if u not in rest]

        def reduce_pair():
            for j in range(4):
                e(f"ds_write_b128 {v_red}, {acc1.sub(4 * j, 4)} offset:{L_RED + 1024 * j}")
            e(f"v_xor_b32 {u0}, 8192, {v_red}")

        def reduce_read():
            for j in range(4):
                e(f"ds_read_b128 {acc1.sub(4 * j, 4)}, {u0} offset:{L_RED + 1024 * j}")
            for j in range(8):
                e(f"v_pk_add_f32 {acc0.sub(2 * j, 2)}, {acc0.sub(2 * j, 2)}, {acc1.sub(2 * j, 2)}")
        reduce_pair()
        self.barrier(release=UO + [xs])
        reduce_read()
        self.stamp("p2m")
        for j in range(8):
            e(f"v_pk_fma_f32 {x1.sub(2 * j, 2)}, {acc0.sub(2 * j, 2)}, {ga.sub(2 * (j & 3), 2)}, {x1.sub(2 * j, 2)}")
        sm, sq = acc1.sub(0, 4), acc1.sub(4, 4)
        for j in range(4):
            for a in range(2):
                p = x1.sub(8 * a + 2 * j, 2)
                if j == 0:
                    e(f"v_pk_add_f32 {sm.sub(2 * a, 2)}, {p}, {x1.sub(8 * a + 2, 2)}")
                    e(f"v_pk_mul_f32 {sq.sub(2 * a, 2)}, {p}, {p}")
                else:
                    if j >= 2:
                        e(f"v_pk_add_f32 {sm.sub(2 * a, 2)}, {sm.sub(2 * a, 2)}, {p}")
                    e(f"v_pk_fma_f32 {sq.sub(2 * a, 2)}, {p}, {p}, {sq.sub(2 * a, 2)}")
        gr = acc1[8]
        e(f"""v_add_f32 {sm[0]}, {sm[0]}, {sm[1]}
        v_add_f32 {sq[0]}, {sq[0]}, {sq[1]}
        v_add_f32 {sm[2]}, {sm[2]}, {sm[3]}
        v_add_f32 {sq[2]}, {sq[2]}, {sq[3]}
        s_lshl_b32 {t0}, {s_TB}, 12
        v_permlane32_swap_b32 {sm[0]}, {sq[0]}
        v_permlane32_swap_b32 {sm[2]}, {sq[2]}
        v_add_f32 {sm[0]}, {sm[0]}, {sq[0]}
        v_add_f32 {sm[2]}, {sm[2]}, {sq[2]}
        s_add_u32 {t0}, {t0}, {WS_STATS}
        v_permlane16_swap_b32 {sm[0]}, {sm[2]}
        v_add_f32 {gr}, {sm[0]}, {sm[2]}
        v_min_u32 {gr}, -2, {gr}""")
        self.store2([f"buffer_store_dword {gr}, {v_l16}, {WS}, {s_st} offen" + "{f}"])
        sg = V.alloc(16)
        def commit2():
            for f in self.commit(staged, v_w16):
                f()
            assert all(u.addr is not None for u in staged), "staged units left"
            V.release(v_w16)
        if not c.commit_late:
            commit2()
        tm = self.v_tmp
        pre = [f"v_max3_u32 {tm}, {sg[0]}, {sg[1]}, {sg[2]}", f"v_max3_u32 {u0}, {sg[3]}, {sg[4]}, {sg[5]}",
               f"v_max3_u32 {tm}, {tm}, {sg[6]}, {sg[7]}", f"v_max3_u32 {u0}, {u0}, {sg[8]}, {sg[9]}",
               f"v_max3_u32 {tm}, {tm}, {sg[10]}, {sg[11]}", f"v_max3_u32 {u0}, {u0}, {sg[12]}, {sg[13]}",
               f"v_max3_u32 {tm}, {tm}, {sg[14]}, {sg[15]}", f"v_max_u32 {tm}, {tm}, {u0}", f"v_cmp_eq_u32 vcc, -1, {tm}"]
        self.poll([f"buffer_load_dwordx4 {sg.sub(4 * k, 4)}, {v_l16}, {WS}, {t0} offen offset:{1024 * k} sc1" for k in range(4)], [], pre=pre)
        self.stamp("pst")
        for k in range(4):
            e(f"v_pk_add_f32 {sg.sub(2 * k, 2)}, {sg.sub(2 * k, 2)}, {sg.sub(8 + 2 * k, 2)}")
        e(f"""v_pk_add_f32 {sg.sub(0, 2)}, {sg.sub(0, 2)}, {sg.sub(4, 2)}
        v_pk_add_f32 {sg.sub(2, 2)}, {sg.sub(2, 2)}, {sg.sub(6, 2)}
        v_pk_add_f32 {sg.sub(0, 2)}, {sg.sub(0, 2)}, {sg.sub(2, 2)}
        v_add_f32 {sg[0]}, {sg[0]}, {sg[1]}
        v_mov_b32 {sg[1]}, {sg[0]}
        v_permlane32_swap_b32 {sg[0]}, {sg[1]}""")
        pr = [sg.sub(2, 2), sg.sub(4, 2)]
        for t in self.finish_stats(sg[0], sg[1], pr[0][0], pr[0][1], 512):
            e(t)
        e(f"""v_mov_b32 {pr[1][0]}, {pr[0][0]}
        v_mov_b32 {pr[1][1]}, {pr[0][1]}
        v_permlane16_swap_b32 {pr[0][0]}, {pr[1][0]}
        v_permlane16_swap_b32 {pr[0][1]}, {pr[1][1]}""")
        for j in range(8):
            e(f"v_pk_fma_f32 {acc0.sub(2 * j, 2)}, {x1.sub(2 * j, 2)}, {pr[j >> 2]}, {pr[j >> 2]} op_sel:[0,0,1] op_sel_hi:[1,0,1]")
        for j in range(8):
            e(f"v_pk_fma_f32 {acc0.sub(2 * j, 2)}, {acc0.sub(2 * j, 2)}, {gB.sub(2 * (j & 3), 2)}, {gs.sub(2 * (j & 3), 2)}")
        for j in range(8):
            e(f"v_cvt_pk_bf16_f32 {acc1[j]}, {acc0[2 * j]}, {acc0[2 * j + 1]}")
        tok = self.store2([f"buffer_store_dwordx4 {acc1.sub(0, 4)}, {v_l16}, {WS}, {s_tile} offen" + "{f}",
                           f"buffer_store_dwordx4 {acc1.sub(4, 4)}, {v_l16}, {WS}, {s_tile} offen offset:1024" + "{f}"])
        V.release(sg, ga, gB, gs)
        if c.rot & 8:
            e(f"""s_lshr_b32 {t0}, {s_idx}, 3
            s_lshl_b32 {t0}, {t0}, {c.rsh}
            s_lshl_b32 {t1}, {s_hg}, 1
            s_xor_b32 {t0}, {t0}, {t1}
            s_and_b32 {t1}, {t0}, 2
            s_lshl_b32 {s_rx[1]}, {t1}, 14
            s_and_b32 {t0}, {t0}, {4 if c.rsh else 0}
            s_lshl_b32 {t0}, {t0}, 15
            s_or_b32 {s_rx[0]}, {s_rx[1]}, {t0}""")
        else:
            e(f"s_mov_b32 {s_rx[0]}, 0\ns_mov_b32 {s_rx[1]}, 0")
        e(f"s_lshr_b32 {s_rx[2]}, {s_rx[0]}, 4\ns_lshr_b32 {s_rx[3]}, {s_rx[1]}, 4")
        cur_ao[0] = None
        self.cur_so = None
        assert all(u.next == 0 for u in UD)
        if c.commit_late:
            commit2()
        self.dma_all(limit=c.n_gamma)
        v_ta = V.alloc(3, align=1)
        v_p3f, v_p3s, v_hha, v_chk, v_act2 = [V.alloc() for _ in range(5)]
        if c.p3_16:
            v_tb = V.alloc(3, align=1)
            e(f"""v_bfe_u32 {u2}, {v_l}, 4, 1
            v_lshl_add_u32 {v_ta[0]}, {u2}, 9, {v_trn}
            v_lshl_add_u32 {v_ta[0]}, {v_hh}, 10, {v_ta[0]}
            v_xor_b32 {v_tb[0]}, 32, {v_ta[0]}""")
            for k in (1, 2):
                e(f"v_add_u32 {v_ta[k]}, {k * WIN}, {v_ta[0]}")
                e(f"v_add_u32 {v_tb[k]}, {k * WIN}, {v_tb[0]}")
        else:
            e(f"""v_and_b32 {u0}, 3, {v_l}
            v_lshlrev_b32 {u0}, 3, {u0}
            v_bfe_u32 {u1}, {v_l}, 2, 2
            v_bfe_u32 {u2}, {v_l}, 4, 1
            v_lshlrev_b32 {u3}, 6, {u1}
            v_add_u32 {u3}, {u3}, {u0}
            v_mul_u32_u24 {v_ta[0]}, {4096 + 32}, {u2}
            v_lshlrev_b32 {v_ta[1]}, 9, {v_hh}
            v_add3_u32 {v_ta[0]}, {v_ta[0]}, {v_ta[1]}, {u3}""")
            for k in (1, 2):
                e(f"v_add_u32 {v_ta[k]}, {k * WIN}, {v_ta[0]}")
        e(f"""s_lshl_b32 {t0}, {s_g}, 2
        s_add_u32 {t0}, {t0}, {s_w}
        s_lshl_b32 {t1}, {t0}, 15
        s_add_u32 {t1}, {t1}, {WS_H2}
        s_lshr_b32 {t2}, {s_idx}, 4
        s_mul_i32 {t2}, {t2}, {(2048 << c.gbit) if c.rot & 2 else 0}
        v_add_u32 {v_act}, {t1}, {v_l16}
        v_subrev_u32 {v_act2}, {t2}, {v_act}
        v_add_u32 {v_act}, {t2}, {v_act}
        s_lshl_b32 {t0}, {s_g}, 11
        s_lshl_b32 {t1}, {s_w}, 7
        s_add_u32 {t0}, {t0}, {t1}
        s_add_u32 {t0}, {t0}, {WS_FLAGS}
        v_and_b32 {u0}, 15, {v_l}
        v_lshlrev_b32 {u0}, 2, {u0}
        v_add_u32 {v_p3f}, {t0}, {u0}
        s_lshl_b32 {t1}, {s_m}, 2
        s_add_u32 {t0}, {t0}, {t1}
        v_mov_b32 {v_p3s}, {t0}""")
        wbases(10, 9)
        e(f"""s_mul_i32 {t0}, {s_TB}, 112
        s_mul_i32 {t1}, {s_kh}, 56
        s_add_u32 {t0}, {t0}, {t1}
        s_lshl_b32 {t0}, {t0}, 10
        s_add_u32 {t0}, {t0}, {WS_HH}
        v_add_u32 {v_hha}, {t0}, {v_l16}
        v_and_b32 {u1}, 7, {v_l}
        v_min_u32 {u1}, 6, {u1}
        v_lshlrev_b32 {u1}, 2, {u1}
        s_mul_i32 {t0}, {s_kh}, 28
        s_add_u32 {t0}, {t0}, {s_flb}
        v_add_u32 {v_pf}, {t0}, {u1}""")
        e.wait(vm=tok)
        self.flag_store(v_fl, F_H * 512)
        self.stamp("fh")
        if c.stop == "p2":
            return self.finish()
        actf += [A.alloc(4) for k in range(16)]
        e("s_mov_b32 s40, s36\ns_mov_b32 s41, s37\ns_mov_b32 s42, s38")
        if c.idle_pf:
            Li = e.newlabel("Lbusy")
            e(f"s_cmp_lt_u32 {s_m}, 14")
            e(f"s_cbranch_scc1 {Li}")
            e.begin_cond()
            e(f"""s_and_b32 {t0}, {s_g}, 1
            s_lshl_b32 {t0}, {t0}, 1
            s_add_u32 {t0}, {t0}, {s_m}
            s_sub_u32 {t0}, {t0}, 14""")
            if c.idle_pf & 1:
                e(f"""s_lshl_b32 {t1}, {t0}, 12
                s_add_u32 {t1}, {t1}, {c.idle_off - 128}
                v_lshl_add_u32 {v_dA}, v0, 4, {t1}
                s_mov_b32 s16, s24
                s_mov_b32 s17, s25
                s_mov_b32 s18, s26
                s_add_u32 s20, s24, 16384
                s_addc_u32 s21, s25, 0
                s_sub_u32 s22, s26, 16384""")
            if c.idle_pf & 2:
                e(f"""s_lshl_b32 {t0}, {t0}, 2
                s_add_u32 {t0}, {t0}, {s_w}
                s_and_b32 {t1}, {t0}, 1
                s_lshl_b32 {t1}, {t1}, 15
                s_lshr_b32 {t0}, {t0}, 1
                s_lshr_b32 {t2}, {t0}, 2
                s_mul_i32 {t2}, {t2}, 3
                s_add_u32 {t0}, {t0}, {t2}
                s_lshl_b32 {t0}, {t0}, 17
                s_add_u32 {t0}, {t0}, {t1}
                v_add_u32 {v_act}, {t0}, {v_l16}
                s_mov_b32 s40, s24
                s_mov_b32 s41, s25
                s_mov_b32 s42, s26""")
            e.end_cond(Li)
        accA = [V.alloc(16) for _ in range(4)]
        accB = [V.alloc(16) for _ in range(4)]
        steps = []
        for ph, (UU, accs) in enumerate(((UA, accA), (UB, accB))):
            for s in range(32):
                f = fr[len(steps) % 3]

                def reads(s=s, f=f, UU=UU):
                    ad = UU[s // 2].addr + (s % 2) * 2048
                    wi, o = divmod(ad, WIN)
                    L = []
                    for cb in range(4):
                        for rd in range(2):
                            L.append(f"ds_read_b64_tr_b16 {f[cb].sub(2 * rd, 2)}, {v_ta[wi]} offset:{o + rd * 1024 + (cb >> 1) * 256 + (cb & 1) * 32}")
                    return L
                mf = [f"v_mfma_f32_32x32x16_bf16 {accs[cb]}, {f[cb]}, {actf[s]}, {'0' if s == 0 else accs[cb]}" for cb in range(4)]
                d = dict(reads=reads, mfmas=mf, units=[UU[s // 2]])
                if c.p3_16:
                    def reads16(s=s, f=f, UU=UU):
                        L = []
                        for par in range(2):
                            for mat in range(2):
                                for rd in range(2):
                                    wi, o = divmod(UU[s // 2].addr + (s % 2) * 256 + mat * 4128 + rd * 2048, WIN)
                                    L.append(f"ds_read_b64_tr_b16 {f[2 * par + mat].sub(2 * rd, 2)}, {(v_ta, v_tb)[par][wi]} offset:{o}")
                        return L
                    mf = []
                    for par in range(2):
                        for mat in range(2):
                            for a in range(2):
                                ac = accs[2 * (s % 2) + par].sub(8 * mat + 4 * a, 4)
                                mf.append(f"v_mfma_f32_16x16x32_bf16 {ac}, {f[2 * par + mat]}, {actf[(s & ~1) + a]}, {'0' if s < 2 else ac}")
                    d = dict(reads=reads16, mfmas=mf, units=[UU[s // 2]], slots=c.slots16, fslots=c.fslots16, rscale=0.5)
                if s % 4 == 0:
                    d["bar"], d["span"] = True, 4
                steps.append(d)
        red_unit = Unit("red", 16384, [])
        red_unit.addr = L_RED
        steps[0]["release"] = [red_unit]
        hx = [A.alloc(4) for _ in range(12)]
        actH = hx + [accA[k // 4].sub(4 * (k % 4), 4) for k in range(16)] + actf[:28]
        s4 = kloop(UD, actH, 4096, 56, base=64)
        for i in range(0, 28, 4):
            s4[i]["bar"], s4[i]["span"] = True, 4
        steps += s4
        stok = {}

        def glu(a0, a1, imm, key):
            L = [f"v_mul_f32 {acc[v]}, {acc[v]}, {acc[v + 8]}" for acc in (a0, a1) for v in range(8)]
            for a in range(2):
                L += [f"v_cvt_pk_bf16_f32 {a0[8 + 4 * a + 2 * b + h]}, {(a0, a1)[b][4 * a + 2 * h]}, {(a0, a1)[b][4 * a + 2 * h + 1]}"
                      for b in range(2) for h in range(2)]

                def st(a=a):
                    stok[key] = e(f"buffer_store_dwordx4 {a0.sub(8 + 4 * a, 4)}, {v_l16}, {WS}, {s_hh} offen offset:{imm + 1024 * a} sc1")
                L.append(st)
            return L
        gA, gFA, gB, gFB, gHA, gHB = [Gate() for _ in range(6)]
        fill = (bgl("t3d", tch(WD)) if c.t3 & 4 else []) + [gA]
        for i in range(2):
            fill += glu(accA[2 * i], accA[2 * i + 1], 2048 * i, "A")
        fill += [f"s_add_u32 {s_hh}, {s_hh}, 4096", gB]
        for i in range(2):
            fill += glu(accB[2 * i], accB[2 * i + 1], 2048 * i, "B")
        issA, chkA = self.opt_check(v_pf, F_A * 512, v_chk)
        issB, chkB = self.opt_check(v_pf, F_B * 512, v_chk)

        def hook(i, f):
            steps[i].setdefault("pre", []).append(f)
        hook(33, gA.open)
        if c.sent & 1:
            hook(c.st_ca, lambda: (self.drain_to(fill, gB), fill.insert(0, gB), gHA.open(), self.stamp("ca")))
        else:
            hook(c.st_fa, lambda: (self.drain_to(fill, gB), fill.insert(0, gB), e.wait(vm=stok["A"]), self.flag_store(v_p3s, F_A * 512), self.stamp("fa")))
            hook(c.st_ia, issA)
            hook(c.st_ca, lambda: (chkA(), gHA.open(), self.stamp("ca")))
        if c.burst_b:
            hook(64, lambda: (gB.open(), self.drain_to(fill, None)))
        else:
            hook(65, gB.open)
        if c.burst_a:
            hook(33, lambda: (self.drain_to(fill, gB), fill.insert(0, gB)))
        if c.wb_at:
            def wb():
                Lw = e.newlabel("Lnowb")
                e(f"s_lshl_b32 {t0}, {s_idx}, 2\ns_add_u32 {t0}, {t0}, {s_w}\ns_cmp_lg_u32 {t0}, {c.wb_who}")
                e(f"s_cbranch_scc1 {Lw}")
                e.optional += 1
                e("buffer_wbl2 sc1")
                e.optional -= 1
                e.label(Lw)
            hook(c.wb_at, wb)
        if c.sent & 2:
            hook(c.st_cb, lambda: (self.drain_to(fill, None), gHB.open(), self.stamp("cb")))
        else:
            hook(c.st_fb, lambda: (self.drain_to(fill, None), e.wait(vm=stok["B"]), self.flag_store(v_p3s, F_B * 512), self.stamp("fb")))
            hook(c.st_ib, issB)
            hook(c.st_cb, lambda: (chkB(), gHB.open(), self.stamp("cb")))
        hl = act_loads(actf, v_act, [1024 * k for k in range(32)])
        hi = hl[c.act_lead:] + [gHA] + act_loads(actH[:28], v_hha, [(str(s_rx[2 if fb < 48 else 3]), fb * 1024, 0, 0) for fb in fbA]) + [gHB]
        hb = act_loads(actH[28:], v_hha, [(str(s_rx[2 if fb < 48 else 3]), fb * 1024, 0, 0) for fb in fbB])
        hook(c.st_cb, lambda: run(hb[:c.lead_b]))
        hi += hb[c.lead_b:]

        def need(i, n):
            def f():
                while len(hi) > n:
                    t = hi.pop(0)
                    if isinstance(t, Gate):
                        assert t.is_open, f"gate closed at step {i}"
                    else:
                        t()
            hook(i, f)
        total = len(hi)
        pos = {}
        k = c.act_lead
        seq = list(range(c.act_lead, 32)) + [None] + list(range(64 * 2, 64 * 2 + 28)) + [None] + list(range(64 * 2 + 28 + c.lead_b, 64 * 2 + 56))
        for n, q in enumerate(seq):
            if q is not None:
                st_i = (q & ~1 if c.p3_16 else q) if q < 32 else q // 2
                need(st_i, total - n - 1)
        for i in range(28):
            if c.sent & (1 if i < 14 else 2):
                hook(64 + i, lambda i=i: self.verify([(actH[2 * i + h], 1024 * fbs[2 * i + h]) for h in range(2)], v_hha))
                steps[64 + i]["resv"] = 3 if 6 <= i < 14 else 4
        Lidle, Ljoin = e.newlabel("Lidle"), e.newlabel("Lp4")
        if c.skip_idle:
            self.dma_flush()
            e(f"s_cmp_ge_u32 {s_m}, 14")
            e(f"s_cbranch_scc1 {Lidle}")
            n_p3 = len(e.out)
        self.loop_prologue(steps)
        self.poll([f"buffer_load_dword {u1}, {v_p3f}, {WS}, 0 offen offset:{F_H * 512} sc1"], [u1])
        self.stamp("ph")
        self.exp_delay("ph")
        self.lname = "G"
        run(hl[:c.act_lead])

        def g_rates(i, h):
            if any(p0 <= i < p1 for p0, p1 in c.pauses):
                return (c.g_hi[2] if i >= 64 else c.g_hi[i // 32], 0, 0)
            reg = min(i // 32, 2)
            if i >= c.st_cb:
                return (c.g_hi[2], c.g_end, c.g_end) if h else (0, c.g_dma[2], 0)
            return (c.g_hi[reg], c.g_mix[reg] if h else c.g_dma[reg], 0)
        self.mfma_loop(steps, fill, g_rates, rng=(0, 64), hi=hi)
        if c.skip_idle:
            body = [o.text for o in e.out[n_p3:] if isinstance(o, Ins)]
            alt, m0 = [], None
            for k, t in enumerate(body):
                if t.startswith("s_add_u32 m0") or (len(t.split()) > 1 and t.split()[1] == f"{self.s_so},"):
                    alt.append(t)
                elif t.endswith(" lds") and WD in t:
                    alt += ["s_nop 0", t]
            keep = []
            for k, t in enumerate(alt):
                if t.startswith("s_add_u32 m0") and any(u.startswith("s_add_u32 m0") for u in alt[k + 1:k + 3]) :
                    continue
                keep.append(t)
            alt = keep
            alt2 = [t for t in body if t.startswith(f"s_xor_b32 {s_ao},") or (t.startswith("buffer_load_dwordx4") and f" {v_hha}," in t)]
            rd = steps[64]["reads"]() + steps[65]["reads"]()
            Lw = Lidle + "_w"
            self.ool.append(f"{Lidle}:\n    s_waitcnt vmcnt(0) lgkmcnt(0)\n    s_barrier\n" + "".join(f"    {t}\n" for t in alt) +
                            f"    s_mov_b32 {self.s_spin}, 0\n{Lw}:\n    s_sleep 8\n    s_add_u32 {self.s_spin}, {self.s_spin}, 1\n    s_cmp_gt_u32 {self.s_spin}, {c.spin}\n"
                            f"    s_cbranch_scc1 Lexit\n    buffer_load_dword {v_chk}, {v_pf}, s[36:39], 0 offen offset:{F_A * 512} sc1\n    s_waitcnt vmcnt(0)\n"
                            f"    v_cmp_ne_u32 vcc, {s_tag}, {v_chk}\n    s_cbranch_vccnz {Lw}\n" + "".join(f"    {t}\n" for t in alt2) +
                            "    s_barrier\n" + "".join(f"    {t}\n" for t in rd) + f"    s_waitcnt vmcnt(0) lgkmcnt(0)\n    s_branch {Ljoin}\n")
            e.label(Ljoin)
        self.stamp("p3e")
        self.mfma_loop(steps, fill, g_rates, rng=(64, 92), hi=hi)
        self.stamp("p4e")
        self.barrier()
        reduce_pair()
        e(unpark("xres", u1))
        self.barrier()
        reduce_read()
        for j in range(8):
            e(f"v_pk_fma_f32 {x1.sub(2 * j, 2)}, {acc0.sub(2 * j, 2)}, {gb.sub(2 * (j & 3), 2)}, {x1.sub(2 * j, 2)}")
        for a in range(2):
            for par in range(2):
                for h in range(2):
                    e(f"v_cvt_pk_bf16_f32 {acc1[4 * par + 2 * a + h]}, {x1[8 * a + 4 * par + 2 * h]}, {x1[8 * a + 4 * par + 2 * h + 1]}")
        for par in range(2):
            for h in range(2):
                e(f"v_permlane16_swap_b32 {acc1[4 * par + h]}, {acc1[4 * par + 2 + h]}")
        e(f"buffer_store_dwordx4 {acc1.sub(0, 4)}, {u1}, {OUT}, 0 offen{c.out_fl.replace('_', ' ')}")
        e(f"buffer_store_dwordx4 {acc1.sub(4, 4)}, {u1}, {OUT}, 0 offen offset:32{c.out_fl.replace('_', ' ')}")
        Lnb = e.newlabel("Lnobump")
        e(f"s_or_b32 {t0}, s2, {s_w}")
        e(f"s_cmp_lg_u32 {t0}, 0")
        e(f"s_cbranch_scc1 {Lnb}")
        xi = acc0.sub(0, 4)
        self.poll([f"buffer_load_dwordx4 {xi}, {v_l16}, {WS}, 0 offen offset:{WS_XID} sc1"], [xi[k] for k in range(4)],
                  pre=[f"v_and_b32 {xi[k]}, -8, {xi[k]}" for k in range(4)])
        e(f"""v_mov_b32 {u0}, 0
        s_mov_b64 exec, 1
        buffer_store_dword {self.v_tag}, {u0}, {WS}, 0 offen offset:{WS_E} sc1
        s_mov_b64 exec, -1""")
        e.label(Lnb)
        return self.finish()

    def finish(self):
        e, c = self.e, self.c
        if c.stamps:
            self.stamp("end")
            e(f"s_memrealtime {self.rt1}")
            e.wait_all_lg()
            t = self.v_tmp
            e("s_mov_b64 exec, 1")
            e(f"v_lshrrev_b32 {t}, 6, v0")
            e(f"v_lshlrev_b32 {t}, 6, {t}")
            e(f"s_lshl_b32 s3, s2, 8")
            e(f"v_add_u32 {t}, s3, {t}")
            e(f"v_add_u32 {t}, {WS_STAMP}, {t}")
            e(f"v_mov_b32 {self.v_tag}, {self.rt0[0]}")
            e(f"buffer_store_dword {self.v_tag}, {t}, s[36:39], 0 offen offset:60")
            e(f"v_mov_b32 {self.v_tag}, {self.rt1[0]}")
            e(f"buffer_store_dword {self.v_tag}, {t}, s[36:39], 0 offen offset:56")
            for k in range(len(self.stamp_names)):
                r = self.stamp_regs[k]
                e(f"s_sub_u32 s3, {r[0]}, {self.rt0[0] if self.stamp_names[k][0] == 'r' and c.rt else self.stamp_regs[0][0]}")
                e(f"v_mov_b32 {self.v_tag}, s3")
                e(f"buffer_store_dword {self.v_tag}, {t}, s[36:39], 0 offen offset:{4 * k}")
        if c.dbg:
            e("s_memtime s[4:5]\ns_memrealtime s[6:7]")
            e.wait_all_lg()
            e(f"""s_sub_u32 s4, s4, {self.d0[0]}
            s_sub_u32 s5, s6, {self.d1[0]}
            v_mov_b32 v2, s4
            v_mov_b32 v3, s5
            s_and_b32 s8, s2, 7
            s_lshl_b32 s8, s8, 3
            v_mov_b32 v4, s8
            s_mov_b64 exec, 1
            global_store_dwordx2 v4, v[2:3], {self.dp}""")
        e.label("Lexit")
        e("s_endpgm")
        return e.text() + "".join(self.ool) + "Lcode_end:\n"


def kernel_file(body, hdr):
    k = NAME + "_kernel"
    return f"""{hdr}; @launch grid=(256,1,1) block=(256,1,1) lds=163840
.amdgcn_target "amdgcn-amd-amdhsa--gfx950"
.text
.globl {k}
.p2align 8
.type {k},@function
{k}:
{body}.section .rodata,"a"
.p2align 6
.amdhsa_kernel {k}
  .amdhsa_next_free_vgpr 512
  .amdhsa_next_free_sgpr 102
  .amdhsa_accum_offset 256
  .amdhsa_group_segment_fixed_size 0
  .amdhsa_kernarg_size 96
  .amdhsa_user_sgpr_count 2
  .amdhsa_user_sgpr_kernarg_segment_ptr 1
  .amdhsa_system_sgpr_workgroup_id_x 1
.end_amdhsa_kernel
"""


if __name__ == "__main__":
    ap = argparse.ArgumentParser()
    ap.add_argument("-o", default="k.s")
    ap.add_argument("--stop")
    ap.add_argument("--stamps")
    ap.add_argument("--log", action="store_true")
    ap.add_argument("--set", nargs="*", default=[])
    a = ap.parse_args()
    c = Cfg()
    c.stop = a.stop
    c.stamps = a.stamps.split(",") if a.stamps else None
    for kv in a.set:
        k, v = kv.split("=")
        setattr(c, k, eval(v))
    g = Gen(c)
    body = g.build()
    hdr = "; stamps: " + " ".join(g.stamp_names) + "\n" if c.stamps else ""
    open(a.o, "w").write(kernel_file(body, hdr))
    print("instrs", g.e.n_ins, "nops", g.e.nops, "barriers", g.nbar, "vgpr hi", g.V.hi, "agpr hi", g.A.hi, "sgpr hi", g.S.hi)
    if a.log:
        print("\n".join(g.log))
```

```python
import sys, math, argparse, struct
sys.path.insert(0, "gen")
from emit import *

NAME = "adaLN_cond__sliding_local_dilated__glu_gated_bilinear__prompt"

WS_E, WS_XID, WS_FLAGS, WS_G, WS_STATS = 0x0, 0x400, 0x1000, 0x10000, 0x80000
WS_O, WS_H2, WS_HH, WS_STAMP, WS_SIZE = 0x100000, 0x100000, 0x500000, 0xC00000, 0xD00000
GQ = 0x3000
GCOPY = 4 * GQ
NCOPY = 4
F_O, F_H, F_A, F_B = 0, 1, 2, 3
L_TBL2 = 0
L_PART = 1024
L_TBL = 2048
L_K = L_TBL
HB = 80 * 272
L_H0 = L_K + 80 * 144
L_V = L_H0
L_H1 = L_H0 + HB
L_RING = L_H1 + HB
L_END = 163840
L_RED = L_TBL
SLOTS = 5
WIN = 61440


def f2u(x):
    return struct.unpack("<I", struct.pack("<f", x))[0]


class Cfg:
    mimic = True
    stamps = None
    stop = None
    force_slow = False
    hh_sc1 = True
    preread = True
    spin = 1 << 16
    dma_every = 2
    pre_chunks = 4
    nx_first = 8
    nw_first = 0
    x_rate0 = 0.06
    x_rate = 1 / 12
    pre_rate = 1 / 14
    dma_hop1 = 8
    dma_hop2 = 8
    dma_hop3 = 8
    exp_nodma = False
    exp_skip = ''
    exp_nohh = False
    exp_noh2 = False
    act_fl = ' sc1'
    code_pf = True
    touch = 1
    tlb = 0
    touchq = 0
    mall_q = True
    t3 = 7
    n_pre = 15
    n_alpha, n_beta, n_gamma = 3, 8, 6
    lead_b = 12
    pauses = ()
    q_dma, q_dma0, q_stage = 0.75, 0, 0
    g_hi = (0.27, 0.3, 0.5)
    g_mix = (0.3, 0.15, 0.5)
    g_dma = (0.34, 0.4, 0.5)
    pre_tiles = 2
    pf_first = True
    fh_early = 1
    opt_o = 1
    opt_h = 0
    p3_16 = True
    slots16 = 3
    q_slots = 4
    fslots16 = 2
    q_fill = 3
    rot = 11
    rsh = 1
    gbit = 2
    exp_stagger = ()
    skip_idle = True
    rt = False
    psleep = 0
    p2_lead = 10
    sent = 0
    commit_late = False
    att_n = 1000
    dbg = False
    out_fl = ''
    nq_k = 1
    w_first = 24
    mallq_early = False
    np0 = 4
    n_rate = 0.12
    st_g2 = 14
    code_pf0 = True
    nx_pre = 4
    idle_pf = 0
    idle_off = 65536
    burst_a = False
    burst_b = True
    g_end = 0.4
    bg_early = 1
    bg_n = 5
    q_dma1 = 26
    uo_late = True
    hh_fast = 0
    wb_at = 0
    wb_who = 60
    h_full = True
    q_span = 2
    tq2 = 9
    q_hi, q_hi0 = 0.3, 26
    solo_reads = 0
    mall_pf = 2
    dma_p1 = 2
    dma_p3 = 3
    dma_p4 = 2
    dma_att = 0
    act_lead = 8
    dma_p2 = 0
    n_dir, n_stage = 8, 4
    stage_p1 = 0
    att_every = 20
    post_every = 0
    hi3, mix3 = 3, 3
    hi4, mix4 = 2, 2
    st_fa, st_ia, st_ca = 47, 50, 53
    st_fb, st_ib, st_cb = 74, 76, 78


class Lds:
    def __init__(self):
        self.free = []

    def add(self, a, n):
        for iv in self.free:
            assert a + n <= iv[0] or a >= iv[1], "double free"
        self.free.append([a, a + n])
        self.free.sort()
        m = []
        for iv in self.free:
            if m and m[-1][1] == iv[0]:
                m[-1][1] = iv[1]
            else:
                m.append(iv)
        self.free = m

    def alloc(self, n, span=0):
        for iv in self.free:
            a = iv[0]
            if iv[1] - a >= n:
                iv[0] += n
                if iv[0] == iv[1]:
                    self.free.remove(iv)
                return a
        return None


class Gate:
    is_open = False

    def open(self):
        self.is_open = True


class Mark:
    pass


class Skip:
    def __init__(self, n):
        self.n = n


class Unit:
    def __init__(self, name, size, dmas):
        self.name, self.size, self.dmas = name, size, dmas
        self.addr = None
        self.next = 0
        self.tok = None
        self.ready = False
        self.released = False


class Gen:
    def __init__(self, cfg):
        self.c = cfg
        self.e = Emit()
        self.V = RegAlloc("v", 256, first=1)
        self.A = RegAlloc("a", 256)
        self.S = RegAlloc("s", 102, first=44)
        self.lds = Lds()
        self.queue = []
        self.stamp_names = []
        self.nbar = 0
        self.cur_so = None
        self.dq = []
        self.log = []
        self.ool = []
        self.stq = []
        self.cur_so2 = None
        self.cur_m0 = None
        self.lname = 'L'

    def dma_prepare(self):
        while self.queue and self.queue[0].next >= len(self.queue[0].dmas):
            self.queue.pop(0)
        if not self.queue:
            return []
        u = self.queue[0]
        if u.addr is None:
            u.addr = self.lds.alloc(u.size)
            if u.addr is None:
                return []
        srd, vreg, soff, imm, loff = u.dmas[u.next]
        u.next += 1
        e = self.e
        L = []
        m0v = (str(getattr(u, "wreg", self.s_w1k)), u.addr + loff - imm)
        if m0v != self.cur_m0:
            L.append(lambda: e(f"s_add_u32 m0, {m0v[0]}, {m0v[1]}"))
            self.cur_m0 = m0v
        if callable(soff):
            soff = soff()
        if soff and soff != self.cur_so:
            for t in self.so_code(self.s_so, soff):
                L.append(lambda t=t: e(t))
            self.cur_so = soff
        so = self.s_so if soff else 0
        im = f" offset:{imm}" if imm else ""

        if (self.c.exp_nodma and getattr(self, "in_loop", False)) or u.name[0] in self.c.exp_skip:
            u.tok = u.tok or 0
            return [lambda: None]

        def ld():
            u.tok = e(f"buffer_load_dwordx4 {vreg}, {srd}, {so} offen{im} lds")
            u.pending_piece = False
        u.pending_piece = True
        L.append(ld)
        return L

    def so_code(self, d, soff):
        if not isinstance(soff, tuple):
            return [f"s_mov_b32 {d}, {soff}"]
        r, m, k = soff
        if m == "x":
            return [f"s_xor_b32 {d}, {r}, {k}"]
        if m == 1:
            return [f"s_add_u32 {d}, {r}, {k}"]
        return [f"s_mul_i32 {d}, {r}, {m}"] + ([f"s_add_u32 {d}, {d}, {k}"] if k else [])

    def stage_prepare(self):
        while self.stq and self.stq[0].next >= len(self.stq[0].dmas):
            self.stq.pop(0)
        if not self.stq:
            return []
        u = self.stq[0]
        srd, vreg, soff, imm, loff = u.dmas[u.next]
        r = self.A.alloc(4)
        u.sregs = getattr(u, "sregs", []) + [(r, loff)]
        u.next += 1
        e = self.e
        L = []
        if soff != self.cur_so2:
            L.append(lambda: e(f"s_mov_b32 {self.s_so2}, {soff}"))
            self.cur_so2 = soff
        im = f" offset:{imm}" if imm else ""
        L.append(lambda: e(f"buffer_load_dwordx4 {r}, {vreg}, {srd}, {self.s_so2} offen{im}"))
        return L

    def stage_step(self):
        self.dma_flush()
        L = self.stage_prepare()
        for f in L:
            f()
        return bool(L)

    def commit(self, units, v_w16):
        L = []
        for u in units:
            if u.addr is not None:
                continue
            assert u.next >= len(u.dmas), "commit of a unit that is not fully staged"
            u.addr = self.lds.alloc(u.size)
            if u.addr is None:
                break
            for r, loff in u.sregs:
                def w(u=u, r=r, loff=loff):
                    wi, o = divmod(u.addr + loff, WIN)
                    u.ltok = self.e(f"ds_write_b128 {v_w16[wi]}, {r} offset:{o}")
                    self.A.release(r)
                L.append(w)
            u.staged = True
        return L

    def dma_flush(self):
        while self.dq:
            self.dq.pop(0)()

    def dma_step(self):
        self.dma_flush()
        L = self.dma_prepare()
        for f in L:
            f()
        return bool(L)

    def dma_all(self, limit=10 ** 9):
        n = 0
        while n < limit and self.dma_step():
            n += 1
        return n

    def barrier(self, ready=(), release=(), lg=sys.maxsize, tag=""):
        e = self.e
        ready = [u for u in ready if not u.ready]
        late = 0
        for u in ready:
            if getattr(u, "staged", False):
                u.ready = True
                lg = max(lg or 0, u.ltok)
        ready = [u for u in ready if not u.ready]
        for u in ready:
            if getattr(u, "pending_piece", False):
                self.dma_flush()
            while u.next < len(u.dmas):
                assert self.dma_step(), f"LDS ring deadlock at unit {u.name}"
                late += 1
        self.stamp(f"b{self.nbar}a")
        if ready:
            tk = max(u.tok for u in ready)
            self.log.append(f"bar {self.nbar} {tag}: ready {ready[0].name}..{ready[-1].name} late={late} younger_vm={e.vm_issued - tk} ins={e.n_ins}")
            e.wait(vm=tk)
        self.stamp(f"b{self.nbar}v")
        if lg is not None:
            e.wait(lg=min(lg, e.lg_issued))
        e("s_barrier")
        self.stamp(f"b{self.nbar}e")
        self.nbar += 1
        for u in ready:
            u.ready = True
        for u in release:
            if not u.released:
                u.released = True
                self.lds.add(u.addr, u.size)

    def stamp(self, name):
        if self.c.stamps and (name in self.c.stamps or self.c.stamps == "all" and len(self.stamp_names) < 15 or name in ("t0", "end")):
            r = self.stamp_regs[len(self.stamp_names)]
            self.e(f"s_memtime {r}")
            self.stamp_names.append(name)
            if self.c.rt and name not in ("t0", "end"):
                self.e(f"s_memrealtime {self.stamp_regs[len(self.stamp_names)]}")
                self.stamp_names.append("r" + name)

    def interleave(self, main, fill, ratio):
        acc = 0.0
        fill = list(fill)
        for m in main:
            m() if callable(m) else self.e(m)
            acc += ratio
            while acc >= 1.0 and fill:
                f = fill.pop(0)
                f() if callable(f) else self.e(f)
                acc -= 1.0
        return fill

    def bg_on(self, every, limit, stage=True, nmax=1000):
        e = self.e
        st = dict(n=0, busy=False)

        def hook():
            if st["busy"] or e.in_cond or e.hist[-1].op.startswith(("s_cmp", "s_cbranch")):
                return
            st["n"] += 1
            if st["n"] >= every and st.get("c", 0) < nmax:
                st["c"] = st.get("c", 0) + 1
                st["n"] = 0
                st["busy"] = True
                lim = limit[0]
                if not (lim.next < len(lim.dmas) and self.dma_step()) and stage:
                    self.stage_step()
                st["busy"] = False
        e.hook = hook if every else None

    def bg_off(self):
        self.e.hook = None

    def exp_delay(self, where):
        n = dict(self.c.exp_stagger).get(where, 0)
        if n:
            e = self.e
            L = e.newlabel("Lst")
            e("s_bitcmp1_b32 s2, 7")
            e(f"s_cbranch_scc0 {L}")
            for _ in range(n):
                e("s_sleep 8")
            e.label(L)

    def bf16r(self, d, s):
        return [f"v_cvt_pk_bf16_f32 {d}, {s}, {s}", f"v_and_b32 {d}, 0xffff0000, {d}"]

    def poll(self, loads, checks, pre=None):
        e = self.e
        self.dma_flush()
        L = e.newlabel("Lpoll")
        e(f"s_mov_b32 {self.s_spin}, 0")
        if self.c.psleep:
            L2 = e.newlabel("Lfirst")
            e(f"s_branch {L2}")
        e.label(L)
        if self.c.psleep:
            e(f"s_sleep {self.c.psleep}")
            e.label(L2)
        e(f"s_add_u32 {self.s_spin}, {self.s_spin}, 1")
        e(f"s_cmp_gt_u32 {self.s_spin}, {self.c.spin}")
        e("s_cbranch_scc1 Lexit")
        for t in loads:
            e(t)
        e.force_vm0()
        for t in pre or []:
            e(t)
        if not checks:
            pass
        elif len(checks) == 1:
            e(f"v_cmp_ne_u32 vcc, {self.s_tag}, {checks[0]}")
        else:
            t = self.v_tmp
            e(f"v_xor_b32 {t}, {checks[0]}, {self.v_tag}")
            rest = list(checks[1:])
            for r in rest:
                e(f"v_xor_b32 {r}, {r}, {self.v_tag}")
            while len(rest) >= 2:
                e(f"v_or3_b32 {t}, {t}, {rest.pop()}, {rest.pop()}")
            if rest:
                e(f"v_or_b32 {t}, {t}, {rest.pop()}")
            e(f"v_cmp_ne_u32 vcc, 0, {t}")
        e(f"s_cbranch_vccnz {L}")

    def store2(self, fmt_list):
        e = self.e
        Ls, Lj = e.newlabel("Lslow"), e.newlabel("Ljoin")
        e(f"s_cmp_eq_u32 {self.s_mode}, 0")
        e(f"s_cbranch_scc1 {Ls}")
        save = (e.vm_issued, e.vm_done, list(e.hist))
        n0 = len(e.out)
        tok = None
        for t in fmt_list:
            tok = e(t.format(f="")) or tok
        for o in e.out[n0:]:
            assert o.op != "s_waitcnt", "operand of mode-dependent store not ready"
        e(f"s_branch {Lj}")
        e.label(Ls)
        e.vm_issued, e.vm_done, e.hist = save
        for t in fmt_list:
            e(t.format(f=" sc1"))
        e.label(Lj)
        return tok

    def flag_store(self, vaddr, off):
        e = self.e
        e("s_mov_b64 exec, 1")
        self.store2([f"buffer_store_dword {self.v_tag}, {vaddr}, s[36:39], 0 offen offset:{off}" + "{f}"])
        e("s_mov_b64 exec, -1")

    def loop_prologue(self, steps, PD=2):
        for i in range(min(PD, len(steps))):
            self._bar_for(steps, i, -1)
            steps[i]["tok"] = [self.e(r) for r in steps[i]["reads"]()][-1]

    def _bar_for(self, steps, i, cur):
        st = steps[i]
        need = [u for u in st["units"] if not u.ready]
        if st.get("bar") or need:
            if st.get("prebar"):
                st["prebar"]()
            k = i
            ready = []
            for k in range(i, min(i + st.get("span", 1), len(steps))):
                ready += [u for u in steps[k]["units"] if u not in ready]
            live = {id(u) for s2 in steps[cur + 1:] for u in s2["units"]}
            dead = [u for s2 in steps[:cur + 1] for u in s2["units"] if id(u) not in live] + st.get("release", [])
            self.barrier(ready=ready, release=dead, lg=st["lg"]() if st.get("lg") else None, tag=f"step{i}")
            if st.get("postbar"):
                st["postbar"]()

    def mfma_loop(self, steps, fill, rates, PD=2, rng=None, hi=None):
        e = self.e
        cnt = 0
        self.in_loop = True
        a, b = rng or (0, len(steps))
        hi = hi if hi is not None else []
        cred = [0.0, 0.0, 0.0]
        for i in range(a, b):
            st = steps[i]
            nxt = steps[i + PD] if i + PD < len(steps) else None
            rq = []
            nm = len(st["mfmas"])
            self.stamp(f"{getattr(self, 'lname', 'L')}{i}")
            for j, mf in enumerate(st["mfmas"]):
                if j == 0:
                    for f in st.get("pre", []):
                        f()
                    vm = None
                    for m2 in st["mfmas"][:st.get("wspan", 2)]:
                        for r in Ins(m2).src:
                            t = e.pend.get(r)
                            if t and t[0] == "vm":
                                vm = max(vm or 0, t[1])
                    e.wait(vm=vm, lg=st["tok"])
                e(mf)
                cnt += 1
                n0 = e.n_ins
                if j == 0 and nxt:
                    self._bar_for(steps, i + PD, i)
                    rq = list(nxt["reads"]())
                while fill and (isinstance(fill[0], Mark) or (isinstance(fill[0], Gate) and fill[0].is_open)):
                    fill.pop(0)
                if fill and getattr(fill[0], "solo", False) and j < nm - 1 and e.n_ins == n0:
                    fill.pop(0)()
                    for _ in range(min(self.c.solo_reads, len(rq))):
                        nxt["tok"] = e(rq.pop(0))
                    continue
                k = math.ceil(len(rq) / (nm - j))
                for _ in range(k):
                    tk = e(rq.pop(0))
                    nxt["tok"] = tk
                budget = st.get("slots", SLOTS) - ((1 + (steps[i + 1].get("resv", 0) if i + 1 < len(steps) else 0)) if j == nm - 1 else 0)
                while hi and isinstance(hi[0], Gate) and hi[0].is_open:
                    hi.pop(0)
                hi_ok = bool(hi) and not isinstance(hi[0], Gate)
                hr, dr, sr = [x * st.get("rscale", 1.0) for x in rates(i, hi_ok)]
                cred[0] = min(cred[0] + hr, 1.9) if hi_ok else 0.0
                cred[1] = min(cred[1] + dr, 1.9)
                cred[2] = min(cred[2] + sr, 1.9)
                if hi_ok and cred[0] >= 0.999 and (e.n_ins - n0 < budget or cred[0] >= 1.5):
                    cred[0] -= 1.0
                    hi.pop(0)()
                elif not self.dq:
                    if cred[1] >= 0.999:
                        self.dq = self.dma_prepare()
                        if self.dq:
                            cred[1] -= 1.0
                    if not self.dq and cred[2] >= 0.999:
                        self.dq = self.stage_prepare()
                        if self.dq:
                            cred[2] -= 1.0
                while e.n_ins - n0 < budget and self.dq:
                    self.dq.pop(0)()
                if "fslots" in st:
                    budget -= st["slots"] - st["fslots"]
                while e.n_ins - n0 < budget and fill:
                    if isinstance(fill[0], Gate):
                        if not fill[0].is_open:
                            break
                        fill.pop(0)
                        continue
                    if isinstance(fill[0], Mark):
                        fill.pop(0)
                        continue
                    if isinstance(fill[0], Skip):
                        fill[0].n -= 1
                        if fill[0].n <= 0:
                            fill.pop(0)
                        break
                    if getattr(fill[0], "solo", False):
                        break
                    f = fill.pop(0)
                    f() if callable(f) else e(f)
        self.dma_flush()

    def verify(self, frags, vaddr):
        e = self.e
        tm, t2 = self.v_tmp, self.v_tmp2

        def chk():
            L = []
            src = []
            for k, (r, o) in enumerate(frags):
                if r.kind == "a":
                    d = (tm, t2)[k]
                    L.append(f"v_accvgpr_read_b32 {d}, {r[0]}")
                    src.append(d)
                else:
                    src.append(r[0])
            if len(src) == 2:
                L.append(f"v_max_u32 {tm}, {src[0]}, {src[1]}")
                src = [tm]
            L.append(f"v_cmp_eq_u32 vcc, -1, {src[0]}")
            return L
        Ls, Lb = e.newlabel("Lretry"), e.newlabel("Lback")
        for t in chk():
            e(t)
        e(f"s_cbranch_vccnz {Ls}")
        e.label(Lb)
        ld = "".join(f"    s_mov_b32 {self.s_rt}, {o}\n    buffer_load_dwordx4 {r}, {vaddr}, s[36:39], {self.s_rt} offen sc1\n" for r, o in frags)
        ck = "".join(f"    {t}\n" for t in chk())
        self.ool.append(f"""{Ls}:
    s_mov_b32 {self.s_spin}, 0
{Ls}_1:
    s_add_u32 {self.s_spin}, {self.s_spin}, 1
    s_cmp_gt_u32 {self.s_spin}, {self.c.spin}
    s_cbranch_scc1 Lexit
{ld}    s_waitcnt vmcnt(0)
{ck}    s_cbranch_vccnz {Ls}_1
    s_branch {Lb}
""")

    def opt_check(self, vaddr, off, reg):
        e = self.e
        box = {}

        def issue():
            box["tok"] = e(f"buffer_load_dword {reg}, {vaddr}, s[36:39], 0 offen offset:{off} sc1")

        def check():
            Ls, Lb = e.newlabel("Lretry"), e.newlabel("Lback")
            e(f"v_cmp_ne_u32 vcc, {self.s_tag}, {reg}")
            e(f"s_cbranch_vccnz {Ls}")
            e.label(Lb)
            self.ool.append(f"""{Ls}:
    s_mov_b32 {self.s_spin}, 0
{Ls}_1:
    s_add_u32 {self.s_spin}, {self.s_spin}, 1
    s_cmp_gt_u32 {self.s_spin}, {self.c.spin}
    s_cbranch_scc1 Lexit
    buffer_load_dword {reg}, {vaddr}, s[36:39], 0 offen offset:{off} sc1
    s_waitcnt vmcnt(0)
    v_cmp_ne_u32 vcc, {self.s_tag}, {reg}
    s_cbranch_vccnz {Ls}_1
    s_branch {Lb}
""")
        return issue, check

    def drain_to(self, fill, mark):
        if mark is not None and mark not in fill:
            return
        while fill:
            f = fill.pop(0)
            if f is mark:
                return
            if isinstance(f, Gate):
                assert f.is_open
            elif not isinstance(f, (Mark, Skip)):
                f() if callable(f) else self.e(f)

    def finish_stats(self, sm, sq, rho, nmr, n):
        L = [f"v_mul_f32 {sm}, 0x{f2u(1.0 / n):08x}, {sm}",
             f"v_mul_f32 {sq}, 0x{f2u(1.0 / n):08x}, {sq}",
             f"v_fma_f32 {sq}, -{sm}, {sm}, {sq}",
             f"v_max_f32 {sq}, 0, {sq}"]
        if self.c.mimic:
            L += self.bf16r(sq, sq)
            L += [f"v_add_f32 {sq}, 0x{f2u(1e-5):08x}, {sq}"]
            L += self.bf16r(sq, sq)
            L += [f"v_sqrt_f32 {sq}, {sq}"]
            L += self.bf16r(sm, sm)
            L += self.bf16r(sq, sq)
            L += [f"v_rcp_f32 {rho}, {sq}"]
        else:
            L += [f"v_add_f32 {sq}, 0x{f2u(1e-5):08x}, {sq}", f"v_rsq_f32 {rho}, {sq}"]
        L += [f"v_mul_f32_e64 {nmr}, -{sm}, {rho}"]
        return L

    def build(self):
        c, e, V, A, S = self.c, self.e, self.V, self.A, self.S
        global L_TBL, L_K, L_H0, L_V, L_H1, L_RING, L_RED
        if c.h_full:
            L_H0 = 2048
            L_H1 = L_H0 + HB
            L_V = L_H0 + 2 * HB
            L_K = L_V - 80 * 144
            L_TBL = L_H0 + 4 * HB
            L_RING = L_TBL + 4096
            L_RED = L_K
            LH = [L_H0 + k * HB for k in range(4)]
        else:
            LH = [L_H0, L_H1, L_H0, L_H1]
        X, WQ, WO, WG, WU, WD, WM, OUT, WS, CC = [f"s[{4 + 4 * i}:{7 + 4 * i}]" for i in range(10)]
        e("s_cmp_ge_u32 s2, 256")
        e("s_cbranch_scc1 Lexit")
        if c.stamps:
            self.stamp_regs = [S.alloc(2) for _ in range(min(14, len(c.stamps) * (2 if c.rt else 1) + 2))]
            self.rt0, self.rt1 = S.alloc(2), S.alloc(2)
            e(f's_memrealtime {self.rt0}')
        self.stamp("t0")
        if c.dbg:
            self.d0, self.d1, self.dp = S.alloc(2), S.alloc(2), S.alloc(2)
            e(f"s_memtime {self.d0}\ns_memrealtime {self.d1}\ns_load_dwordx2 {self.dp}, s[0:1], 80")
        srds = {0: (0, 2048 * 1024), 6: (64, 512 * 6144), 9: (56, 1024), 8: (88, WS_SIZE), 1: (8, 512 * 3072), 2: (16, 512 * 1024),
                3: (32, 512 * 3584), 4: (40, 512 * 3584), 5: (48, 1792 * 1024), 7: (72, 2048 * 1024)}

        def srd_ptr(i):
            e(f"s_load_dwordx2 s[{4 + 4 * i}:{5 + 4 * i}], s[0:1], {srds[i][0]}")

        def srd_words(i):
            e(f"s_mov_b32 s{6 + 4 * i}, {srds[i][1]}")
            e(f"s_mov_b32 s{7 + 4 * i}, 0x20000")
        for i in (0, 6, 9, 8):
            srd_ptr(i)
        sa = lambda: S.alloc(1)
        s_w, s_tb, s_kh, s_g, s_m, s_hg, s_TB = [sa() for _ in range(7)]
        self.s_w1k, self.s_so, self.s_spin, self.s_tag, self.s_mode, self.s_so2 = [sa() for _ in range(6)]
        s_w1k, s_tag = self.s_w1k, self.s_tag
        t0, t1, t2, t3 = [sa() for _ in range(4)]
        s_idx, s_col0, s_flb, s_tile, s_hh = sa(), sa(), sa(), sa(), sa()
        v_l, v_t, v_hh = V.alloc(), V.alloc(), V.alloc()
        self.v_tmp, self.v_tmp2 = V.alloc(), V.alloc()
        self.s_rt = Reg('s', 3, 1)
        self.v_tag = V.alloc()
        u0, u1, u2, u3 = [V.alloc() for _ in range(4)]
        v_dq, v_dw, v_dd, v_dA = [V.alloc() for _ in range(4)]
        v_fl, v_l16, v_trn = V.alloc(), V.alloc(), V.alloc()
        a_dummy = A.alloc_top(4)
        a_ones = A.alloc_top(4)
        hinit = {}
        v_c, v_wm, v_x = V.alloc(), V.alloc(), V.alloc()
        e(f"""s_and_b32 {t3}, s2, 7
        s_lshr_b32 {s_idx}, s2, 3
        s_lshr_b32 {t0}, {s_idx}, 3
        s_lshl_b32 {t0}, {t0}, 6
        s_lshl_b32 {t1}, {t3}, 8
        s_add_u32 {t0}, {t0}, {t1}
        s_sub_u32 {t0}, {t0}, 16
        v_lshrrev_b32 {u2}, 6, v0
        v_mul_u32_u24 {u0}, 20, {u2}
        v_bfe_u32 {u1}, v0, 4, 2
        v_add3_u32 {u0}, {u0}, {u1}, {t0}
        v_and_b32 {u1}, 15, v0
        v_lshlrev_b32 {u0}, 10, {u0}
        v_lshl_add_u32 {v_x}, {u1}, 4, {u0}""")
        srd_words(0)
        s_rx = [sa() for _ in range(4)]
        pre2 = f"""s_min_u32 {t0}, {s_idx}, 23
        s_lshr_b32 {t1}, {t0}, 2
        s_lshl_b32 {t1}, {t1}, 3
        s_add_u32 {s_col0}, {t1}, {t3}
        s_and_b32 {t0}, {t0}, 3
        s_lshl_b32 {t0}, {t0}, 7
        v_lshrrev_b32 {u0}, 3, v0
        v_add_u32 {u0}, {t0}, {u0}
        v_lshlrev_b32 {v_c}, 1, {u0}
        v_mul_u32_u24 {v_wm}, 6144, {u0}
        v_and_b32 {u1}, 7, v0
        v_lshlrev_b32 {u1}, 4, {u1}
        s_lshl_b32 {t0}, {s_col0}, 7
        v_add3_u32 {v_wm}, {v_wm}, {u1}, {t0}"""
        pre3 = f"""v_readfirstlane_b32 {s_w}, {u2}
        v_and_b32 {v_l}, 63, v0
        v_and_b32 {v_t}, 31, v0
        v_lshrrev_b32 {v_hh}, 5, {v_l}
        s_lshr_b32 {t0}, {s_idx}, 4
        s_lshl_b32 {s_g}, {t3}, 1
        s_add_u32 {s_g}, {s_g}, {t0}
        s_and_b32 {s_m}, {s_idx}, 15
        s_and_b32 {s_hg}, {s_m}, 7
        s_and_b32 {s_tb}, {s_w}, 1
        s_lshr_b32 {s_kh}, {s_w}, 1
        s_lshl_b32 {s_w1k}, {s_w}, 10
        s_lshl_b32 {s_TB}, {s_g}, 2
        s_lshr_b32 {t0}, {s_m}, 3
        s_lshl_b32 {t0}, {t0}, 1
        s_add_u32 {s_TB}, {s_TB}, {t0}
        s_add_u32 {s_TB}, {s_TB}, {s_tb}"""
        cv = V.alloc(4)
        wmv = V.alloc(16)
        XN = [[None] * 4 for _ in range(5)]
        xn_all = V.alloc_top(184)
        for i in range(5):
            for ch in range(4):
                XN[i][ch] = xn_all.sub((((ch + 3) % 4) * 5 + i) * 8, 8)
        def lines(srd, n, base_code, stride=128):
            return base_code + [f"v_mul_u32_u24 {u0}, {stride}, {v_l}", f"v_cmp_le_u32 vcc, {n}, {v_l}", f"v_add_u32 {u0}, {t0}, {u0}",
                                f"v_cndmask_b32 {u0}, {u0}, -1, vcc",
                                lambda: e(f"buffer_load_dword {a_dummy[0]}, {u0}, {srd}, 0 offen", track=False)]

        def mall(srd, n):
            return lines(srd, n, [f"s_lshl_b32 {t0}, s2, 2", f"s_add_u32 {t0}, {t0}, {s_w}", f"s_mul_i32 {t0}, {t0}, {n * 128}"])

        def touch3(srd, rows, pitch):
            return lines(srd, rows, [f"s_lshl_b32 {t0}, {s_idx}, 2", f"s_add_u32 {t0}, {t0}, {s_w}", f"s_mul_i32 {t0}, {t0}, {rows * pitch}",
                                     f"s_add_u32 {t0}, {t0}, 384"], stride=pitch)

        def run(L):
            for t in L:
                t() if callable(t) else e(t)
        xld = []
        for i in range(5):
            for ch in range(4):
                t = f"buffer_load_dwordx4 {XN[i][ch].sub(4, 4)}, {v_x}, {X}, 0 offen offset:{256 * ch}"
                if ch == 3 and i < 4:
                    t += f"\nv_add_u32 {v_x}, 4096, {v_x}"
                xld.append(t)
        e.wait_all_lg()
        self.stamp("ka")
        self.exp_delay("start")
        if c.touch:
            srd_words(6)
            e(f"""v_and_b32 {u1}, 63, v0
            v_mul_u32_u24 {u0}, 20, {u2}
            v_add3_u32 {u0}, {u0}, {u1}, {t0}
            v_lshlrev_b32 {u0}, 10, {u0}
            s_and_b32 {t1}, {s_idx}, 7
            s_lshl_b32 {t1}, {t1}, 7
            v_cmp_lt_u32 vcc, 19, {u1}
            v_add_u32 {u0}, {t1}, {u0}
            s_min_u32 {t0}, {s_idx}, 23
            v_cndmask_b32 {u0}, {u0}, -1, vcc""")
            e(f"buffer_load_dword {a_dummy[0]}, {u0}, {X}, 0 offen", track=False)
        if c.code_pf0:
            e(f"""s_getpc_b64 vcc
            v_and_b32 {u1}, 63, v0
            v_lshlrev_b32 {u1}, 6, {u1}""")
            e(f"global_load_dword {a_dummy[0]}, {u1}, vcc", track=False)
        for t in xld[:c.nx_pre]:
            e(t)
        xld2 = xld[c.nx_pre:c.nx_first]
        xld = xld[c.nx_first:]
        srd_words(6); srd_words(9)
        e(pre2)
        for i in range(4):
            e(f"buffer_load_ushort {cv[i]}, {v_c}, {CC}, 0 offen offset:{64 * i}")
        wld = [(f"s_mov_b32 {self.s_so}, {i * 32 * 6144}\n" if i else "") +
               f"buffer_load_dwordx4 {wmv.sub(4 * i, 4)}, {v_wm}, {WM}, {self.s_so if i else 0} offen" for i in range(4)]
        if c.w_first:
            e(f"""s_cmp_ge_u32 {s_idx}, {c.w_first}
            s_cselect_b32 s30, 0, s30""")
            run(wld)
        self.stamp("wis")
        e(f"s_load_dword {s_tag}, s[36:37], {WS_E}")
        for i in (1, 2, 3, 4, 5, 7):
            srd_ptr(i)
        for i in (8, 1, 2, 3, 4, 5, 7):
            srd_words(i)
        e(pre3)
        if c.tlb:
            e(f"v_lshlrev_b32 {u0}, 21, {v_l}")
            for srd in (WQ, WS, WO, WG, WU, WD, OUT):
                e(f"buffer_load_dword {a_dummy[0]}, {u0}, {srd}, 0 offen offset:2048", track=False)
        s_st = sa()
        e(f"""s_lshl_b32 {t0}, {s_TB}, 12
        s_lshr_b32 {t1}, {s_hg}, 1
        s_lshl_b32 {t1}, {t1}, 10
        s_add_u32 {t0}, {t0}, {t1}
        s_and_b32 {t1}, {s_hg}, 1
        s_lshl_b32 {t1}, {t1}, 3
        s_add_u32 {t0}, {t0}, {t1}
        s_lshl_b32 {t1}, {s_kh}, 2
        s_add_u32 {t0}, {t0}, {t1}
        s_add_u32 {s_st}, {t0}, {WS_STATS}
        v_lshlrev_b32 {v_l16}, 4, {v_l}
        v_mov_b32 {u3}, -1""")
        for k in range(4):
            e(f"v_accvgpr_write_b32 {a_ones[k]}, -1")
        tok_init = e(f"buffer_store_dword {u3}, {v_l16}, {WS}, {s_st} offen sc1")
        late_ops = []
        if c.code_pf:
            pc = 's[0:1]'
            e(f"""s_getpc_b64 {pc}
            s_lshl_b32 {t0}, {s_idx}, 2
            s_add_u32 {t0}, {t0}, {s_w}
            s_mul_i32 {t0}, {t0}, 320
            v_mul_u32_u24 {u0}, 5, {v_l}
            v_add_u32 {u0}, {t0}, {u0}
            v_and_b32 {u0}, -4, {u0}
            v_min_u32 {u0}, Lcode_end-Lcode_pf-4, {u0}""")
            e.label("Lcode_pf")
            e(f"global_load_dword {a_dummy[0]}, {u0}, {pc}", track=False)
        if c.mall_q:
            if c.mallq_early:
                run(mall(WQ, 12))
            else:
                late_ops += mall(WQ, 12)
        self.lds.add(L_RING, L_END - L_RING)
        UQ = [Unit(f"q{u}", 12288, [(WQ, v_dq, (str(s_rx[u & 3]), 6, (u // 4) * 393216), mt * 1024, mt * 1024) for mt in range(3)]) for u in range(16)]
        s_w3k = sa()
        for u in UQ:
            u.wreg = s_w3k
        s_mo = sa()
        UO = [Unit(f"o{i}", 8192, [(WO, v_dw, (str(s_mo), "x", (2 * i + h) * 16384), 0, 4096 * h) for h in range(2)]) for i in range(8)]
        v_dA2 = V.alloc()
        vA = lambda u: v_dA2 if (u >> c.gbit) & 1 else v_dA
        uo = lambda u: (u & ~(1 << c.gbit)) * 32 * 3584
        UA = [Unit(f"a{u}", 8192 + 64, [(WG, vA(u), uo(u), 0, 0), (WU, vA(u), uo(u), 0, 4096 + 32)]) for u in range(16)]
        UB = [Unit(f"b{u}", 8192 + 64, [(WG, vA(u), uo(u), 128, 0), (WU, vA(u), uo(u), 128, 4096 + 32)]) for u in range(16)]
        fbA = [8 * mm + cb for mm in range(7) for cb in range(4)]
        fbB = [8 * mm + 4 + cb for mm in range(7) for cb in range(4)]
        fbs = fbA + fbB
        UD = [Unit(f"d{i}", 8192, [(WD, v_dd, (str(s_rx[0 if fbs[2 * i] < 48 else 1]), "x", fbs[2 * i + h] * 16384), 0, 4096 * h) for h in range(2)])
              for i in range(28)]
        UG = UA + UB
        staged = UG[c.n_dir:c.n_dir + c.n_stage]
        self.stq = list(staged)
        self.queue = UQ + UO + UG[:c.n_dir] + UG[c.n_dir + c.n_stage:] + UD
        v_r8, v_b64 = V.alloc(), V.alloc()
        addr_code = f"""v_lshlrev_b32 {v_r8}, 2, {v_hh}
        v_bfe_u32 {u0}, {v_l}, 2, 2
        v_add_u32 {v_r8}, {v_r8}, {u0}
        v_bfe_u32 {u0}, {v_l}, 4, 1
        v_lshlrev_b32 {u0}, 6, {u0}
        v_and_b32 {u1}, 3, {v_l}
        v_lshlrev_b32 {u1}, 4, {u1}
        v_add_u32 {v_b64}, {u0}, {u1}
        s_lshl_b32 {t0}, {s_w}, 3
        v_add_u32 {u0}, {t0}, {v_r8}
        v_mul_u32_u24 {u1}, 3072, {u0}
        s_lshl_b32 {t2}, {s_hg}, 7
        s_lshl_b32 {t1}, {s_tb}, 5
        v_xor_b32 {u2}, {t1}, {v_b64}
        v_add3_u32 {v_dq}, {u1}, {u2}, {t2}
        v_mul_u32_u24 {v_dA}, 3584, {u0}
        s_lshl_b32 {t0}, {s_kh}, 8
        s_lshl_b32 {t1}, {s_tb}, 3
        s_add_u32 {t0}, {t0}, {t1}
        v_add_u32 {u0}, {t0}, {v_r8}
        v_lshlrev_b32 {u0}, 10, {u0}
        v_add3_u32 {v_dw}, {u0}, {u2}, {t2}
        s_mul_i32 {t0}, {s_kh}, {56 * 16}
        s_add_u32 {t0}, {t0}, {t1}
        v_add_u32 {u0}, {t0}, {v_r8}
        v_lshlrev_b32 {u0}, 10, {u0}
        v_lshlrev_b32 {u1}, 5, {v_hh}
        v_xor_b32 {u1}, {u1}, {v_b64}
        v_add3_u32 {v_dd}, {u0}, {u1}, {t2}
        s_lshl_b32 {t3}, {s_m}, 8
        v_add3_u32 {v_dA}, {v_dA}, {u1}, {t3}
        s_lshr_b32 {t3}, {s_idx}, 4
        s_mul_i32 {t3}, {t3}, {(32 * 3584 << c.gbit) if c.rot & 2 else 0}
        s_sub_u32 {t2}, {32 * 3584 << c.gbit}, {t3}
        v_add_u32 {v_dA2}, {t2}, {v_dA}
        v_add_u32 {v_dA}, {t3}, {v_dA}"""
        addr_code += f"""
        s_mul_i32 {s_w3k}, {s_w}, 3072
        v_and_b32 {u0}, 3, {v_l}
        v_lshlrev_b32 {u0}, 3, {u0}
        v_bfe_u32 {u1}, {v_l}, 2, 2
        v_lshlrev_b32 {u1}, 6, {u1}
        v_add_u32 {u0}, {u0}, {u1}
        v_bfe_u32 {u1}, {v_l}, 4, 1
        v_lshlrev_b32 {u1}, 5, {u1}
        v_add_u32 {v_trn}, {u0}, {u1}
        s_lshl_b32 {t0}, {s_g}, 11
        s_and_b32 {t1}, {s_TB}, 3
        s_lshl_b32 {t1}, {t1}, 7
        s_add_u32 {t0}, {t0}, {t1}
        s_add_u32 {s_flb}, {t0}, {WS_FLAGS}
        s_lshl_b32 {t1}, {s_hg}, 3
        s_lshl_b32 {t2}, {s_kh}, 2
        s_add_u32 {t1}, {t1}, {t2}
        s_add_u32 {t1}, {t1}, {s_flb}
        v_mov_b32 {v_fl}, {t1}"""
        al = [l.strip() for l in addr_code.split("\n")]
        run(al)
        if c.rot & 1:
            e(f"s_lshr_b32 {s_rx[0]}, {s_idx}, 3\ns_lshl_b32 {s_rx[0]}, {s_rx[0]}, 14")
        else:
            e(f"s_mov_b32 {s_rx[0]}, 0")
        for k in range(1, 4):
            e(f"s_xor_b32 {s_rx[k]}, {s_rx[0]}, {16384 * k}")
        e(f"s_lshl_b32 {s_mo}, {s_rx[0]}, 1")
        parked = {}

        def park(name, reg):
            parked[name] = A.alloc(1)
            e(f"v_accvgpr_write_b32 {parked[name]}, {reg}")

        def unpark(name, reg, keep=False):
            t = f"v_accvgpr_read_b32 {reg}, {parked[name]}"
            return t

        def addr_of(L, name):
            run(L[:-1])
            park(name, u0)
        addr_of(mall(WO, 4), "m4"); addr_of(mall(WG, 14), "m14"); addr_of(touch3(WQ, 12, 1024), "t3q")
        w0, w1 = v_r8, v_b64
        e(f"""s_mul_i32 {t0}, {s_tb}, {32 * 272}
        s_add_u32 {t0}, {t0}, {16 * 272}
        v_and_b32 {u1}, 15, {v_l}
        v_mul_u32_u24 {u2}, 272, {u1}
        v_and_b32 {u0}, 48, {v_l}
        v_add_u32 {w1}, {u0}, {u2}
        v_add_u32 {w0}, {t0}, {w1}""")
        park("hm", w0); park("hhalo", w1)
        e(f"""v_lshlrev_b32 {w0}, 5, {u1}
        v_lshrrev_b32 {u2}, 4, {v_l}
        s_mul_i32 {t0}, {s_w}, 20
        v_add_u32 {u2}, {t0}, {u2}
        v_mul_u32_u24 {u2}, 272, {u2}
        s_lshr_b32 {t0}, {s_rx[0]}, 12
        v_xor_b32 {u3}, {t0}, {u1}
        v_lshl_add_u32 {w1}, {u3}, 4, {u2}""")
        park("cst", w0); park("hw", w1)
        e(f"""v_lshrrev_b32 {u0}, 4, {v_l}
        v_mul_u32_u24 {u0}, 3072, {u0}
        s_lshl_b32 {t1}, {s_tb}, 5
        v_xor_b32 {u2}, {t1}, {v_trn}
        s_lshl_b32 {t0}, {s_kh}, 8
        v_add3_u32 {w0}, {u2}, {u0}, {t0}
        s_and_b32 {t0}, s2, {NCOPY - 1}
        s_mul_i32 {t0}, {t0}, {GCOPY}
        s_add_u32 {t0}, {t0}, {WS_G}
        v_lshl_add_u32 {w1}, v0, 4, {t0}""")
        park("wq", w0); park("g1", w1)

        def deferred(f0, f1, f2, f3, f4):
            def pk(name, reg):
                parked[name] = A.alloc(1)
                return f"v_accvgpr_write_b32 {parked[name]}, {reg}"

            def t3(name, rows):
                return f"""s_lshl_b32 {t0}, {s_idx}, 2
                s_add_u32 {t0}, {t0}, {s_w}
                s_mul_i32 {t0}, {t0}, {rows * 1024}
                s_add_u32 {t0}, {t0}, 384
                v_lshl_add_u32 {f0}, {v_l}, 10, {t0}
                v_sub_u32 {f1}, {rows - 1}, {v_l}
                v_and_b32 {f1}, 0x80000000, {f1}
                v_or_b32 {f0}, {f0}, {f1}
                {pk(name, f0)}"""
            T = f"""s_and_b32 {t0}, s2, {NCOPY - 1}
            s_mul_i32 {t0}, {t0}, {GCOPY}
            s_lshl_b32 {t2}, {s_w}, 11
            s_lshl_b32 {t1}, {s_hg}, 8
            s_add_u32 {t1}, {t1}, {t0}
            s_add_u32 {t1}, {t1}, {t2}
            s_add_u32 {t1}, {t1}, {WS_G + 4096}
            v_and_b32 {f4}, 15, {v_l}
            v_lshl_add_u32 {f0}, {f4}, 4, {t1}
            {pk("g2", f0)}
            s_lshl_b32 {t0}, {s_g}, 6
            v_lshl_add_u32 {f0}, {f4}, 2, {t0}
            {pk("gx", f0)}
            {t3("t3o", 4)}
            {t3("t3d", 14)}
            s_sub_u32 {t1}, {s_TB}, {s_tb}
            s_lshl_b32 {t1}, {t1}, 5
            s_lshl_b32 {t2}, {s_w}, 4
            s_add_u32 {t1}, {t1}, {t2}
            v_lshrrev_b32 {f0}, 3, {v_l}
            v_add_u32 {f1}, {t1}, {f0}
            v_lshlrev_b32 {f1}, 10, {f1}
            v_and_b32 {f2}, 7, {v_l}
            v_lshlrev_b32 {f2}, 4, {f2}
            s_lshl_b32 {t1}, {s_hg}, 7
            v_add3_u32 {f1}, {f1}, {f2}, {t1}
            v_add_u32 {f0}, {t2}, {f0}
            v_mul_u32_u24 {f0}, 144, {f0}
            v_add_u32 {f0}, {f0}, {f2}
            {pk("xl", f1)}
            {pk("xw", f0)}
            s_lshl_b32 {t0}, {s_TB}, 5
            s_lshl_b32 {t1}, {s_hg}, 2
            s_add_u32 {t0}, {t0}, {t1}
            s_lshl_b32 {t1}, {s_kh}, 1
            s_add_u32 {t0}, {t0}, {t1}
            s_lshl_b32 {t0}, {t0}, 10
            s_add_u32 {s_tile}, {t0}, {WS_O}
            v_xor_b32 {f3}, {s_tb}, {v_hh}
            v_lshlrev_b32 {f0}, 9, {f3}
            v_bfe_u32 {f1}, {v_l}, 4, 1
            v_lshl_add_u32 {f0}, {f1}, 10, {f0}
            v_lshlrev_b32 {f1}, 4, {f4}
            v_add3_u32 {v_o}, {f0}, {f1}, {s_tile}
            s_lshl_b32 {t0}, {s_g}, 11
            s_add_u32 {t0}, {t0}, {WS_FLAGS}
            s_lshl_b32 {t1}, {s_w}, 9
            s_add_u32 {t0}, {t0}, {t1}
            v_lshl_add_u32 {f0}, {v_l}, 3, {t0}
            {pk("fpre", f0)}
            s_lshl_b32 {t0}, {s_TB}, 5
            v_add_u32 {f0}, {t0}, {v_t}
            v_lshlrev_b32 {f0}, 10, {f0}
            s_lshl_b32 {t0}, {s_hg}, 7
            s_lshl_b32 {t1}, {s_kh}, 6
            s_add_u32 {t0}, {t0}, {t1}
            v_lshlrev_b32 {f1}, 4, {v_hh}
            v_add3_u32 {f0}, {f0}, {f1}, {t0}
            {pk("xres", f0)}
            s_lshl_b32 {t0}, {s_g}, 2
            s_add_u32 {t0}, {t0}, {s_w}
            s_mul_i32 {t0}, {t0}, 112
            s_lshl_b32 {t1}, {s_m}, 3
            s_add_u32 {t0}, {t0}, {t1}
            s_lshl_b32 {t0}, {t0}, 10
            s_add_u32 {s_hh}, {t0}, {WS_HH}
            s_cmp_ge_u32 {s_m}, 14|s_cselect_b32 {s_hh}, 0x40000000, {s_hh}
            s_lshl_b32 {t0}, {s_tb}, 5
            s_add_u32 {t0}, {t0}, 2
            v_add_u32 {f2}, {t0}, {v_t}
            v_mul_u32_u24 {f0}, 144, {f2}
            v_mul_u32_u24 {f2}, 272, {f2}
            s_lshl_b32 {t1}, {s_kh}, 7
            s_lshl_b32 {t2}, {s_kh}, 6
            v_lshl_add_u32 {f0}, {f3}, 5, {f0}
            v_lshl_add_u32 {f2}, {f3}, 6, {f2}
            v_add_u32 {v_kr}, {t2}, {f0}
            v_add_u32 {v_vr}, {t1}, {f2}
            s_lshl_b32 {t0}, {s_tb}, 5
            s_add_u32 {t2}, {t2}, {t0}
            s_lshl_b32 {t1}, {t2}, 1
            v_mul_u32_u24 {f0}, 144, {f4}
            v_mul_u32_u24 {f2}, 272, {f4}
            v_and_b32 {f1}, 48, {v_l}
            v_add3_u32 {v_vh}, {f2}, {f1}, {t1}
            v_lshrrev_b32 {f1}, 1, {f1}
            v_add3_u32 {v_kh}, {f0}, {f1}, {t2}
            s_mul_i32 {t0}, {s_tb}, {32 * 144}
            s_add_u32 {t0}, {t0}, {16 * 144}
            v_add_u32 {v_kw[0]}, {t0}, {v_kh}
            s_mul_i32 {t0}, {s_tb}, {32 * 144 - 64}
            s_add_u32 {t0}, {t0}, {16 * 144 + 32}
            v_add_u32 {v_kw[1]}, {t0}, {v_kh}
            s_mul_i32 {t0}, {s_tb}, {32 * 272}
            s_add_u32 {t0}, {t0}, {16 * 272}
            v_add_u32 {v_vw[0]}, {t0}, {v_vh}
            s_mul_i32 {t0}, {s_tb}, {32 * 272 - 128}
            s_add_u32 {t0}, {t0}, {16 * 272 + 64}
            v_add_u32 {v_vw[1]}, {t0}, {v_vh}"""
            return [t.strip().replace("|", "\n") for t in T.split("\n") if t.strip()]
        V.release(v_r8, v_b64, v_c)
        run(xld2)
        late_ops2 = [lambda: run(late_ops)]
        self.stamp("iss")
        st = V.alloc(16)
        rm = V.alloc(4)

        def unpack_acc(i):
            L = []
            o = 8 * (i & 1)
            for ch in range(4):
                r = XN[i][ch]
                for j in range(3):
                    L.append(f"v_lshlrev_b32 {r[2 * j]}, 16, {r[4 + j]}")
                    L.append(f"v_and_b32 {r[2 * j + 1]}, 0xffff0000, {r[4 + j]}")
                L.append(f"v_lshlrev_b32 {r[6]}, 16, {r[7]}")
                L.append(f"v_and_b32 {r[7]}, 0xffff0000, {r[7]}")
                for j in range(4):
                    sm, sq = st.sub(o + 2 * (j & 1), 2), st.sub(o + 4 + 2 * (j & 1), 2)
                    p = r.sub(2 * j, 2)
                    if ch == 0 and j < 2:
                        L.append(f"v_pk_add_f32 {sm}, {p}, {r.sub(2 * j + 4, 2)}")
                        L.append(f"v_pk_mul_f32 {sq}, {p}, {p}")
                    else:
                        if ch:
                            L.append(f"v_pk_add_f32 {sm}, {sm}, {p}")
                        L.append(f"v_pk_fma_f32 {sq}, {p}, {p}, {sq}")
            return L

        def reduce_norm(i):
            o = 8 * (i & 1)
            sm, sq = st[o], st[o + 4]
            L = [f"v_pk_add_f32 {st.sub(o, 2)}, {st.sub(o, 2)}, {st.sub(o + 2, 2)}",
                 f"v_pk_add_f32 {st.sub(o + 4, 2)}, {st.sub(o + 4, 2)}, {st.sub(o + 6, 2)}",
                 f"v_add_f32 {sm}, {sm}, {st[o + 1]}", f"v_add_f32 {sq}, {sq}, {st[o + 5]}"]
            for ror in (8, 4, 2, 1):
                L.append(f"v_add_f32_dpp {sm}, {sm}, {sm} row_ror:{ror} row_mask:0xf bank_mask:0xf")
                L.append(f"v_add_f32_dpp {sq}, {sq}, {sq} row_ror:{ror} row_mask:0xf bank_mask:0xf")
            pr = rm.sub(2 * (i & 1), 2)
            L += self.finish_stats(sm, sq, pr[0], pr[1], 512)
            for ch in range(4):
                for j in range(4):
                    p = XN[i][ch].sub(2 * j, 2)
                    L.append(f"v_pk_fma_f32 {p}, {p}, {pr}, {pr} op_sel:[0,0,1] op_sel_hi:[1,0,1]")
            return L

        def ln_stage(i):
            a, b = (unpack_acc(i) if i < 5 else []), (reduce_norm(i - 1) if i else [])
            m = []
            while a or b:
                if a: m.append(a.pop(0))
                if a: m.append(a.pop(0))
                if b: m.append(b.pop(0))
            return m
        sv = xn_all.sub(160, 8)
        P = []
        P += [f"v_lshlrev_b32 {cv[i]}, 16, {cv[i]}" for i in range(4)]
        P += [f"v_mul_f32 {sv[2 * i]}, 0xbfb8aa3b, {cv[i]}" for i in range(4)]
        P += [f"v_exp_f32 {sv[2 * i]}, {sv[2 * i]}" for i in range(4)]
        P += [f"v_add_f32 {sv[2 * i]}, 1.0, {sv[2 * i]}" for i in range(4)]
        P += [f"v_rcp_f32 {sv[2 * i]}, {sv[2 * i]}" for i in range(4)]
        P += [f"v_mul_f32 {sv[2 * i]}, {cv[i]}, {sv[2 * i]}" for i in range(4)]
        P += [self.bf16r(sv[2 * i], sv[2 * i])[0] for i in range(4)] + [self.bf16r(sv[2 * i], sv[2 * i])[1] for i in range(4)]
        P.append(lambda: self.stamp("silu"))
        pa = xn_all.sub(168, 8)
        wf = xn_all.sub(176, 8)
        for i in range(4):
            if i == 1:
                P.append(lambda: self.stamp("w0"))
            for j in range(4):
                P.append(f"v_lshlrev_b32 {wf[2 * j]}, 16, {wmv[4 * i + j]}")
                P.append(f"v_and_b32 {wf[2 * j + 1]}, 0xffff0000, {wmv[4 * i + j]}")
            for j in range(4):
                if i == 0:
                    P.append(f"v_pk_mul_f32 {pa.sub(2 * j, 2)}, {wf.sub(2 * j, 2)}, {sv.sub(0, 2)} op_sel_hi:[1,0]")
                else:
                    P.append(f"v_pk_fma_f32 {pa.sub(2 * j, 2)}, {wf.sub(2 * j, 2)}, {sv.sub(2 * i, 2)}, {pa.sub(2 * j, 2)} op_sel_hi:[1,0,1]")
        P.append(lambda: self.stamp("w3"))
        P += [f"v_and_b32 {u0}, 7, {v_l}", f"v_lshlrev_b32 {u0}, 5, {u0}"]
        P += [f"v_permlane32_swap_b32 {pa[j]}, {pa[j + 4]}" for j in range(4)]
        P += [f"v_add_f32 {pa[j]}, {pa[j]}, {pa[j + 4]}" for j in range(4)]
        P += [f"v_lshrrev_b32 {u1}, 4, {v_l}"]
        P += [f"v_permlane16_swap_b32 {pa[j]}, {pa[j + 2]}" for j in range(2)]
        P += [f"v_add_f32 {pa[j]}, {pa[j]}, {pa[j + 2]}" for j in range(2)]
        P += [f"v_lshl_add_u32 {u0}, {u1}, 3, {u0}", f"s_lshl_b32 {t0}, {s_w}, 8"]
        P += [f"v_add_f32_dpp {pa[j]}, {pa[j]}, {pa[j]} row_ror:8 row_mask:0xf bank_mask:0xf" for j in range(2)]
        P += [f"v_add_u32 {u0}, {t0}, {u0}", f"ds_write_b64 {u0}, {pa.sub(0, 2)} offset:{L_PART}"]
        s_tb4 = [sa() for _ in range(4)]
        pre_txt = []
        rec = e.out
        n0 = len(e.out)
        keep = (e.vm_issued, e.vm_done, list(e.hist), e.n_ins)
        for _ in range(c.n_pre):
            m = len(e.out)
            assert self.dma_step()
            pre_txt.append("\n".join(o.text for o in e.out[m:]))
        del e.out[n0:]
        e.vm_issued, e.vm_done, e.hist, e.n_ins = keep
        for u in UQ:
            if u.tok:
                u.tok = 0

        def p0(bg, rate):
            bg = self.interleave(P, bg, rate)
            pub()
            return bg

        def pub():
            e.wait_all_lg()
            e(f"""s_mul_i32 {s_tag}, {s_tag}, 0x9E3779B1
            s_add_u32 {s_tag}, {s_tag}, 0x7F4A7C18
            s_and_b32 {s_tag}, {s_tag}, 0xFFFFFFF8
            v_mov_b32 {self.v_tag}, {s_tag}
            s_lshr_b32 {s_tb4[0]}, {s_tag}, 3
            s_lshr_b32 {s_tb4[1]}, {s_tag}, 10
            s_lshr_b32 {s_tb4[2]}, {s_tag}, 17
            s_lshr_b32 {s_tb4[3]}, {s_tag}, 24""")
            self.stamp("tag")
            e.wait(vm=tok_init)
            self.barrier()
            Lsk = e.newlabel("Lnot0")
            e(f"s_cmp_lg_u32 {s_w}, 0")
            e(f"s_cbranch_scc1 {Lsk}")
            e.begin_cond(allow_lg=True)
            e.optional += 1
            e(f"""v_and_b32 {u0}, 15, {v_l}
            v_lshlrev_b32 {u1}, 4, {u0}""")
            pw = wmv
            for k in range(4):
                e(f"ds_read_b128 {pw.sub(4 * k, 4)}, {u1} offset:{L_PART + 256 * k}")
            e(f"""v_lshrrev_b32 {u2}, 4, {v_l}
            v_mul_u32_u24 {u2}, {GCOPY}, {u2}
            s_lshl_b32 {t0}, {s_col0}, 8
            s_and_b32 {t1}, {s_idx}, 3
            s_mul_i32 {t1}, {t1}, {GQ}
            s_add_u32 {t0}, {t0}, {t1}
            s_add_u32 {t0}, {t0}, {WS_G}
            v_add3_u32 {u2}, {u2}, {u1}, {t0}
            v_mov_b32 {u0}, 0xff""")
            for h in range(2):
                e(f"v_pk_add_f32 {pw.sub(2 * h, 2)}, {pw.sub(2 * h, 2)}, {pw.sub(4 + 2 * h, 2)}")
                e(f"v_pk_add_f32 {pw.sub(8 + 2 * h, 2)}, {pw.sub(8 + 2 * h, 2)}, {pw.sub(12 + 2 * h, 2)}")
            for h in range(2):
                e(f"v_pk_add_f32 {pw.sub(2 * h, 2)}, {pw.sub(2 * h, 2)}, {pw.sub(8 + 2 * h, 2)}")
            for k in range(4):
                e(f"v_bfi_b32 {pw[k]}, {u0}, {s_tb4[k]}, {pw[k]}")
            e(f"s_cmp_ge_u32 {s_idx}, 24")
            Lnp = e.newlabel("Lnopub")
            e(f"s_cbranch_scc1 {Lnp}")
            e(f"buffer_store_dwordx4 {pw.sub(0, 4)}, {u2}, {WS}, 0 offen sc1")
            e.label(Lnp)
            e(f"""s_getreg_b32 {t0}, hwreg(HW_REG_XCC_ID)
            s_and_b32 {t0}, {t0}, 7
            s_or_b32 {t0}, {t0}, {s_tag}
            v_mov_b32 {u0}, {t0}
            s_lshl_b32 {t1}, {s_g}, 4
            s_add_u32 {t1}, {t1}, {s_m}
            s_lshl_b32 {t1}, {t1}, 2
            v_mov_b32 {u1}, {t1}
            s_mov_b64 exec, 1
            buffer_store_dword {u0}, {u1}, {WS}, 0 offen offset:{WS_XID} sc1
            s_mov_b64 exec, -1""")
            e.optional -= 1
            e.end_cond(Lsk)
            e.wait_all_lg()

        def t3q():
            if c.t3 & 1:
                e(unpark("t3q", u0))
                e(f"buffer_load_dword {a_dummy[0]}, {u0}, {WQ}, 0 offen", track=False)

        def ln(i, bg, rate):
            L = ln_stage(i)
            e(L[0])
            bg = self.interleave(L[1:], bg, rate)
            self.stamp(f"x{i}")
            return bg
        bg = list(xld)
        for i in range(c.nq_k):
            bg = ln(i, bg, c.x_rate0)
        bg = p0(bg, c.x_rate)
        self.stamp("pub")
        run(bg)
        bg = list(late_ops2) + [t3q] + list(pre_txt)
        for i in range(c.nq_k, 6):
            bg = ln(i, bg, c.pre_rate)
        run(bg)
        V.release(cv, wmv, v_x, v_wm)
        V.release(st, rm)
        v_cst, v_hw, v_hm, v_hhalo = V.alloc(), V.alloc(), V.alloc(), V.alloc()
        v_wq, v_w1 = V.alloc(3, align=1), V.alloc(3, align=1)
        run([unpark("cst", v_cst), unpark("hw", v_hw), unpark("hm", v_hm), unpark("hhalo", v_hhalo), unpark("wq", v_wq[0])])
        e(f"v_xor_b32 {v_w1[0]}, 32, {v_wq[0]}")
        for k in (1, 2):
            e(f"v_add_u32 {v_wq[k]}, {k * WIN}, {v_wq[0]}")
            e(f"v_add_u32 {v_w1[k]}, {k * WIN}, {v_w1[0]}")
        self.stamp("ln1")
        gq = V.alloc(16)
        s_q = [Reg('s', 3, 1), Reg('s', 0, 1), Reg('s', 1, 1)]
        for k in range(3):
            e(f"s_mov_b32 {s_q[k]}, {(k + 1) * GQ}")

        def g_loads(r, ad):
            return [f"buffer_load_dwordx4 {r.sub(4 * k, 4)}, {ad}, {WS}, {s_q[k - 1] if k else 0} offen sc1" for k in range(4)]

        def g_check(r, a, b):
            L = [f"v_xor_b32 {a}, {s_tb4[0]}, {r[0]}", f"v_xor_b32 {b}, {s_tb4[1]}, {r[1]}"]
            for k in range(2, 16):
                d = (a, b)[k & 1]
                L.append(f"v_bitop3_b32 {d}, {r[k]}, {s_tb4[k & 3]}, {d} bitop3:0xbe")
            L += [f"v_or_b32 {a}, {a}, {b}", f"v_and_b32 {a}, 0xff, {a}"]
            return L

        def g_sum(r, packed):
            L = [f"v_and_b32 {r[k]}, 0xffffff00, {r[k]}" for k in range(16)]
            for x, y in ((0, 4), (8, 12), (0, 8)):
                if packed:
                    L += [f"v_pk_add_f32 {r.sub(x + 2 * h, 2)}, {r.sub(x + 2 * h, 2)}, {r.sub(y + 2 * h, 2)}" for h in range(2)]
                else:
                    L += [f"v_add_f32 {r[x + h]}, {r[x + h]}, {r[y + h]}" for h in range(4)]
            L += [f"v_cvt_pk_bf16_f32 {r[0]}, {r[0]}, {r[1]}", f"v_cvt_pk_bf16_f32 {r[2]}, {r[2]}, {r[3]}"]
            return L
        run([unpark("g1", u1), f"v_lshlrev_b32 {u0}, 4, v0"])
        TO = L_TBL
        if c.h_full:
            TO = L_TBL - WIN
            v_hm2, v_hh2 = V.alloc(), V.alloc()
            e(f"""v_add_u32 {u0}, {WIN}, {u0}
            v_add_u32 {v_cst}, {WIN}, {v_cst}
            v_add_u32 {v_hm2}, {2 * HB}, {v_hm}
            v_add_u32 {v_hh2}, {2 * HB}, {v_hhalo}""")
        self.poll(g_loads(gq, u1), [], pre=g_check(gq, u2, u3) + [f"v_cmp_ne_u32 vcc, 0, {u2}"])
        self.stamp("mod")
        self.exp_delay("mod")
        self.bg_on(c.post_every, limit=[UQ[7]], stage=False)
        tv = V.alloc(4)

        def unp(d, a, b):
            return f"""v_lshlrev_b32 {d[0]}, 16, {a}
            v_and_b32 {d[1]}, 0xffff0000, {a}
            v_lshlrev_b32 {d[2]}, 16, {b}
            v_and_b32 {d[3]}, 0xffff0000, {b}"""
        run(g_sum(gq, True))
        e(unp(tv, gq[0], gq[2]))
        Lno = e.newlabel("Lnoa")
        e(f"s_cmp_lt_u32 {s_w}, 2")
        e(f"s_cbranch_scc1 {Lno}")
        e.begin_cond()
        e(f"""v_pk_add_f32 {tv.sub(0, 2)}, {tv.sub(0, 2)}, 1.0 op_sel_hi:[1,0]
        v_pk_add_f32 {tv.sub(2, 2)}, {tv.sub(2, 2)}, 1.0 op_sel_hi:[1,0]
        v_cvt_pk_bf16_f32 {gq[0]}, {tv[0]}, {tv[1]}
        v_cvt_pk_bf16_f32 {gq[2]}, {tv[2]}, {tv[3]}""")
        e(unp(tv, gq[0], gq[2]))
        e.end_cond(Lno)
        tok_tbl = e(f"ds_write_b128 {u0}, {tv} offset:{TO}")
        self.barrier(lg=tok_tbl)
        cst = V.alloc(16)
        cst1 = xn_all.sub(160, 16)

        def cst_reads(ch, r):
            return [f"ds_read_b128 {r.sub(0, 4)}, {v_cst} offset:{TO + 512 * ch}",
                    f"ds_read_b128 {r.sub(8, 4)}, {v_cst} offset:{TO + 2048 + 512 * ch}",
                    f"ds_read_b128 {r.sub(4, 4)}, {v_cst} offset:{TO + 512 * ch + 16}",
                    f"ds_read_b128 {r.sub(12, 4)}, {v_cst} offset:{TO + 2048 + 512 * ch + 16}"]

        def apply_valu(ch, i, r, packed):
            L = []
            for j in range(4):
                p = XN[i][ch].sub(2 * j, 2)
                if packed:
                    L.append(f"v_pk_fma_f32 {p}, {p}, {r.sub(8 + 2 * j, 2)}, {r.sub(2 * j, 2)}")
                else:
                    for h in range(2):
                        L.append(f"v_fma_f32 {p[h]}, {p[h]}, {r[8 + 2 * j + h]}, {r[2 * j + h]}")
            for j in range(4):
                L.append(f"v_cvt_pk_bf16_f32 {XN[i][ch][j]}, {XN[i][ch][2 * j]}, {XN[i][ch][2 * j + 1]}")
            return L

        wtok = {}

        def apply_write(ch, i):
            def f():
                if LH[ch] > 60000:
                    if i == 0:
                        e(f"v_add_u32 {v_hw}, {2 * HB}, {v_hw}")
                    wtok[ch] = e(f"ds_write_b128 {v_hw}, {XN[i][ch].sub(0, 4)} offset:{LH[ch] - 2 * HB + i * 4 * 272}")
                    return
                wtok[ch] = e(f"ds_write_b128 {v_hw}, {XN[i][ch].sub(0, 4)} offset:{LH[ch] + i * 4 * 272}")
            f.solo = True
            return f

        npre_ch = c.pre_chunks
        a_xr = A.alloc(8)

        def bgl(name, *loads):
            L = []
            for k, (t, trk) in enumerate(loads):
                L.append(lambda t=t, trk=trk, k=k: ((e(unpark(name, u0)) if name and k == 0 else None), e(t, track=trk)))
            return L
        tch = lambda srd: (f"buffer_load_dword {a_dummy[0]}, {u0}, {srd}, 0 offen", False)
        qhi = []

        def make_bg():
            pf = (bgl("m4", tch(WO)) + bgl("m14", tch(WG), tch(WU), tch(WD))) if c.mall_pf == 2 else []
            pf.append(lambda: e(f"s_cmp_ge_u32 {s_m}, 14\ns_cselect_b32 s18, 0, s18\ns_cselect_b32 s22, 0, s22"))
            if c.t3 & 2:
                pf += bgl("t3o", tch(WO))
            misc = bgl("xl", (f"buffer_load_dwordx4 {a_xr.sub(0, 4)}, {u0}, {X}, 0 offen", True),
                       (f"s_mov_b32 {t3}, 8192\nbuffer_load_dwordx4 {a_xr.sub(4, 4)}, {u0}, {X}, {t3} offen", True))
            if c.preread:
                misc += bgl(None, *[(f"buffer_load_dwordx4 {a_dummy}, {v_l16}, {WS}, {s_tile} offen offset:{1024 * k} sc1", False) for k in range(2)])
                misc += bgl("fpre", (f"buffer_load_dword {a_dummy[0]}, {u0}, {WS}, 0 offen sc1", False))
            if c.hh_fast == 2:
                misc += bgl("l128", (f"buffer_load_dword {a_dummy[0]}, {u0}, {WS}, {s_hh} offen sc1", False))
            if c.hh_fast == 1:
                misc += [lambda: (e(unpark("l128", u0)), e(f"v_or_b32 {u0}, 4096, {u0}"),
                                  e(f"buffer_load_dword {a_dummy[0]}, {u0}, {WS}, {s_hh} offen sc1", track=False))]
            def hh_init(k):
                def f():
                    e(f"s_add_u32 {t3}, {s_hh}, {(k >> 2) * 4096}")
                    hinit["tok"] = e(f"buffer_store_dwordx4 {a_ones}, {v_l16}, {WS}, {t3} offen offset:{1024 * (k & 3)} sc1")
                return f
            marks = [hh_init(k) for k in range(8) if c.sent & (1 << (k >> 2))]
            qhi.extend((pf + misc + marks) if c.pf_first else (misc + pf + marks))

        run(cst_reads(0, cst) + (cst_reads(1, cst1) if npre_ch > 1 else []))
        V.release(gq, tv)
        v_kh, v_vh, v_kr, v_vr, v_o = [V.alloc() for _ in range(5)]
        v_kw, v_vw = V.alloc(2, align=1), V.alloc(2, align=1)
        dfr = deferred(*[xn_all[16 + k] for k in range(5)])
        make_bg()
        assert c.pf_first and c.bg_n <= 5 and c.q_hi0 >= 12 and c.st_g2 >= 6 and not c.sent and not c.hh_fast
        nt = 0
        for ch in range(npre_ch):
            for i in range(5):
                if c.bg_early and nt % c.bg_early == 0 and qhi and nt // c.bg_early < c.bg_n:
                    qhi.pop(0)()
                nt += 1
                run(apply_valu(ch, i, (cst, cst1)[ch & 1], True))
                apply_write(ch, i)()
            if ch + 2 < npre_ch:
                run(cst_reads(ch + 2, (cst, cst1)[ch & 1]))
            elif npre_ch < 4 and ch == (npre_ch - 1) // 2 * 2:
                run(cst_reads(npre_ch, cst))
        if npre_ch < 4:
            for i in range(c.pre_tiles):
                run(apply_valu(npre_ch, i, cst, True))
        accQ, accS1, accS2, accH = [xn_all.sub(120 + 16 * k, 16) for k in range(4)]
        fr = [[A.alloc(4) for _ in range(9)] for _ in range(2)]
        steps = []
        for s in range(32):
            u, sl = s // 2, s % 2
            ch = s // 8
            f = fr[u & 1]

            def reads(u=u, sl=sl, ch=ch, f=f):
                L = []
                hb = LH[ch] - (0 if LH[ch] < 44000 else 2 * HB) + 64 * (u & 3)
                hm, hl_ = (v_hm, v_hhalo) if LH[ch] < 44000 else (v_hm2, v_hh2)
                for k, mat in enumerate((1, 2, 0)):
                    if sl == 0:
                        L.append(f"ds_read_b128 {f[k]}, {hm if k < 2 else hl_} offset:{hb + (16 * 272 if k == 1 else 0)}")
                    for rd in range(2):
                        wi, o = divmod(UQ[u].addr + mat * 1024 + rd * 512, WIN)
                        L.append(f"ds_read_b64_tr_b16 {f[3 + 3 * sl + k].sub(2 * rd, 2)}, {(v_wq, v_w1)[sl][wi]} offset:{o}")
                return L
            mf = []
            for k, acc in enumerate((accS1, accS2, accQ)):
                for a in range(3 if (sl == 0 and k < 2) else 2):
                    ac = acc.sub(8 * sl + 4 * a, 4) if a < 2 else accH.sub(4 * k, 4)
                    mf.append(f"v_mfma_f32_16x16x32_bf16 {ac}, {f[3 + 3 * sl + k]}, {f[a]}, {'0' if u == 0 else ac}")
            d = dict(reads=reads, mfmas=mf, units=[UQ[u]], slots=c.q_slots, fslots=c.q_fill, rscale=4 / 7)
            if s % c.q_span == 0:
                d["bar"] = True
                d["span"] = c.q_span
                if s % 8 == 0:
                    d["lg"] = (lambda ch=ch: wtok[max(ch, npre_ch - 1)])
            steps.append(d)
        if c.h_full:
            def region(a, n):
                u = Unit("reg", n, [])
                u.addr = a
                return u
            steps[0]["release"] = [region(L_TBL, 4096)] if npre_ch == 4 else []
            steps[12]["release"] = [region(LH[0], HB)]
            steps[20]["release"] = [region(LH[1], HB - 80 * 144)]
            if npre_ch < 4:
                steps[28]["release"] = [region(L_TBL, 4096)]
        mk = Mark()
        fill = list(dfr) + [mk]
        steps[c.q_hi0].setdefault("pre", []).append(lambda: self.drain_to(fill, mk))
        for ch in range(npre_ch, 4):
            gate, mark = Gate(), Mark()
            first = c.pre_tiles if ch == npre_ch else 0
            held = [apply_write(ch, i) for i in range(first)]
            for i in range(first, 5):
                fill += apply_valu(ch, i, cst, False)
                held.append(apply_write(ch, i))
                if i >= 1:
                    if gate not in fill:
                        fill.append(gate)
                    if i == 4 and ch + 1 < 4:
                        fill += cst_reads(ch + 1, cst)
                    fill += held
                    held = []
            fill += [mark]
            if ch == 1 or c.h_full:
                gate.open()
            else:
                steps[8 * (ch - 1) + 4]["postbar"] = gate.open
            steps[8 * ch]["prebar"] = (lambda mark=mark: self.drain_to(fill, mark))
        g2, gx, tw, tv = xn_all.sub(0, 16), V.alloc(2), V.alloc(4), V.alloc(4)
        assert npre_ch == 4
        ga2, gax = V.alloc(), V.alloc()
        g2ld = g_loads(g2, ga2) + [f"buffer_load_dword {gx[0]}, {gax}, {WS}, 0 offen offset:{WS_XID} sc1"]
        g2ck = g_check(g2, tw[0], tw[1]) + [f"v_and_b32 {gx[1]}, -8, {gx[0]}", f"v_xor_b32 {gx[1]}, {gx[1]}, {self.v_tag}",
                                            f"v_or_b32 {tw[0]}, {tw[0]}, {gx[1]}", f"v_cmp_ne_u32 vcc, 0, {tw[0]}"]

        def g2check():
            Ls, Lb = e.newlabel("Lretry"), e.newlabel("Lback")
            e(g2ck[-1])
            e(f"s_cbranch_vccnz {Ls}")
            e.label(Lb)
            self.ool.append(f"{Ls}:\n    s_mov_b32 {self.s_spin}, 0\n{Ls}_1:\n    s_add_u32 {self.s_spin}, {self.s_spin}, 1\n"
                            f"    s_cmp_gt_u32 {self.s_spin}, {c.spin}\n    s_cbranch_scc1 Lexit\n" + "".join(f"    {t}\n" for t in g2ld) +
                            "    s_waitcnt vmcnt(0)\n" + "".join(f"    {t}\n" for t in g2ck) + f"    s_cbranch_vccnz {Ls}_1\n    s_branch {Lb}\n")
        gG, gC = Gate(), Gate()
        steps[c.st_g2].setdefault("pre", []).append(gG.open)
        steps[c.st_g2 + 8].setdefault("pre", []).append(gC.open)
        fill += [gG, unpark("g2", ga2), unpark("gx", gax)] + g2ld + [gC] + g2ck[:-1] + [g2check] + g_sum(g2, False)
        if c.preread:
            fill += bgl(None, (f"buffer_load_dword {a_dummy[0]}, {v_l16}, {WS}, {s_st} offen sc1", False))
        fill += [t.strip() for t in unp(tw, g2[0], g2[2]).split("\n")]
        fill += [f"s_cmp_eq_u32 {s_w}, 2\ns_cselect_b32 {t0}, 1.0, 0"] + [f"v_add_f32 {tv[k]}, {t0}, {tw[k]}" for k in range(4)]
        fill += [f"v_cvt_pk_bf16_f32 {g2[0]}, {tv[0]}, {tv[1]}", f"v_cvt_pk_bf16_f32 {g2[2]}, {tv[2]}, {tv[3]}"]
        fill += [t.strip() for t in unp(tw, g2[0], g2[2]).split("\n")]
        fill += [f"v_and_b32 {gx[1]}, 15, {v_l}", f"s_lshl_b32 {t0}, {s_w}, 8", f"v_lshl_add_u32 {gx[1]}, {gx[1]}, 4, {t0}"]
        fill += [f"ds_write_b128 {gx[1]}, {tw} offset:{L_TBL2}",
                 f"s_getreg_b32 {t0}, hwreg(HW_REG_XCC_ID)", f"s_and_b32 {t0}, {t0}, 7", f"s_or_b32 {t0}, {t0}, {s_tag}",
                 f"v_cmp_ne_u32 vcc, {t0}, {gx[0]}\ns_nop 1\ns_cmp_eq_u64 vcc, 0\ns_cselect_b32 {self.s_mode}, {0 if c.force_slow else 1}, 0"]
        self.bg_off()
        self.loop_prologue(steps)
        self.stamp("p1s")
        self.lname = "Q"
        self.mfma_loop(steps, fill, lambda i, h: (c.q_hi if i >= c.q_hi0 else 0, c.q_dma if c.q_dma0 <= i < c.q_dma1 else 0, c.q_stage), hi=qhi)
        self.drain_to(fill, None)
        run(qhi)
        self.stamp("p1e")
        S.release(*s_tb4, s_col0, s_w3k)
        V.release(cst, v_cst, v_hw, v_hm, v_hhalo, v_wq, v_w1, gx, tw, tv, ga2, gax)
        if c.h_full:
            V.release(v_hm2, v_hh2)
        for f in fr:
            A.release(*f)
        lg = V.alloc(16)
        kp = xn_all.sub(0, 16)

        for sl in range(2):
            for a in range(2):
                e(f"ds_write_b128 {v_vw[sl]}, {accS2.sub(8 * sl + 4 * a, 4)} offset:{L_V + a * 16 * 272}")
                for h in range(2):
                    e(f"v_cvt_pk_bf16_f32 {kp[4 * sl + 2 * a + h]}, {accS1[8 * sl + 4 * a + 2 * h]}, {accS1[8 * sl + 4 * a + 2 * h + 1]}")
        e(f"ds_write_b128 {v_vh}, {accH.sub(4, 4)} offset:{L_V}")
        for h in range(2):
            e(f"v_cvt_pk_bf16_f32 {kp[8 + h]}, {accH[2 * h]}, {accH[2 * h + 1]}")
        qp = xn_all.sub(16, 8)
        for sl in range(2):
            for a in range(2):
                e(f"ds_write_b64 {v_kw[sl]}, {kp.sub(4 * sl + 2 * a, 2)} offset:{L_K + a * 16 * 144}")
                for h in range(2):
                    e(f"v_cvt_pk_bf16_f32 {qp[4 * sl + 2 * a + h]}, {accQ[8 * sl + 4 * a + 2 * h]}, {accQ[8 * sl + 4 * a + 2 * h + 1]}")
        e(f"ds_write_b64 {v_kh}, {kp.sub(8, 2)} offset:{L_K}")
        for j in range(4):
            e(f"v_permlane32_swap_b32 {qp[j]}, {qp[4 + j]}")
        for b in range(2):
            for h in range(2):
                e(f"v_permlane16_swap_b32 {qp[4 * b + h]}, {qp[4 * b + 2 + h]}")
        e._push(Ins("s_waitcnt lgkmcnt(0)"))
        e.lg_done = e.lg_issued
        self.barrier(ready=[] if c.uo_late else UO, release=UQ + ([region(LH[3], HB)] if c.h_full else []))
        self.stamp("kv")
        self.bg_on(c.att_every, limit=[UG[c.n_dir - 1]], nmax=c.att_n)
        V.release(v_kh, v_vh, v_kw, v_vw)
        kb = [accS1.sub(0, 8), accS1.sub(8, 8), accS2.sub(0, 8), accS2.sub(8, 8), accH.sub(0, 8), accH.sub(8, 8), kp.sub(0, 8), kp.sub(8, 8)]
        vb = [xn_all.sub(24 + 16 * k, 16) for k in range(6)] + [accS1, accS2]

        def kread(wd):
            return [f"ds_read_b128 {kb[wd].sub(4 * h, 4)}, {v_kr} offset:{L_K + (14 - 2 * wd) * 144 + 16 * h}" for h in range(2)]

        def vread(wd):
            return [f"ds_read_b128 {vb[wd].sub(4 * dq, 4)}, {v_vr} offset:{L_V + (14 - 2 * wd) * 272 + 16 * dq}" for dq in range(4)]

        def qk(ws):
            L = []
            for j in range(8):
                for wd in ws:
                    L.append(f"v_dot2_f32_bf16 {lg[2 * wd]}, {qp[j]}, {kb[wd][j]}, {'0' if j == 0 else lg[2 * wd]}")
            return L
        for wd in range(7):
            run(kread(wd))
        self.interleave(qk((0, 1, 2, 3)), kread(7) + vread(0) + vread(1) + vread(2)[:2], 0.4)
        self.interleave(qk((4, 5, 6, 7)), vread(2)[2:] + vread(3) + vread(4) + vread(5)[:2], 0.4)
        Lnm = e.newlabel("Lnomask")
        e(f"s_cmp_lg_u32 {s_TB}, 0")
        e(f"s_cbranch_scc1 {Lnm}")
        e.begin_cond()
        e(f"v_mov_b32 {u0}, 0x{f2u(-4e9):08x}")
        for wd in range(1, 8):
            e(f"v_cmp_gt_u32 vcc, {2 * wd}, {v_t}")
            e(f"v_cndmask_b32 {lg[2 * wd]}, {lg[2 * wd]}, {u0}, vcc")
        e.end_cond(Lnm)
        mx = lg[1]
        SM = [f"s_mov_b32 {t0}, 0x{f2u(0.25 * math.log2(math.e)):08x}",
              f"v_max3_f32 {mx}, {lg[0]}, {lg[2]}, {lg[4]}",
              f"v_max3_f32 {lg[3]}, {lg[6]}, {lg[8]}, {lg[10]}",
              f"v_max3_f32 {mx}, {mx}, {lg[12]}, {lg[14]}",
              f"v_max_f32 {mx}, {mx}, {lg[3]}",
              f"v_mul_f32 {mx}, {t0}, {mx}"]
        SM += [f"v_fma_f32 {lg[2 * wd]}, {lg[2 * wd]}, {t0}, -{mx}" for wd in range(8)]
        SM += [f"v_exp_f32 {lg[2 * wd]}, {lg[2 * wd]}" for wd in range(8)]
        self.interleave(SM, vread(5)[2:] + vread(6) + vread(7), 0.6)
        ov = accQ
        SUM = f"""v_add_f32 {lg[1]}, {lg[0]}, {lg[2]}
        v_add_f32 {lg[3]}, {lg[4]}, {lg[6]}
        v_add_f32 {lg[5]}, {lg[8]}, {lg[10]}
        v_add_f32 {lg[7]}, {lg[12]}, {lg[14]}
        v_add_f32 {lg[1]}, {lg[1]}, {lg[3]}
        v_add_f32 {lg[5]}, {lg[5]}, {lg[7]}
        v_add_f32 {lg[1]}, {lg[1]}, {lg[5]}
        v_rcp_f32 {lg[1]}, {lg[1]}""".split("\n")
        PV = []
        for wd in range(8):
            for j in range(8):
                p = ov.sub(2 * j, 2)
                if wd == 0:
                    PV.append(f"v_pk_mul_f32 {p}, {vb[wd].sub(2 * j, 2)}, {lg.sub(0, 2)} op_sel_hi:[1,0]")
                else:
                    PV.append(f"v_pk_fma_f32 {p}, {vb[wd].sub(2 * j, 2)}, {lg.sub(2 * wd, 2)}, {p} op_sel_hi:[1,0,1]")
        self.interleave(PV, SUM, 0.25)
        ob = lg.sub(8, 8)
        for j in range(8):
            p = ov.sub(2 * j, 2)
            e(f"v_pk_mul_f32 {p}, {p}, {lg.sub(0, 2)} op_sel:[0,1] op_sel_hi:[1,1]")
        self.bg_off()
        for j in range(8):
            e(f"v_cvt_pk_bf16_f32 {ob[j]}, {ov[2 * j]}, {ov[2 * j + 1]}")
        self.stamp("att")
        tok = self.store2([f"buffer_store_dwordx4 {ob.sub(0, 4)}, {v_o}, {WS}, 0 offen" + "{f}",
                           f"buffer_store_dwordx4 {ob.sub(4, 4)}, {v_o}, {WS}, 0 offen offset:256" + "{f}"])
        V.release(xn_all, v_kr, v_vr, v_o)
        ga, gB, gs, gb = [V.alloc(8) for _ in range(4)]
        x1 = V.alloc(16)
        v_pf = V.alloc()
        v_s = [[V.alloc(3, align=1) for _ in range(2)] for _ in range(2)]
        v_act, v_red = V.alloc(), V.alloc()
        e(f"""v_and_b32 {u0}, 48, {v_l}
        s_lshl_b32 {t0}, {s_kh}, 7
        v_add_u32 {u0}, {t0}, {u0}""")
        for vec, r in ((0, ga), (1, gs), (2, gB), (3, gb)):
            for j in range(2):
                e(f"ds_read_b128 {r.sub(4 * j, 4)}, {u0} offset:{L_TBL2 + 256 * vec + 64 * j}")
        e(f"""v_and_b32 {u1}, 7, {v_l}
        v_lshlrev_b32 {u1}, 2, {u1}
        s_lshl_b32 {t0}, {s_kh}, 5
        s_add_u32 {t0}, {t0}, {s_flb}
        v_add_u32 {v_pf}, {t0}, {u1}
        s_lshr_b32 {s_rx[1]}, {s_mo}, 4""")

        def wbases(sh_hi, sh_lo):
            e(f"""v_bfe_u32 {u1}, {v_l}, 4, 1
            v_lshl_add_u32 {u0}, {u1}, {sh_lo}, {v_trn}
            v_lshl_add_u32 {u0}, {v_hh}, {sh_hi}, {u0}
            s_lshl_b32 {t0}, {s_kh}, 11
            s_lshl_b32 {t1}, {s_kh}, 8
            s_add_u32 {t2}, {t0}, {t1}
            v_add_u32 {v_s[0][0][0]}, {t2}, {u0}
            s_sub_u32 {t2}, {t0}, {t1}
            s_add_u32 {t2}, {t2}, 256
            v_add_u32 {v_s[1][0][0]}, {t2}, {u0}""")
            for sl in range(2):
                e(f"v_xor_b32 {v_s[sl][1][0]}, 32, {v_s[sl][0][0]}")
                for par in range(2):
                    for k in (1, 2):
                        e(f"v_add_u32 {v_s[sl][par][k]}, {k * WIN}, {v_s[sl][par][0]}")
        wbases(12, 10)
        e(f"""s_lshl_b32 {t0}, {s_TB}, 5
        s_lshl_b32 {t1}, {s_kh}, 4
        s_add_u32 {t0}, {t0}, {t1}
        s_lshl_b32 {t0}, {t0}, 10
        s_add_u32 {t0}, {t0}, {WS_O}
        v_add_u32 {v_act}, {t0}, {v_l16}
        v_add_u32 {v_red}, {s_w1k}, {v_l16}
        v_lshlrev_b32 {v_red}, 2, {v_red}
        v_mul_u32_u24 {u0}, 48, {v_l}
        v_sub_u32 {v_red}, {v_red}, {u0}""")
        e(f"""v_and_b32 {u1}, 15, {v_l}
        v_mul_u32_u24 {u1}, 144, {u1}
        s_mul_i32 {t0}, {s_tb}, {32 * 144}
        s_lshl_b32 {t1}, {s_kh}, 6
        s_add_u32 {t0}, {t0}, {t1}
        v_lshrrev_b32 {u2}, 4, {v_l}
        v_lshlrev_b32 {u2}, 3, {u2}
        v_add3_u32 {u2}, {u1}, {u2}, {t0}""")
        v_w16 = V.alloc(3, align=1)
        e(f"v_add_u32 {v_w16[0]}, {s_w1k}, {v_l16}")
        for k in (1, 2):
            e(f"v_add_u32 {v_w16[k]}, {k * WIN}, {v_w16[0]}")
        e(unpark("xw", u3))
        e.wait(vm=tok)
        self.flag_store(v_fl, F_O * 512)
        self.stamp("fo")
        V.release(lg)
        self.barrier(ready=UO)
        self.lds.add(L_RED + 16384, (L_V + HB if c.h_full else L_RING) - L_RED - 16384)
        xr = V.alloc(8)
        xs = Unit("xs", 64 * 144, [])
        xs.addr = L_RED + 16384
        assert any(iv[0] <= xs.addr and iv[1] >= xs.addr + xs.size for iv in self.lds.free)
        for iv in self.lds.free:
            if iv[0] <= xs.addr < iv[1]:
                hi_end = iv[1]
                iv[1] = xs.addr
                self.lds.free.append([xs.addr + xs.size, hi_end])
                break
        self.lds.free = sorted(iv for iv in self.lds.free if iv[1] > iv[0])
        e(f"ds_write_b128 {u3}, {a_xr.sub(0, 4)} offset:{xs.addr}")
        e(f"ds_write_b128 {u3}, {a_xr.sub(4, 4)} offset:{xs.addr + 8 * 144}")
        A.release(a_xr)
        done = [u for u in staged if u.next >= len(u.dmas)]
        for f in self.commit(done, v_w16):
            f()
        self.barrier()
        v_c1 = V.alloc()
        issO, chkO = self.opt_check(v_pf, F_O * 512, v_c1)
        if c.opt_o == 1:
            issO()
        for j in range(4):
            e(f"ds_read_b64 {xr.sub(2 * j, 2)}, {u2} offset:{xs.addr + (j >> 1) * 16 * 144 + (j & 1) * 32}")
        if c.opt_o == 2:
            issO()
        self.dma_all(limit=c.n_alpha)
        for j in range(8):
            e(f"v_lshlrev_b32 {x1[2 * j]}, 16, {xr[j]}")
            e(f"v_and_b32 {x1[2 * j + 1]}, 0xffff0000, {xr[j]}")
        V.release(xr)
        A.release(a_ones, *[r for n, r in parked.items() if n not in ("xres", "t3d")])
        fr = [[A.alloc(4) for _ in range(4)] for _ in range(3)]
        acc0, acc1 = V.alloc(16), V.alloc(16)

        def kloop(units, act, rdoff, nk, first=True, base=0):
            steps = []
            for i in range(nk // 2):
                f = fr[(base + i) % 3]

                def reads(i=i, f=f):
                    L = []
                    for sl in range(2):
                        for par in range(2):
                            for rd in range(2):
                                wi, o = divmod(units[i].addr + rd * rdoff, WIN)
                                L.append(f"ds_read_b64_tr_b16 {f[2 * sl + par].sub(2 * rd, 2)}, {v_s[sl][par][wi]} offset:{o}")
                    return L
                mf = []
                for a in range(2):
                    for sl, acc in ((1, acc1), (0, acc0)):
                        for par in range(2):
                            ac = acc.sub(8 * a + 4 * par, 4)
                            mf.append(f"v_mfma_f32_16x16x32_bf16 {ac}, {f[2 * sl + par]}, {act[2 * i + a]}, {'0' if i == 0 else ac}")
                steps.append(dict(reads=reads, mfmas=mf, units=[units[i]], slots=c.slots16, fslots=c.fslots16, rscale=0.5))
            return steps

        s_ao = sa()

        cur_ao = [None]

        def act_loads(regs, vaddr, offs):
            L = []
            for r, o in zip(regs, offs):
                def f(r=r, o=o):
                    if (c.exp_nohh and vaddr is not v_act) or (c.exp_noh2 and len(regs) == 32):
                        return
                    va = vaddr
                    if isinstance(o, tuple) and len(o) == 4:
                        e(f"s_xor_b32 {s_ao}, {o[0]}, {o[1]}")
                        cur_ao[0], o = None, 0
                    elif isinstance(o, tuple) and len(o) == 3:
                        e(f"s_lshr_b32 {s_ao}, {o[0]}, 4\ns_add_u32 {s_ao}, {s_ao}, {o[1]}")
                        cur_ao[0], o = None, 0
                    elif isinstance(o, tuple):
                        b, o = o
                        if b != cur_ao[0]:
                            e(f"s_lshr_b32 {s_ao}, {b}, 4")
                            cur_ao[0] = b
                    else:
                        if len(regs) == 32 and (o >> (11 + c.gbit)) & 1:
                            va = v_act2
                        b = o & ~4095
                        if b != cur_ao[0]:
                            e(f"s_mov_b32 {s_ao}, {b}")
                            cur_ao[0] = b
                    e(f"buffer_load_dwordx4 {r}, {va}, {CC if len(regs) == 32 else WS}, {s_ao} offen offset:{o & 4095}{c.act_fl}")
                L.append(f)
            return L

        actf = [A.alloc(4) for k in range(16)]
        steps = kloop(UO, actf, 512, 16)
        self.loop_prologue(steps)
        if c.opt_o:
            chkO()
        else:
            self.poll([f"buffer_load_dword {u1}, {v_pf}, {WS}, 0 offen offset:{F_O * 512} sc1"], [u1])
        V.release(v_c1)
        self.stamp("po")
        self.lname = "O"
        hl = act_loads(actf[:16], v_act, [(str(s_rx[1]), k * 1024, 0, 0) for k in range(16)])
        run(hl[:c.p2_lead])
        hi = hl[c.p2_lead:]
        for i in range(c.p2_lead // 2, 8):
            def f(n=14 - 2 * i):
                while len(hi) > n + c.n_beta:
                    hi.pop(0)()
            steps[i]["pre"] = [f]
        nb = [0]

        def beta():
            if nb[0] < c.n_beta:
                nb[0] += bool(self.stage_step())
        hi += [beta] * c.n_beta
        self.mfma_loop(steps, [], lambda i, h: (1, 0, 0), hi=hi)
        rest = [u for u in self.stq if u.next == 0]
        while self.stq and self.stq[0].next:
            if self.stq[0].next >= len(self.stq[0].dmas):
                self.stq.pop(0)
            else:
                self.stage_step()
        self.stq = []
        k = 0
        while k < len(self.queue) and (self.queue[k].addr is not None or self.queue[k] in UG[:c.n_dir]):
            k += 1
        self.queue[k:k] = rest
        staged = [u for u in staged if u not in rest]

        def reduce_pair():
            for j in range(4):
                e(f"ds_write_b128 {v_red}, {acc1.sub(4 * j, 4)} offset:{L_RED + 1024 * j}")
            e(f"v_xor_b32 {u0}, 8192, {v_red}")

        def reduce_read():
            for j in range(4):
                e(f"ds_read_b128 {acc1.sub(4 * j, 4)}, {u0} offset:{L_RED + 1024 * j}")
            for j in range(8):
                e(f"v_pk_add_f32 {acc0.sub(2 * j, 2)}, {acc0.sub(2 * j, 2)}, {acc1.sub(2 * j, 2)}")
        reduce_pair()
        self.barrier(release=UO + [xs])
        reduce_read()
        self.stamp("p2m")
        for j in range(8):
            e(f"v_pk_fma_f32 {x1.sub(2 * j, 2)}, {acc0.sub(2 * j, 2)}, {ga.sub(2 * (j & 3), 2)}, {x1.sub(2 * j, 2)}")
        sm, sq = acc1.sub(0, 4), acc1.sub(4, 4)
        for j in range(4):
            for a in range(2):
                p = x1.sub(8 * a + 2 * j, 2)
                if j == 0:
                    e(f"v_pk_add_f32 {sm.sub(2 * a, 2)}, {p}, {x1.sub(8 * a + 2, 2)}")
                    e(f"v_pk_mul_f32 {sq.sub(2 * a, 2)}, {p}, {p}")
                else:
                    if j >= 2:
                        e(f"v_pk_add_f32 {sm.sub(2 * a, 2)}, {sm.sub(2 * a, 2)}, {p}")
                    e(f"v_pk_fma_f32 {sq.sub(2 * a, 2)}, {p}, {p}, {sq.sub(2 * a, 2)}")
        gr = acc1[8]
        e(f"""v_add_f32 {sm[0]}, {sm[0]}, {sm[1]}
        v_add_f32 {sq[0]}, {sq[0]}, {sq[1]}
        v_add_f32 {sm[2]}, {sm[2]}, {sm[3]}
        v_add_f32 {sq[2]}, {sq[2]}, {sq[3]}
        s_lshl_b32 {t0}, {s_TB}, 12
        v_permlane32_swap_b32 {sm[0]}, {sq[0]}
        v_permlane32_swap_b32 {sm[2]}, {sq[2]}
        v_add_f32 {sm[0]}, {sm[0]}, {sq[0]}
        v_add_f32 {sm[2]}, {sm[2]}, {sq[2]}
        s_add_u32 {t0}, {t0}, {WS_STATS}
        v_permlane16_swap_b32 {sm[0]}, {sm[2]}
        v_add_f32 {gr}, {sm[0]}, {sm[2]}
        v_min_u32 {gr}, -2, {gr}""")
        self.store2([f"buffer_store_dword {gr}, {v_l16}, {WS}, {s_st} offen" + "{f}"])
        sg = V.alloc(16)
        def commit2():
            for f in self.commit(staged, v_w16):
                f()
            assert all(u.addr is not None for u in staged), "staged units left"
            V.release(v_w16)
        s_sta = sa()
        e(f"s_mov_b32 {s_sta}, {t0}")
        if c.rot & 8:
            e(f"""s_lshr_b32 {t0}, {s_idx}, 3
            s_lshl_b32 {t0}, {t0}, {c.rsh}
            s_lshl_b32 {t1}, {s_hg}, 1
            s_xor_b32 {t0}, {t0}, {t1}
            s_and_b32 {t1}, {t0}, 2
            s_lshl_b32 {s_rx[1]}, {t1}, 14
            s_and_b32 {t0}, {t0}, {4 if c.rsh else 0}
            s_lshl_b32 {t0}, {t0}, 15
            s_or_b32 {s_rx[0]}, {s_rx[1]}, {t0}""")
        else:
            e(f"s_mov_b32 {s_rx[0]}, 0\ns_mov_b32 {s_rx[1]}, 0")
        e(f"s_lshr_b32 {s_rx[2]}, {s_rx[0]}, 4\ns_lshr_b32 {s_rx[3]}, {s_rx[1]}, 4")
        cur_ao[0] = None
        self.cur_so = None
        assert all(u.next == 0 for u in UD)
        wbases(10, 9)
        v_ta = V.alloc(3, align=1)
        v_p3f, v_p3s, v_hha, v_chk, v_act2 = [V.alloc() for _ in range(5)]
        if c.p3_16:
            v_tb = V.alloc(3, align=1)
            e(f"""v_bfe_u32 {u2}, {v_l}, 4, 1
            v_lshl_add_u32 {v_ta[0]}, {u2}, 9, {v_trn}
            v_lshl_add_u32 {v_ta[0]}, {v_hh}, 10, {v_ta[0]}
            v_xor_b32 {v_tb[0]}, 32, {v_ta[0]}""")
            for k in (1, 2):
                e(f"v_add_u32 {v_ta[k]}, {k * WIN}, {v_ta[0]}")
                e(f"v_add_u32 {v_tb[k]}, {k * WIN}, {v_tb[0]}")
        else:
            e(f"""v_and_b32 {u0}, 3, {v_l}
            v_lshlrev_b32 {u0}, 3, {u0}
            v_bfe_u32 {u1}, {v_l}, 2, 2
            v_bfe_u32 {u2}, {v_l}, 4, 1
            v_lshlrev_b32 {u3}, 6, {u1}
            v_add_u32 {u3}, {u3}, {u0}
            v_mul_u32_u24 {v_ta[0]}, {4096 + 32}, {u2}
            v_lshlrev_b32 {v_ta[1]}, 9, {v_hh}
            v_add3_u32 {v_ta[0]}, {v_ta[0]}, {v_ta[1]}, {u3}""")
            for k in (1, 2):
                e(f"v_add_u32 {v_ta[k]}, {k * WIN}, {v_ta[0]}")
        e(f"""s_lshl_b32 {t0}, {s_g}, 2
        s_add_u32 {t0}, {t0}, {s_w}
        s_lshl_b32 {t1}, {t0}, 15
        s_add_u32 {t1}, {t1}, {WS_H2}
        s_lshr_b32 {t2}, {s_idx}, 4
        s_mul_i32 {t2}, {t2}, {(2048 << c.gbit) if c.rot & 2 else 0}
        v_add_u32 {v_act}, {t1}, {v_l16}
        v_subrev_u32 {v_act2}, {t2}, {v_act}
        v_add_u32 {v_act}, {t2}, {v_act}
        s_lshl_b32 {t0}, {s_g}, 11
        s_lshl_b32 {t1}, {s_w}, 7
        s_add_u32 {t0}, {t0}, {t1}
        s_add_u32 {t0}, {t0}, {WS_FLAGS}
        v_and_b32 {u0}, 15, {v_l}
        v_lshlrev_b32 {u0}, 2, {u0}
        v_add_u32 {v_p3f}, {t0}, {u0}
        s_lshl_b32 {t1}, {s_m}, 2
        s_add_u32 {t0}, {t0}, {t1}
        v_mov_b32 {v_p3s}, {t0}""")
        e(f"""s_mul_i32 {t0}, {s_TB}, 112
        s_mul_i32 {t1}, {s_kh}, 56
        s_add_u32 {t0}, {t0}, {t1}
        s_lshl_b32 {t0}, {t0}, 10
        s_add_u32 {t0}, {t0}, {WS_HH}
        v_add_u32 {v_hha}, {t0}, {v_l16}
        v_and_b32 {u1}, 7, {v_l}
        v_min_u32 {u1}, 6, {u1}
        v_lshlrev_b32 {u1}, 2, {u1}
        s_mul_i32 {t0}, {s_kh}, 28
        s_add_u32 {t0}, {t0}, {s_flb}
        v_add_u32 {v_pf}, {t0}, {u1}""")
        if not c.commit_late:
            commit2()
        tm = self.v_tmp
        pre = [f"v_max3_u32 {tm}, {sg[0]}, {sg[1]}, {sg[2]}", f"v_max3_u32 {u0}, {sg[3]}, {sg[4]}, {sg[5]}",
               f"v_max3_u32 {tm}, {tm}, {sg[6]}, {sg[7]}", f"v_max3_u32 {u0}, {u0}, {sg[8]}, {sg[9]}",
               f"v_max3_u32 {tm}, {tm}, {sg[10]}, {sg[11]}", f"v_max3_u32 {u0}, {u0}, {sg[12]}, {sg[13]}",
               f"v_max3_u32 {tm}, {tm}, {sg[14]}, {sg[15]}", f"v_max_u32 {tm}, {tm}, {u0}", f"v_cmp_eq_u32 vcc, -1, {tm}"]
        self.poll([f"buffer_load_dwordx4 {sg.sub(4 * k, 4)}, {v_l16}, {WS}, {s_sta} offen offset:{1024 * k} sc1" for k in range(4)], [], pre=pre)
        S.release(s_sta)
        self.stamp("pst")
        for k in range(4):
            e(f"v_pk_add_f32 {sg.sub(2 * k, 2)}, {sg.sub(2 * k, 2)}, {sg.sub(8 + 2 * k, 2)}")
        e(f"""v_pk_add_f32 {sg.sub(0, 2)}, {sg.sub(0, 2)}, {sg.sub(4, 2)}
        v_pk_add_f32 {sg.sub(2, 2)}, {sg.sub(2, 2)}, {sg.sub(6, 2)}
        v_pk_add_f32 {sg.sub(0, 2)}, {sg.sub(0, 2)}, {sg.sub(2, 2)}
        v_add_f32 {sg[0]}, {sg[0]}, {sg[1]}
        v_mov_b32 {sg[1]}, {sg[0]}
        v_permlane32_swap_b32 {sg[0]}, {sg[1]}""")
        pr = [sg.sub(2, 2), sg.sub(4, 2)]
        for t in self.finish_stats(sg[0], sg[1], pr[0][0], pr[0][1], 512):
            e(t)
        e(f"""v_mov_b32 {pr[1][0]}, {pr[0][0]}
        v_mov_b32 {pr[1][1]}, {pr[0][1]}
        v_permlane16_swap_b32 {pr[0][0]}, {pr[1][0]}
        v_permlane16_swap_b32 {pr[0][1]}, {pr[1][1]}""")
        for j in range(8):
            e(f"v_pk_fma_f32 {acc0.sub(2 * j, 2)}, {x1.sub(2 * j, 2)}, {pr[j >> 2]}, {pr[j >> 2]} op_sel:[0,0,1] op_sel_hi:[1,0,1]")
        for j in range(8):
            e(f"v_pk_fma_f32 {acc0.sub(2 * j, 2)}, {acc0.sub(2 * j, 2)}, {gB.sub(2 * (j & 3), 2)}, {gs.sub(2 * (j & 3), 2)}")
        for j in range(8):
            e(f"v_cvt_pk_bf16_f32 {acc1[j]}, {acc0[2 * j]}, {acc0[2 * j + 1]}")
        tok = self.store2([f"buffer_store_dwordx4 {acc1.sub(0, 4)}, {v_l16}, {WS}, {s_tile} offen" + "{f}",
                           f"buffer_store_dwordx4 {acc1.sub(4, 4)}, {v_l16}, {WS}, {s_tile} offen offset:1024" + "{f}"])
        V.release(sg, ga, gB, gs)
        def fh():
            e.wait(vm=tok)
            self.flag_store(v_fl, F_H * 512)
            self.stamp("fh")
        if c.fh_early == 1:
            fh()
        if c.commit_late:
            commit2()
        if c.fh_early == 2:
            fh()
        self.dma_all(limit=c.n_gamma)
        if not c.fh_early:
            fh()
        if c.stop == "p2":
            return self.finish()
        actf += [A.alloc(4) for k in range(16)]
        e("s_mov_b32 s40, s36\ns_mov_b32 s41, s37\ns_mov_b32 s42, s38")
        if c.idle_pf:
            Li = e.newlabel("Lbusy")
            e(f"s_cmp_lt_u32 {s_m}, 14")
            e(f"s_cbranch_scc1 {Li}")
            e.begin_cond()
            e(f"""s_and_b32 {t0}, {s_g}, 1
            s_lshl_b32 {t0}, {t0}, 1
            s_add_u32 {t0}, {t0}, {s_m}
            s_sub_u32 {t0}, {t0}, 14""")
            if c.idle_pf & 1:
                e(f"""s_lshl_b32 {t1}, {t0}, 12
                s_add_u32 {t1}, {t1}, {c.idle_off - 128}
                v_lshl_add_u32 {v_dA}, v0, 4, {t1}
                s_mov_b32 s16, s24
                s_mov_b32 s17, s25
                s_mov_b32 s18, s26
                s_add_u32 s20, s24, 16384
                s_addc_u32 s21, s25, 0
                s_sub_u32 s22, s26, 16384""")
            if c.idle_pf & 2:
                e(f"""s_lshl_b32 {t0}, {t0}, 2
                s_add_u32 {t0}, {t0}, {s_w}
                s_and_b32 {t1}, {t0}, 1
                s_lshl_b32 {t1}, {t1}, 15
                s_lshr_b32 {t0}, {t0}, 1
                s_lshr_b32 {t2}, {t0}, 2
                s_mul_i32 {t2}, {t2}, 3
                s_add_u32 {t0}, {t0}, {t2}
                s_lshl_b32 {t0}, {t0}, 17
                s_add_u32 {t0}, {t0}, {t1}
                v_add_u32 {v_act}, {t0}, {v_l16}
                s_mov_b32 s40, s24
                s_mov_b32 s41, s25
                s_mov_b32 s42, s26""")
            e.end_cond(Li)
        accA = [V.alloc(16) for _ in range(4)]
        accB = [V.alloc(16) for _ in range(4)]
        steps = []
        for ph, (UU, accs) in enumerate(((UA, accA), (UB, accB))):
            for s in range(32):
                f = fr[len(steps) % 3]

                def reads(s=s, f=f, UU=UU):
                    ad = UU[s // 2].addr + (s % 2) * 2048
                    wi, o = divmod(ad, WIN)
                    L = []
                    for cb in range(4):
                        for rd in range(2):
                            L.append(f"ds_read_b64_tr_b16 {f[cb].sub(2 * rd, 2)}, {v_ta[wi]} offset:{o + rd * 1024 + (cb >> 1) * 256 + (cb & 1) * 32}")
                    return L
                mf = [f"v_mfma_f32_32x32x16_bf16 {accs[cb]}, {f[cb]}, {actf[s]}, {'0' if s == 0 else accs[cb]}" for cb in range(4)]
                d = dict(reads=reads, mfmas=mf, units=[UU[s // 2]])
                if c.p3_16:
                    def reads16(s=s, f=f, UU=UU):
                        L = []
                        for par in range(2):
                            for mat in range(2):
                                for rd in range(2):
                                    wi, o = divmod(UU[s // 2].addr + (s % 2) * 256 + mat * 4128 + rd * 2048, WIN)
                                    L.append(f"ds_read_b64_tr_b16 {f[2 * par + mat].sub(2 * rd, 2)}, {(v_ta, v_tb)[par][wi]} offset:{o}")
                        return L
                    mf = []
                    for par in range(2):
                        for mat in range(2):
                            for a in range(2):
                                ac = accs[2 * (s % 2) + par].sub(8 * mat + 4 * a, 4)
                                mf.append(f"v_mfma_f32_16x16x32_bf16 {ac}, {f[2 * par + mat]}, {actf[(s & ~1) + a]}, {'0' if s < 2 else ac}")
                    d = dict(reads=reads16, mfmas=mf, units=[UU[s // 2]], slots=c.slots16, fslots=c.fslots16, rscale=0.5)
                if s % 4 == 0:
                    d["bar"], d["span"] = True, 4
                steps.append(d)
        red_unit = Unit("red", 16384, [])
        red_unit.addr = L_RED
        steps[0]["release"] = [red_unit]
        hx = [A.alloc(4) for _ in range(12)]
        actH = hx + [accA[k // 4].sub(4 * (k % 4), 4) for k in range(16)] + actf[:28]
        s4 = kloop(UD, actH, 4096, 56, base=64)
        for i in range(0, 28, 4):
            s4[i]["bar"], s4[i]["span"] = True, 4
        steps += s4
        stok = {}

        def glu(a0, a1, imm, key):
            L = [f"v_mul_f32 {acc[v]}, {acc[v]}, {acc[v + 8]}" for acc in (a0, a1) for v in range(8)]
            for a in range(2):
                L += [f"v_cvt_pk_bf16_f32 {a0[8 + 4 * a + 2 * b + h]}, {(a0, a1)[b][4 * a + 2 * h]}, {(a0, a1)[b][4 * a + 2 * h + 1]}"
                      for b in range(2) for h in range(2)]

                def st(a=a):
                    stok[key] = e(f"buffer_store_dwordx4 {a0.sub(8 + 4 * a, 4)}, {v_l16}, {WS}, {s_hh} offen offset:{imm + 1024 * a} sc1")
                L.append(st)
            return L
        gA, gFA, gB, gFB, gHA, gHB = [Gate() for _ in range(6)]
        fill = (bgl("t3d", tch(WD)) if c.t3 & 4 else []) + [gA]
        for i in range(2):
            fill += glu(accA[2 * i], accA[2 * i + 1], 2048 * i, "A")
        fill += [f"s_add_u32 {s_hh}, {s_hh}, 4096", gB]
        for i in range(2):
            fill += glu(accB[2 * i], accB[2 * i + 1], 2048 * i, "B")
        issA, chkA = self.opt_check(v_pf, F_A * 512, v_chk)
        issB, chkB = self.opt_check(v_pf, F_B * 512, v_chk)

        def hook(i, f):
            steps[i].setdefault("pre", []).append(f)
        hook(33, gA.open)
        if c.sent & 1:
            hook(c.st_ca, lambda: (self.drain_to(fill, gB), fill.insert(0, gB), gHA.open(), self.stamp("ca")))
        else:
            hook(c.st_fa, lambda: (self.drain_to(fill, gB), fill.insert(0, gB), e.wait(vm=stok["A"]), self.flag_store(v_p3s, F_A * 512), self.stamp("fa")))
            hook(c.st_ia, issA)
            hook(c.st_ca, lambda: (chkA(), gHA.open(), self.stamp("ca")))
        if c.burst_b:
            hook(64, lambda: (gB.open(), self.drain_to(fill, None)))
        else:
            hook(65, gB.open)
        if c.burst_a:
            hook(33, lambda: (self.drain_to(fill, gB), fill.insert(0, gB)))
        if c.wb_at:
            def wb():
                Lw = e.newlabel("Lnowb")
                e(f"s_lshl_b32 {t0}, {s_idx}, 2\ns_add_u32 {t0}, {t0}, {s_w}\ns_cmp_lg_u32 {t0}, {c.wb_who}")
                e(f"s_cbranch_scc1 {Lw}")
                e.optional += 1
                e("buffer_wbl2 sc1")
                e.optional -= 1
                e.label(Lw)
            hook(c.wb_at, wb)
        if c.sent & 2:
            hook(c.st_cb, lambda: (self.drain_to(fill, None), gHB.open(), self.stamp("cb")))
        else:
            hook(c.st_fb, lambda: (self.drain_to(fill, None), e.wait(vm=stok["B"]), self.flag_store(v_p3s, F_B * 512), self.stamp("fb")))
            hook(c.st_ib, issB)
            hook(c.st_cb, lambda: (chkB(), gHB.open(), self.stamp("cb")))
        hl = act_loads(actf, v_act, [1024 * k for k in range(32)])
        hi = hl[c.act_lead:] + [gHA] + act_loads(actH[:28], v_hha, [(str(s_rx[2 if fb < 48 else 3]), fb * 1024, 0, 0) for fb in fbA]) + [gHB]
        hb = act_loads(actH[28:], v_hha, [(str(s_rx[2 if fb < 48 else 3]), fb * 1024, 0, 0) for fb in fbB])
        hook(c.st_cb, lambda: run(hb[:c.lead_b]))
        hi += hb[c.lead_b:]

        def need(i, n):
            def f():
                while len(hi) > n:
                    t = hi.pop(0)
                    if isinstance(t, Gate):
                        assert t.is_open, f"gate closed at step {i}"
                    else:
                        t()
            hook(i, f)
        total = len(hi)
        pos = {}
        k = c.act_lead
        seq = list(range(c.act_lead, 32)) + [None] + list(range(64 * 2, 64 * 2 + 28)) + [None] + list(range(64 * 2 + 28 + c.lead_b, 64 * 2 + 56))
        for n, q in enumerate(seq):
            if q is not None:
                st_i = (q & ~1 if c.p3_16 else q) if q < 32 else q // 2
                need(st_i, total - n - 1)
        for i in range(28):
            if c.sent & (1 if i < 14 else 2):
                hook(64 + i, lambda i=i: self.verify([(actH[2 * i + h], 1024 * fbs[2 * i + h]) for h in range(2)], v_hha))
                steps[64 + i]["resv"] = 3 if 6 <= i < 14 else 4
        Lidle, Ljoin = e.newlabel("Lidle"), e.newlabel("Lp4")
        if c.skip_idle:
            self.dma_flush()
            e(f"s_cmp_ge_u32 {s_m}, 14")
            e(f"s_cbranch_scc1 {Lidle}")
            n_p3 = len(e.out)
        if c.opt_h:
            issH, chkH = self.opt_check(v_p3f, F_H * 512, v_chk)
            issH()
            self.loop_prologue(steps)
            chkH()
        else:
            self.loop_prologue(steps)
            self.poll([f"buffer_load_dword {u1}, {v_p3f}, {WS}, 0 offen offset:{F_H * 512} sc1"], [u1])
        self.stamp("ph")
        self.exp_delay("ph")
        self.lname = "G"
        run(hl[:c.act_lead])

        def g_rates(i, h):
            if any(p0 <= i < p1 for p0, p1 in c.pauses):
                return (c.g_hi[2] if i >= 64 else c.g_hi[i // 32], 0, 0)
            reg = min(i // 32, 2)
            if i >= c.st_cb:
                return (c.g_hi[2], c.g_end, c.g_end) if h else (0, c.g_dma[2], 0)
            return (c.g_hi[reg], c.g_mix[reg] if h else c.g_dma[reg], 0)
        self.mfma_loop(steps, fill, g_rates, rng=(0, 64), hi=hi)
        if c.skip_idle:
            body = [o.text for o in e.out[n_p3:] if isinstance(o, Ins)]
            alt, m0 = [], None
            for k, t in enumerate(body):
                if t.startswith("s_add_u32 m0") or (len(t.split()) > 1 and t.split()[1] == f"{self.s_so},"):
                    alt.append(t)
                elif t.endswith(" lds") and WD in t:
                    alt += ["s_nop 0", t]
            keep = []
            for k, t in enumerate(alt):
                if t.startswith("s_add_u32 m0") and any(u.startswith("s_add_u32 m0") for u in alt[k + 1:k + 3]) :
                    continue
                keep.append(t)
            alt = keep
            alt2 = [t for t in body if t.startswith(f"s_xor_b32 {s_ao},") or (t.startswith("buffer_load_dwordx4") and f" {v_hha}," in t)]
            rd = steps[64]["reads"]() + steps[65]["reads"]()
            Lw = Lidle + "_w"
            self.ool.append(f"{Lidle}:\n    s_waitcnt vmcnt(0) lgkmcnt(0)\n    s_barrier\n" + "".join(f"    {t}\n" for t in alt) +
                            f"    s_mov_b32 {self.s_spin}, 0\n{Lw}:\n    s_sleep 8\n    s_add_u32 {self.s_spin}, {self.s_spin}, 1\n    s_cmp_gt_u32 {self.s_spin}, {c.spin}\n"
                            f"    s_cbranch_scc1 Lexit\n    buffer_load_dword {v_chk}, {v_pf}, s[36:39], 0 offen offset:{F_A * 512} sc1\n    s_waitcnt vmcnt(0)\n"
                            f"    v_cmp_ne_u32 vcc, {s_tag}, {v_chk}\n    s_cbranch_vccnz {Lw}\n" + "".join(f"    {t}\n" for t in alt2) +
                            "    s_barrier\n" + "".join(f"    {t}\n" for t in rd) + f"    s_waitcnt vmcnt(0) lgkmcnt(0)\n    s_branch {Ljoin}\n")
            e.label(Ljoin)
        self.stamp("p3e")
        self.mfma_loop(steps, fill, g_rates, rng=(64, 92), hi=hi)
        self.stamp("p4e")
        self.barrier()
        reduce_pair()
        e(unpark("xres", u1))
        self.barrier()
        reduce_read()
        for j in range(8):
            e(f"v_pk_fma_f32 {x1.sub(2 * j, 2)}, {acc0.sub(2 * j, 2)}, {gb.sub(2 * (j & 3), 2)}, {x1.sub(2 * j, 2)}")
        for a in range(2):
            for par in range(2):
                for h in range(2):
                    e(f"v_cvt_pk_bf16_f32 {acc1[4 * par + 2 * a + h]}, {x1[8 * a + 4 * par + 2 * h]}, {x1[8 * a + 4 * par + 2 * h + 1]}")
        for par in range(2):
            for h in range(2):
                e(f"v_permlane16_swap_b32 {acc1[4 * par + h]}, {acc1[4 * par + 2 + h]}")
        e(f"buffer_store_dwordx4 {acc1.sub(0, 4)}, {u1}, {OUT}, 0 offen{c.out_fl.replace('_', ' ')}")
        e(f"buffer_store_dwordx4 {acc1.sub(4, 4)}, {u1}, {OUT}, 0 offen offset:32{c.out_fl.replace('_', ' ')}")
        Lnb = e.newlabel("Lnobump")
        e(f"s_or_b32 {t0}, s2, {s_w}")
        e(f"s_cmp_lg_u32 {t0}, 0")
        e(f"s_cbranch_scc1 {Lnb}")
        xi = acc0.sub(0, 4)
        self.poll([f"buffer_load_dwordx4 {xi}, {v_l16}, {WS}, 0 offen offset:{WS_XID} sc1"], [xi[k] for k in range(4)],
                  pre=[f"v_and_b32 {xi[k]}, -8, {xi[k]}" for k in range(4)])
        e(f"""v_mov_b32 {u0}, 0
        s_mov_b64 exec, 1
        buffer_store_dword {self.v_tag}, {u0}, {WS}, 0 offen offset:{WS_E} sc1
        s_mov_b64 exec, -1""")
        e.label(Lnb)
        return self.finish()

    def finish(self):
        e, c = self.e, self.c
        if c.stamps:
            self.stamp("end")
            e(f"s_memrealtime {self.rt1}")
            e.wait_all_lg()
            t = self.v_tmp
            e("s_mov_b64 exec, 1")
            e(f"v_lshrrev_b32 {t}, 6, v0")
            e(f"v_lshlrev_b32 {t}, 6, {t}")
            e(f"s_lshl_b32 s3, s2, 8")
            e(f"v_add_u32 {t}, s3, {t}")
            e(f"v_add_u32 {t}, {WS_STAMP}, {t}")
            e(f"v_mov_b32 {self.v_tag}, {self.rt0[0]}")
            e(f"buffer_store_dword {self.v_tag}, {t}, s[36:39], 0 offen offset:60")
            e(f"v_mov_b32 {self.v_tag}, {self.rt1[0]}")
            e(f"buffer_store_dword {self.v_tag}, {t}, s[36:39], 0 offen offset:56")
            for k in range(len(self.stamp_names)):
                r = self.stamp_regs[k]
                e(f"s_sub_u32 s3, {r[0]}, {self.rt0[0] if self.stamp_names[k][0] == 'r' and c.rt else self.stamp_regs[0][0]}")
                e(f"v_mov_b32 {self.v_tag}, s3")
                e(f"buffer_store_dword {self.v_tag}, {t}, s[36:39], 0 offen offset:{4 * k}")
        if c.dbg:
            e("s_memtime s[4:5]\ns_memrealtime s[6:7]")
            e.wait_all_lg()
            e(f"""s_sub_u32 s4, s4, {self.d0[0]}
            s_sub_u32 s5, s6, {self.d1[0]}
            v_mov_b32 v2, s4
            v_mov_b32 v3, s5
            s_and_b32 s8, s2, 7
            s_lshl_b32 s8, s8, 3
            v_mov_b32 v4, s8
            s_mov_b64 exec, 1
            global_store_dwordx2 v4, v[2:3], {self.dp}""")
        e.label("Lexit")
        e("s_endpgm")
        return e.text() + "".join(self.ool) + "Lcode_end:\n"


def kernel_file(body, hdr):
    k = NAME + "_kernel"
    return f"""{hdr}; @launch grid=(256,1,1) block=(256,1,1) lds=163840
.amdgcn_target "amdgcn-amd-amdhsa--gfx950"
.text
.globl {k}
.p2align 8
.type {k},@function
{k}:
{body}.section .rodata,"a"
.p2align 6
.amdhsa_kernel {k}
  .amdhsa_next_free_vgpr 512
  .amdhsa_next_free_sgpr 102
  .amdhsa_accum_offset 256
  .amdhsa_group_segment_fixed_size 0
  .amdhsa_kernarg_size 96
  .amdhsa_user_sgpr_count 2
  .amdhsa_user_sgpr_kernarg_segment_ptr 1
  .amdhsa_system_sgpr_workgroup_id_x 1
.end_amdhsa_kernel
"""


if __name__ == "__main__":
    ap = argparse.ArgumentParser()
    ap.add_argument("-o", default="k.s")
    ap.add_argument("--stop")
    ap.add_argument("--stamps")
    ap.add_argument("--log", action="store_true")
    ap.add_argument("--set", nargs="*", default=[])
    a = ap.parse_args()
    c = Cfg()
    c.stop = a.stop
    c.stamps = a.stamps.split(",") if a.stamps else None
    for kv in a.set:
        k, v = kv.split("=")
        setattr(c, k, eval(v))
    g = Gen(c)
    body = g.build()
    hdr = "; stamps: " + " ".join(g.stamp_names) + "\n" if c.stamps else ""
    open(a.o, "w").write(kernel_file(body, hdr))
    print("instrs", g.e.n_ins, "nops", g.e.nops, "barriers", g.nbar, "vgpr hi", g.V.hi, "agpr hi", g.A.hi, "sgpr hi", g.S.hi)
    if a.log:
        print("\n".join(g.log))
```

```python
import sys, math, argparse, struct
sys.path.insert(0, "gen")
from emit import *

NAME = "adaLN_cond__sliding_local_dilated__glu_gated_bilinear__prompt"

WS_E, WS_XID, WS_FLAGS, WS_G, WS_STATS = 0x0, 0x400, 0x1000, 0x10000, 0x80000
WS_O, WS_H2, WS_HH, WS_STAMP, WS_SIZE = 0x100000, 0x100000, 0x500000, 0xC00000, 0xD00000
GQ = 0x3000
GCOPY = 4 * GQ
NCOPY = 4
F_O, F_H, F_A, F_B = 0, 1, 2, 3
L_TBL2 = 0
L_PART = 1024
L_TBL = 2048
L_K = L_TBL
HB = 80 * 272
L_H0 = L_K + 80 * 144
L_V = L_H0
L_H1 = L_H0 + HB
L_RING = L_H1 + HB
L_END = 163840
L_RED = L_TBL
SLOTS = 5
WIN = 61440


def f2u(x):
    return struct.unpack("<I", struct.pack("<f", x))[0]


class Cfg:
    mimic = True
    stamps = None
    stop = None
    force_slow = False
    hh_sc1 = True
    preread = True
    spin = 1 << 16
    dma_every = 2
    pre_chunks = 4
    nx_first = 8
    nw_first = 0
    x_rate0 = 0.06
    x_rate = 1 / 12
    pre_rate = 1 / 14
    dma_hop1 = 8
    dma_hop2 = 8
    dma_hop3 = 8
    exp_nodma = False
    exp_skip = ''
    exp_nohh = False
    exp_noh2 = False
    act_fl = ' sc1'
    code_pf = True
    touch = 1
    tlb = 0
    touchq = 0
    mall_q = True
    t3 = 7
    n_pre = 15
    n_alpha, n_beta, n_gamma = 3, 8, 6
    lead_b = 12
    pauses = ()
    q_dma, q_dma0, q_stage = 0.75, 0, 0
    g_hi = (0.27, 0.3, 0.5)
    g_mix = (0.3, 0.15, 0.5)
    g_dma = (0.34, 0.4, 0.5)
    pre_tiles = 2
    pf_first = True
    exp_dirty = 0
    exp_dfl = ''
    fh_early = 1
    opt_o = 1
    opt_h = 0
    p3_16 = True
    slots16 = 3
    q_slots = 4
    fslots16 = 2
    q_fill = 3
    rot = 11
    rsh = 1
    gbit = 2
    exp_stagger = ()
    skip_idle = True
    rt = False
    psleep = 0
    p2_lead = 10
    sent = 0
    commit_late = False
    att_n = 1000
    dbg = False
    out_fl = ''
    nq_k = 1
    w_first = 24
    mallq_early = False
    np0 = 4
    n_rate = 0.12
    st_g2 = 14
    code_pf0 = True
    nx_pre = 4
    idle_pf = 0
    idle_off = 65536
    burst_a = False
    burst_b = True
    g_end = 0.4
    bg_early = 1
    bg_n = 5
    q_dma1 = 26
    uo_late = True
    hh_fast = 0
    wb_at = 0
    wb_who = 60
    h_full = True
    q_span = 2
    tq2 = 9
    q_hi, q_hi0 = 0.3, 26
    solo_reads = 0
    mall_pf = 2
    dma_p1 = 2
    dma_p3 = 3
    dma_p4 = 2
    dma_att = 0
    act_lead = 8
    dma_p2 = 0
    n_dir, n_stage = 8, 4
    stage_p1 = 0
    att_every = 20
    post_every = 0
    hi3, mix3 = 3, 3
    hi4, mix4 = 2, 2
    st_fa, st_ia, st_ca = 47, 50, 53
    st_fb, st_ib, st_cb = 74, 76, 78


class Lds:
    def __init__(self):
        self.free = []

    def add(self, a, n):
        for iv in self.free:
            assert a + n <= iv[0] or a >= iv[1], "double free"
        self.free.append([a, a + n])
        self.free.sort()
        m = []
        for iv in self.free:
            if m and m[-1][1] == iv[0]:
                m[-1][1] = iv[1]
            else:
                m.append(iv)
        self.free = m

    def alloc(self, n, span=0):
        for iv in self.free:
            a = iv[0]
            if iv[1] - a >= n:
                iv[0] += n
                if iv[0] == iv[1]:
                    self.free.remove(iv)
                return a
        return None


class Gate:
    is_open = False

    def open(self):
        self.is_open = True


class Mark:
    pass


class Skip:
    def __init__(self, n):
        self.n = n


class Unit:
    def __init__(self, name, size, dmas):
        self.name, self.size, self.dmas = name, size, dmas
        self.addr = None
        self.next = 0
        self.tok = None
        self.ready = False
        self.released = False


class Gen:
    def __init__(self, cfg):
        self.c = cfg
        self.e = Emit()
        self.V = RegAlloc("v", 256, first=1)
        self.A = RegAlloc("a", 256)
        self.S = RegAlloc("s", 102, first=44)
        self.lds = Lds()
        self.queue = []
        self.stamp_names = []
        self.nbar = 0
        self.cur_so = None
        self.dq = []
        self.log = []
        self.ool = []
        self.stq = []
        self.cur_so2 = None
        self.cur_m0 = None
        self.lname = 'L'

    def dma_prepare(self):
        while self.queue and self.queue[0].next >= len(self.queue[0].dmas):
            self.queue.pop(0)
        if not self.queue:
            return []
        u = self.queue[0]
        if u.addr is None:
            u.addr = self.lds.alloc(u.size)
            if u.addr is None:
                return []
        srd, vreg, soff, imm, loff = u.dmas[u.next]
        u.next += 1
        e = self.e
        L = []
        m0v = (str(getattr(u, "wreg", self.s_w1k)), u.addr + loff - imm)
        if m0v != self.cur_m0:
            L.append(lambda: e(f"s_add_u32 m0, {m0v[0]}, {m0v[1]}"))
            self.cur_m0 = m0v
        if callable(soff):
            soff = soff()
        if soff and soff != self.cur_so:
            for t in self.so_code(self.s_so, soff):
                L.append(lambda t=t: e(t))
            self.cur_so = soff
        so = self.s_so if soff else 0
        im = f" offset:{imm}" if imm else ""

        if (self.c.exp_nodma and getattr(self, "in_loop", False)) or u.name[0] in self.c.exp_skip:
            u.tok = u.tok or 0
            return [lambda: None]

        def ld():
            u.tok = e(f"buffer_load_dwordx4 {vreg}, {srd}, {so} offen{im} lds")
            u.pending_piece = False
        u.pending_piece = True
        L.append(ld)
        return L

    def so_code(self, d, soff):
        if not isinstance(soff, tuple):
            return [f"s_mov_b32 {d}, {soff}"]
        r, m, k = soff
        if m == "x":
            return [f"s_xor_b32 {d}, {r}, {k}"]
        if m == 1:
            return [f"s_add_u32 {d}, {r}, {k}"]
        return [f"s_mul_i32 {d}, {r}, {m}"] + ([f"s_add_u32 {d}, {d}, {k}"] if k else [])

    def stage_prepare(self):
        while self.stq and self.stq[0].next >= len(self.stq[0].dmas):
            self.stq.pop(0)
        if not self.stq:
            return []
        u = self.stq[0]
        srd, vreg, soff, imm, loff = u.dmas[u.next]
        r = self.A.alloc(4)
        u.sregs = getattr(u, "sregs", []) + [(r, loff)]
        u.next += 1
        e = self.e
        L = []
        if soff != self.cur_so2:
            L.append(lambda: e(f"s_mov_b32 {self.s_so2}, {soff}"))
            self.cur_so2 = soff
        im = f" offset:{imm}" if imm else ""
        L.append(lambda: e(f"buffer_load_dwordx4 {r}, {vreg}, {srd}, {self.s_so2} offen{im}"))
        return L

    def stage_step(self):
        self.dma_flush()
        L = self.stage_prepare()
        for f in L:
            f()
        return bool(L)

    def commit(self, units, v_w16):
        L = []
        for u in units:
            if u.addr is not None:
                continue
            assert u.next >= len(u.dmas), "commit of a unit that is not fully staged"
            u.addr = self.lds.alloc(u.size)
            if u.addr is None:
                break
            for r, loff in u.sregs:
                def w(u=u, r=r, loff=loff):
                    wi, o = divmod(u.addr + loff, WIN)
                    u.ltok = self.e(f"ds_write_b128 {v_w16[wi]}, {r} offset:{o}")
                    self.A.release(r)
                L.append(w)
            u.staged = True
        return L

    def dma_flush(self):
        while self.dq:
            self.dq.pop(0)()

    def dma_step(self):
        self.dma_flush()
        L = self.dma_prepare()
        for f in L:
            f()
        return bool(L)

    def dma_all(self, limit=10 ** 9):
        n = 0
        while n < limit and self.dma_step():
            n += 1
        return n

    def barrier(self, ready=(), release=(), lg=sys.maxsize, tag=""):
        e = self.e
        ready = [u for u in ready if not u.ready]
        late = 0
        for u in ready:
            if getattr(u, "staged", False):
                u.ready = True
                lg = max(lg or 0, u.ltok)
        ready = [u for u in ready if not u.ready]
        for u in ready:
            if getattr(u, "pending_piece", False):
                self.dma_flush()
            while u.next < len(u.dmas):
                assert self.dma_step(), f"LDS ring deadlock at unit {u.name}"
                late += 1
        self.stamp(f"b{self.nbar}a")
        if ready:
            tk = max(u.tok for u in ready)
            self.log.append(f"bar {self.nbar} {tag}: ready {ready[0].name}..{ready[-1].name} late={late} younger_vm={e.vm_issued - tk} ins={e.n_ins}")
            e.wait(vm=tk)
        self.stamp(f"b{self.nbar}v")
        if lg is not None:
            e.wait(lg=min(lg, e.lg_issued))
        e("s_barrier")
        self.stamp(f"b{self.nbar}e")
        self.nbar += 1
        for u in ready:
            u.ready = True
        for u in release:
            if not u.released:
                u.released = True
                self.lds.add(u.addr, u.size)

    def stamp(self, name):
        if self.c.stamps and (name in self.c.stamps or self.c.stamps == "all" and len(self.stamp_names) < 15 or name in ("t0", "end")):
            r = self.stamp_regs[len(self.stamp_names)]
            self.e(f"s_memtime {r}")
            self.stamp_names.append(name)
            if self.c.rt and name not in ("t0", "end"):
                self.e(f"s_memrealtime {self.stamp_regs[len(self.stamp_names)]}")
                self.stamp_names.append("r" + name)

    def interleave(self, main, fill, ratio):
        acc = 0.0
        fill = list(fill)
        for m in main:
            m() if callable(m) else self.e(m)
            acc += ratio
            while acc >= 1.0 and fill:
                f = fill.pop(0)
                f() if callable(f) else self.e(f)
                acc -= 1.0
        return fill

    def bg_on(self, every, limit, stage=True, nmax=1000):
        e = self.e
        st = dict(n=0, busy=False)

        def hook():
            if st["busy"] or e.in_cond or e.hist[-1].op.startswith(("s_cmp", "s_cbranch")):
                return
            st["n"] += 1
            if st["n"] >= every and st.get("c", 0) < nmax:
                st["c"] = st.get("c", 0) + 1
                st["n"] = 0
                st["busy"] = True
                lim = limit[0]
                if not (lim.next < len(lim.dmas) and self.dma_step()) and stage:
                    self.stage_step()
                st["busy"] = False
        e.hook = hook if every else None

    def bg_off(self):
        self.e.hook = None

    def exp_delay(self, where):
        n = dict(self.c.exp_stagger).get(where, 0)
        if n:
            e = self.e
            L = e.newlabel("Lst")
            e("s_bitcmp1_b32 s2, 7")
            e(f"s_cbranch_scc0 {L}")
            for _ in range(n):
                e("s_sleep 8")
            e.label(L)

    def bf16r(self, d, s):
        return [f"v_cvt_pk_bf16_f32 {d}, {s}, {s}", f"v_and_b32 {d}, 0xffff0000, {d}"]

    def poll(self, loads, checks, pre=None):
        e = self.e
        self.dma_flush()
        L = e.newlabel("Lpoll")
        e(f"s_mov_b32 {self.s_spin}, 0")
        if self.c.psleep:
            L2 = e.newlabel("Lfirst")
            e(f"s_branch {L2}")
        e.label(L)
        if self.c.psleep:
            e(f"s_sleep {self.c.psleep}")
            e.label(L2)
        e(f"s_add_u32 {self.s_spin}, {self.s_spin}, 1")
        e(f"s_cmp_gt_u32 {self.s_spin}, {self.c.spin}")
        e("s_cbranch_scc1 Lexit")
        for t in loads:
            e(t)
        e.force_vm0()
        for t in pre or []:
            e(t)
        if not checks:
            pass
        elif len(checks) == 1:
            e(f"v_cmp_ne_u32 vcc, {self.s_tag}, {checks[0]}")
        else:
            t = self.v_tmp
            e(f"v_xor_b32 {t}, {checks[0]}, {self.v_tag}")
            rest = list(checks[1:])
            for r in rest:
                e(f"v_xor_b32 {r}, {r}, {self.v_tag}")
            while len(rest) >= 2:
                e(f"v_or3_b32 {t}, {t}, {rest.pop()}, {rest.pop()}")
            if rest:
                e(f"v_or_b32 {t}, {t}, {rest.pop()}")
            e(f"v_cmp_ne_u32 vcc, 0, {t}")
        e(f"s_cbranch_vccnz {L}")

    def store2(self, fmt_list):
        e = self.e
        Ls, Lj = e.newlabel("Lslow"), e.newlabel("Ljoin")
        e(f"s_cmp_eq_u32 {self.s_mode}, 0")
        e(f"s_cbranch_scc1 {Ls}")
        save = (e.vm_issued, e.vm_done, list(e.hist))
        n0 = len(e.out)
        tok = None
        for t in fmt_list:
            tok = e(t.format(f="")) or tok
        for o in e.out[n0:]:
            assert o.op != "s_waitcnt", "operand of mode-dependent store not ready"
        e(f"s_branch {Lj}")
        e.label(Ls)
        e.vm_issued, e.vm_done, e.hist = save
        for t in fmt_list:
            e(t.format(f=" sc1"))
        e.label(Lj)
        return tok

    def flag_store(self, vaddr, off):
        e = self.e
        e("s_mov_b64 exec, 1")
        self.store2([f"buffer_store_dword {self.v_tag}, {vaddr}, s[36:39], 0 offen offset:{off}" + "{f}"])
        e("s_mov_b64 exec, -1")

    def loop_prologue(self, steps, PD=2):
        for i in range(min(PD, len(steps))):
            self._bar_for(steps, i, -1)
            steps[i]["tok"] = [self.e(r) for r in steps[i]["reads"]()][-1]

    def _bar_for(self, steps, i, cur):
        st = steps[i]
        need = [u for u in st["units"] if not u.ready]
        if st.get("bar") or need:
            if st.get("prebar"):
                st["prebar"]()
            k = i
            ready = []
            for k in range(i, min(i + st.get("span", 1), len(steps))):
                ready += [u for u in steps[k]["units"] if u not in ready]
            live = {id(u) for s2 in steps[cur + 1:] for u in s2["units"]}
            dead = [u for s2 in steps[:cur + 1] for u in s2["units"] if id(u) not in live] + st.get("release", [])
            self.barrier(ready=ready, release=dead, lg=st["lg"]() if st.get("lg") else None, tag=f"step{i}")
            if st.get("postbar"):
                st["postbar"]()

    def mfma_loop(self, steps, fill, rates, PD=2, rng=None, hi=None):
        e = self.e
        cnt = 0
        self.in_loop = True
        a, b = rng or (0, len(steps))
        hi = hi if hi is not None else []
        cred = [0.0, 0.0, 0.0]
        for i in range(a, b):
            st = steps[i]
            nxt = steps[i + PD] if i + PD < len(steps) else None
            rq = []
            nm = len(st["mfmas"])
            self.stamp(f"{getattr(self, 'lname', 'L')}{i}")
            for j, mf in enumerate(st["mfmas"]):
                if j == 0:
                    for f in st.get("pre", []):
                        f()
                    vm = None
                    for m2 in st["mfmas"][:st.get("wspan", 2)]:
                        for r in Ins(m2).src:
                            t = e.pend.get(r)
                            if t and t[0] == "vm":
                                vm = max(vm or 0, t[1])
                    e.wait(vm=vm, lg=st["tok"])
                e(mf)
                cnt += 1
                n0 = e.n_ins
                if j == 0 and nxt:
                    self._bar_for(steps, i + PD, i)
                    rq = list(nxt["reads"]())
                while fill and (isinstance(fill[0], Mark) or (isinstance(fill[0], Gate) and fill[0].is_open)):
                    fill.pop(0)
                if fill and getattr(fill[0], "solo", False) and j < nm - 1 and e.n_ins == n0:
                    fill.pop(0)()
                    for _ in range(min(self.c.solo_reads, len(rq))):
                        nxt["tok"] = e(rq.pop(0))
                    continue
                k = math.ceil(len(rq) / (nm - j))
                for _ in range(k):
                    tk = e(rq.pop(0))
                    nxt["tok"] = tk
                budget = st.get("slots", SLOTS) - ((1 + (steps[i + 1].get("resv", 0) if i + 1 < len(steps) else 0)) if j == nm - 1 else 0)
                while hi and isinstance(hi[0], Gate) and hi[0].is_open:
                    hi.pop(0)
                hi_ok = bool(hi) and not isinstance(hi[0], Gate)
                hr, dr, sr = [x * st.get("rscale", 1.0) for x in rates(i, hi_ok)]
                cred[0] = min(cred[0] + hr, 1.9) if hi_ok else 0.0
                cred[1] = min(cred[1] + dr, 1.9)
                cred[2] = min(cred[2] + sr, 1.9)
                if hi_ok and cred[0] >= 0.999 and (e.n_ins - n0 < budget or cred[0] >= 1.5):
                    cred[0] -= 1.0
                    hi.pop(0)()
                elif not self.dq:
                    if cred[1] >= 0.999:
                        self.dq = self.dma_prepare()
                        if self.dq:
                            cred[1] -= 1.0
                    if not self.dq and cred[2] >= 0.999:
                        self.dq = self.stage_prepare()
                        if self.dq:
                            cred[2] -= 1.0
                while e.n_ins - n0 < budget and self.dq:
                    self.dq.pop(0)()
                if "fslots" in st:
                    budget -= st["slots"] - st["fslots"]
                while e.n_ins - n0 < budget and fill:
                    if isinstance(fill[0], Gate):
                        if not fill[0].is_open:
                            break
                        fill.pop(0)
                        continue
                    if isinstance(fill[0], Mark):
                        fill.pop(0)
                        continue
                    if isinstance(fill[0], Skip):
                        fill[0].n -= 1
                        if fill[0].n <= 0:
                            fill.pop(0)
                        break
                    if getattr(fill[0], "solo", False):
                        break
                    f = fill.pop(0)
                    f() if callable(f) else e(f)
        self.dma_flush()

    def verify(self, frags, vaddr):
        e = self.e
        tm, t2 = self.v_tmp, self.v_tmp2

        def chk():
            L = []
            src = []
            for k, (r, o) in enumerate(frags):
                if r.kind == "a":
                    d = (tm, t2)[k]
                    L.append(f"v_accvgpr_read_b32 {d}, {r[0]}")
                    src.append(d)
                else:
                    src.append(r[0])
            if len(src) == 2:
                L.append(f"v_max_u32 {tm}, {src[0]}, {src[1]}")
                src = [tm]
            L.append(f"v_cmp_eq_u32 vcc, -1, {src[0]}")
            return L
        Ls, Lb = e.newlabel("Lretry"), e.newlabel("Lback")
        for t in chk():
            e(t)
        e(f"s_cbranch_vccnz {Ls}")
        e.label(Lb)
        ld = "".join(f"    s_mov_b32 {self.s_rt}, {o}\n    buffer_load_dwordx4 {r}, {vaddr}, s[36:39], {self.s_rt} offen sc1\n" for r, o in frags)
        ck = "".join(f"    {t}\n" for t in chk())
        self.ool.append(f"""{Ls}:
    s_mov_b32 {self.s_spin}, 0
{Ls}_1:
    s_add_u32 {self.s_spin}, {self.s_spin}, 1
    s_cmp_gt_u32 {self.s_spin}, {self.c.spin}
    s_cbranch_scc1 Lexit
{ld}    s_waitcnt vmcnt(0)
{ck}    s_cbranch_vccnz {Ls}_1
    s_branch {Lb}
""")

    def opt_check(self, vaddr, off, reg):
        e = self.e
        box = {}

        def issue():
            box["tok"] = e(f"buffer_load_dword {reg}, {vaddr}, s[36:39], 0 offen offset:{off} sc1")

        def check():
            Ls, Lb = e.newlabel("Lretry"), e.newlabel("Lback")
            e(f"v_cmp_ne_u32 vcc, {self.s_tag}, {reg}")
            e(f"s_cbranch_vccnz {Ls}")
            e.label(Lb)
            self.ool.append(f"""{Ls}:
    s_mov_b32 {self.s_spin}, 0
{Ls}_1:
    s_add_u32 {self.s_spin}, {self.s_spin}, 1
    s_cmp_gt_u32 {self.s_spin}, {self.c.spin}
    s_cbranch_scc1 Lexit
    buffer_load_dword {reg}, {vaddr}, s[36:39], 0 offen offset:{off} sc1
    s_waitcnt vmcnt(0)
    v_cmp_ne_u32 vcc, {self.s_tag}, {reg}
    s_cbranch_vccnz {Ls}_1
    s_branch {Lb}
""")
        return issue, check

    def drain_to(self, fill, mark):
        if mark is not None and mark not in fill:
            return
        while fill:
            f = fill.pop(0)
            if f is mark:
                return
            if isinstance(f, Gate):
                assert f.is_open
            elif not isinstance(f, (Mark, Skip)):
                f() if callable(f) else self.e(f)

    def finish_stats(self, sm, sq, rho, nmr, n):
        L = [f"v_mul_f32 {sm}, 0x{f2u(1.0 / n):08x}, {sm}",
             f"v_mul_f32 {sq}, 0x{f2u(1.0 / n):08x}, {sq}",
             f"v_fma_f32 {sq}, -{sm}, {sm}, {sq}",
             f"v_max_f32 {sq}, 0, {sq}"]
        if self.c.mimic:
            L += self.bf16r(sq, sq)
            L += [f"v_add_f32 {sq}, 0x{f2u(1e-5):08x}, {sq}"]
            L += self.bf16r(sq, sq)
            L += [f"v_sqrt_f32 {sq}, {sq}"]
            L += self.bf16r(sm, sm)
            L += self.bf16r(sq, sq)
            L += [f"v_rcp_f32 {rho}, {sq}"]
        else:
            L += [f"v_add_f32 {sq}, 0x{f2u(1e-5):08x}, {sq}", f"v_rsq_f32 {rho}, {sq}"]
        L += [f"v_mul_f32_e64 {nmr}, -{sm}, {rho}"]
        return L

    def build(self):
        c, e, V, A, S = self.c, self.e, self.V, self.A, self.S
        global L_TBL, L_K, L_H0, L_V, L_H1, L_RING, L_RED
        if c.h_full:
            L_H0 = 2048
            L_H1 = L_H0 + HB
            L_V = L_H0 + 2 * HB
            L_K = L_V - 80 * 144
            L_TBL = L_H0 + 4 * HB
            L_RING = L_TBL + 4096
            L_RED = L_K
            LH = [L_H0 + k * HB for k in range(4)]
        else:
            LH = [L_H0, L_H1, L_H0, L_H1]
        X, WQ, WO, WG, WU, WD, WM, OUT, WS, CC = [f"s[{4 + 4 * i}:{7 + 4 * i}]" for i in range(10)]
        e("s_cmp_ge_u32 s2, 256")
        e("s_cbranch_scc1 Lexit")
        if c.stamps:
            self.stamp_regs = [S.alloc(2) for _ in range(min(14, len(c.stamps) * (2 if c.rt else 1) + 2))]
            self.rt0, self.rt1 = S.alloc(2), S.alloc(2)
            e(f's_memrealtime {self.rt0}')
        self.stamp("t0")
        if c.dbg:
            self.d0, self.d1, self.dp = S.alloc(2), S.alloc(2), S.alloc(2)
            e(f"s_memtime {self.d0}\ns_memrealtime {self.d1}\ns_load_dwordx2 {self.dp}, s[0:1], 80")
        srds = {0: (0, 2048 * 1024), 6: (64, 512 * 6144), 9: (56, 1024), 8: (88, WS_SIZE if not c.exp_dirty else 0x2000000), 1: (8, 512 * 3072), 2: (16, 512 * 1024),
                3: (32, 512 * 3584), 4: (40, 512 * 3584), 5: (48, 1792 * 1024), 7: (72, 2048 * 1024)}

        def srd_ptr(i):
            e(f"s_load_dwordx2 s[{4 + 4 * i}:{5 + 4 * i}], s[0:1], {srds[i][0]}")

        def srd_words(i):
            e(f"s_mov_b32 s{6 + 4 * i}, {srds[i][1]}")
            e(f"s_mov_b32 s{7 + 4 * i}, 0x20000")
        for i in (0, 6, 9, 8):
            srd_ptr(i)
        sa = lambda: S.alloc(1)
        s_w, s_tb, s_kh, s_g, s_m, s_hg, s_TB = [sa() for _ in range(7)]
        self.s_w1k, self.s_so, self.s_spin, self.s_tag, self.s_mode, self.s_so2 = [sa() for _ in range(6)]
        s_w1k, s_tag = self.s_w1k, self.s_tag
        t0, t1, t2, t3 = [sa() for _ in range(4)]
        s_idx, s_col0, s_flb, s_tile, s_hh = sa(), sa(), sa(), sa(), sa()
        v_l, v_t, v_hh = V.alloc(), V.alloc(), V.alloc()
        self.v_tmp, self.v_tmp2 = V.alloc(), V.alloc()
        self.s_rt = Reg('s', 3, 1)
        self.v_tag = V.alloc()
        u0, u1, u2, u3 = [V.alloc() for _ in range(4)]
        v_dq, v_dw, v_dd, v_dA = [V.alloc() for _ in range(4)]
        v_fl, v_l16, v_trn = V.alloc(), V.alloc(), V.alloc()
        a_dummy = A.alloc_top(4)
        a_ones = A.alloc_top(4)
        hinit = {}
        v_c, v_wm, v_x = V.alloc(), V.alloc(), V.alloc()
        e(f"""s_and_b32 {t3}, s2, 7
        s_lshr_b32 {s_idx}, s2, 3
        s_lshr_b32 {t0}, {s_idx}, 3
        s_lshl_b32 {t0}, {t0}, 6
        s_lshl_b32 {t1}, {t3}, 8
        s_add_u32 {t0}, {t0}, {t1}
        s_sub_u32 {t0}, {t0}, 16
        v_lshrrev_b32 {u2}, 6, v0
        v_mul_u32_u24 {u0}, 20, {u2}
        v_bfe_u32 {u1}, v0, 4, 2
        v_add3_u32 {u0}, {u0}, {u1}, {t0}
        v_and_b32 {u1}, 15, v0
        v_lshlrev_b32 {u0}, 10, {u0}
        v_lshl_add_u32 {v_x}, {u1}, 4, {u0}""")
        srd_words(0)
        s_rx = [sa() for _ in range(4)]
        pre2 = f"""s_min_u32 {t0}, {s_idx}, 23
        s_lshr_b32 {t1}, {t0}, 2
        s_lshl_b32 {t1}, {t1}, 3
        s_add_u32 {s_col0}, {t1}, {t3}
        s_and_b32 {t0}, {t0}, 3
        s_lshl_b32 {t0}, {t0}, 7
        v_lshrrev_b32 {u0}, 3, v0
        v_add_u32 {u0}, {t0}, {u0}
        v_lshlrev_b32 {v_c}, 1, {u0}
        v_mul_u32_u24 {v_wm}, 6144, {u0}
        v_and_b32 {u1}, 7, v0
        v_lshlrev_b32 {u1}, 4, {u1}
        s_lshl_b32 {t0}, {s_col0}, 7
        v_add3_u32 {v_wm}, {v_wm}, {u1}, {t0}"""
        pre3 = f"""v_readfirstlane_b32 {s_w}, {u2}
        v_and_b32 {v_l}, 63, v0
        v_and_b32 {v_t}, 31, v0
        v_lshrrev_b32 {v_hh}, 5, {v_l}
        s_lshr_b32 {t0}, {s_idx}, 4
        s_lshl_b32 {s_g}, {t3}, 1
        s_add_u32 {s_g}, {s_g}, {t0}
        s_and_b32 {s_m}, {s_idx}, 15
        s_and_b32 {s_hg}, {s_m}, 7
        s_and_b32 {s_tb}, {s_w}, 1
        s_lshr_b32 {s_kh}, {s_w}, 1
        s_lshl_b32 {s_w1k}, {s_w}, 10
        s_lshl_b32 {s_TB}, {s_g}, 2
        s_lshr_b32 {t0}, {s_m}, 3
        s_lshl_b32 {t0}, {t0}, 1
        s_add_u32 {s_TB}, {s_TB}, {t0}
        s_add_u32 {s_TB}, {s_TB}, {s_tb}"""
        cv = V.alloc(4)
        wmv = V.alloc(16)
        XN = [[None] * 4 for _ in range(5)]
        xn_all = V.alloc_top(184)
        for i in range(5):
            for ch in range(4):
                XN[i][ch] = xn_all.sub((((ch + 3) % 4) * 5 + i) * 8, 8)
        def lines(srd, n, base_code, stride=128):
            return base_code + [f"v_mul_u32_u24 {u0}, {stride}, {v_l}", f"v_cmp_le_u32 vcc, {n}, {v_l}", f"v_add_u32 {u0}, {t0}, {u0}",
                                f"v_cndmask_b32 {u0}, {u0}, -1, vcc",
                                lambda: e(f"buffer_load_dword {a_dummy[0]}, {u0}, {srd}, 0 offen", track=False)]

        def mall(srd, n):
            return lines(srd, n, [f"s_lshl_b32 {t0}, s2, 2", f"s_add_u32 {t0}, {t0}, {s_w}", f"s_mul_i32 {t0}, {t0}, {n * 128}"])

        def touch3(srd, rows, pitch):
            return lines(srd, rows, [f"s_lshl_b32 {t0}, {s_idx}, 2", f"s_add_u32 {t0}, {t0}, {s_w}", f"s_mul_i32 {t0}, {t0}, {rows * pitch}",
                                     f"s_add_u32 {t0}, {t0}, 384"], stride=pitch)

        def run(L):
            for t in L:
                t() if callable(t) else e(t)
        xld = []
        for i in range(5):
            for ch in range(4):
                t = f"buffer_load_dwordx4 {XN[i][ch].sub(4, 4)}, {v_x}, {X}, 0 offen offset:{256 * ch}"
                if ch == 3 and i < 4:
                    t += f"\nv_add_u32 {v_x}, 4096, {v_x}"
                xld.append(t)
        e.wait_all_lg()
        self.stamp("ka")
        self.exp_delay("start")
        if c.touch:
            srd_words(6)
            e(f"""v_and_b32 {u1}, 63, v0
            v_mul_u32_u24 {u0}, 20, {u2}
            v_add3_u32 {u0}, {u0}, {u1}, {t0}
            v_lshlrev_b32 {u0}, 10, {u0}
            s_and_b32 {t1}, {s_idx}, 7
            s_lshl_b32 {t1}, {t1}, 7
            v_cmp_lt_u32 vcc, 19, {u1}
            v_add_u32 {u0}, {t1}, {u0}
            s_min_u32 {t0}, {s_idx}, 23
            v_cndmask_b32 {u0}, {u0}, -1, vcc""")
            e(f"buffer_load_dword {a_dummy[0]}, {u0}, {X}, 0 offen", track=False)
        if c.code_pf0:
            e(f"""s_getpc_b64 vcc
            v_and_b32 {u1}, 63, v0
            v_lshlrev_b32 {u1}, 6, {u1}""")
            e(f"global_load_dword {a_dummy[0]}, {u1}, vcc", track=False)
        for t in xld[:c.nx_pre]:
            e(t)
        xld2 = xld[c.nx_pre:c.nx_first]
        xld = xld[c.nx_first:]
        srd_words(6); srd_words(9)
        e(pre2)
        for i in range(4):
            e(f"buffer_load_ushort {cv[i]}, {v_c}, {CC}, 0 offen offset:{64 * i}")
        wld = [(f"s_mov_b32 {self.s_so}, {i * 32 * 6144}\n" if i else "") +
               f"buffer_load_dwordx4 {wmv.sub(4 * i, 4)}, {v_wm}, {WM}, {self.s_so if i else 0} offen" for i in range(4)]
        if c.w_first:
            e(f"""s_cmp_ge_u32 {s_idx}, {c.w_first}
            s_cselect_b32 s30, 0, s30""")
            run(wld)
        self.stamp("wis")
        e(f"s_load_dword {s_tag}, s[36:37], {WS_E}")
        for i in (1, 2, 3, 4, 5, 7):
            srd_ptr(i)
        for i in (8, 1, 2, 3, 4, 5, 7):
            srd_words(i)
        e(pre3)
        if c.tlb:
            e(f"v_lshlrev_b32 {u0}, 21, {v_l}")
            for srd in (WQ, WS, WO, WG, WU, WD, OUT):
                e(f"buffer_load_dword {a_dummy[0]}, {u0}, {srd}, 0 offen offset:2048", track=False)
        s_st = sa()
        e(f"""s_lshl_b32 {t0}, {s_TB}, 12
        s_lshr_b32 {t1}, {s_hg}, 1
        s_lshl_b32 {t1}, {t1}, 10
        s_add_u32 {t0}, {t0}, {t1}
        s_and_b32 {t1}, {s_hg}, 1
        s_lshl_b32 {t1}, {t1}, 3
        s_add_u32 {t0}, {t0}, {t1}
        s_lshl_b32 {t1}, {s_kh}, 2
        s_add_u32 {t0}, {t0}, {t1}
        s_add_u32 {s_st}, {t0}, {WS_STATS}
        v_lshlrev_b32 {v_l16}, 4, {v_l}
        v_mov_b32 {u3}, -1""")
        for k in range(4):
            e(f"v_accvgpr_write_b32 {a_ones[k]}, -1")
        tok_init = e(f"buffer_store_dword {u3}, {v_l16}, {WS}, {s_st} offen sc1")
        late_ops = []
        if c.code_pf:
            pc = 's[0:1]'
            e(f"""s_getpc_b64 {pc}
            s_lshl_b32 {t0}, {s_idx}, 2
            s_add_u32 {t0}, {t0}, {s_w}
            s_mul_i32 {t0}, {t0}, 320
            v_mul_u32_u24 {u0}, 5, {v_l}
            v_add_u32 {u0}, {t0}, {u0}
            v_and_b32 {u0}, -4, {u0}
            v_min_u32 {u0}, Lcode_end-Lcode_pf-4, {u0}""")
            e.label("Lcode_pf")
            e(f"global_load_dword {a_dummy[0]}, {u0}, {pc}", track=False)
        if c.mall_q:
            if c.mallq_early:
                run(mall(WQ, 12))
            else:
                late_ops += mall(WQ, 12)
        self.lds.add(L_RING, L_END - L_RING)
        UQ = [Unit(f"q{u}", 12288, [(WQ, v_dq, (str(s_rx[u & 3]), 6, (u // 4) * 393216), mt * 1024, mt * 1024) for mt in range(3)]) for u in range(16)]
        s_w3k = sa()
        for u in UQ:
            u.wreg = s_w3k
        s_mo = sa()
        UO = [Unit(f"o{i}", 8192, [(WO, v_dw, (str(s_mo), "x", (2 * i + h) * 16384), 0, 4096 * h) for h in range(2)]) for i in range(8)]
        v_dA2 = V.alloc()
        vA = lambda u: v_dA2 if (u >> c.gbit) & 1 else v_dA
        uo = lambda u: (u & ~(1 << c.gbit)) * 32 * 3584
        UA = [Unit(f"a{u}", 8192 + 64, [(WG, vA(u), uo(u), 0, 0), (WU, vA(u), uo(u), 0, 4096 + 32)]) for u in range(16)]
        UB = [Unit(f"b{u}", 8192 + 64, [(WG, vA(u), uo(u), 128, 0), (WU, vA(u), uo(u), 128, 4096 + 32)]) for u in range(16)]
        fbA = [8 * mm + cb for mm in range(7) for cb in range(4)]
        fbB = [8 * mm + 4 + cb for mm in range(7) for cb in range(4)]
        fbs = fbA + fbB
        UD = [Unit(f"d{i}", 8192, [(WD, v_dd, (str(s_rx[0 if fbs[2 * i] < 48 else 1]), "x", fbs[2 * i + h] * 16384), 0, 4096 * h) for h in range(2)])
              for i in range(28)]
        UG = UA + UB
        staged = UG[c.n_dir:c.n_dir + c.n_stage]
        self.stq = list(staged)
        self.queue = UQ + UO + UG[:c.n_dir] + UG[c.n_dir + c.n_stage:] + UD
        v_r8, v_b64 = V.alloc(), V.alloc()
        addr_code = f"""v_lshlrev_b32 {v_r8}, 2, {v_hh}
        v_bfe_u32 {u0}, {v_l}, 2, 2
        v_add_u32 {v_r8}, {v_r8}, {u0}
        v_bfe_u32 {u0}, {v_l}, 4, 1
        v_lshlrev_b32 {u0}, 6, {u0}
        v_and_b32 {u1}, 3, {v_l}
        v_lshlrev_b32 {u1}, 4, {u1}
        v_add_u32 {v_b64}, {u0}, {u1}
        s_lshl_b32 {t0}, {s_w}, 3
        v_add_u32 {u0}, {t0}, {v_r8}
        v_mul_u32_u24 {u1}, 3072, {u0}
        s_lshl_b32 {t2}, {s_hg}, 7
        s_lshl_b32 {t1}, {s_tb}, 5
        v_xor_b32 {u2}, {t1}, {v_b64}
        v_add3_u32 {v_dq}, {u1}, {u2}, {t2}
        v_mul_u32_u24 {v_dA}, 3584, {u0}
        s_lshl_b32 {t0}, {s_kh}, 8
        s_lshl_b32 {t1}, {s_tb}, 3
        s_add_u32 {t0}, {t0}, {t1}
        v_add_u32 {u0}, {t0}, {v_r8}
        v_lshlrev_b32 {u0}, 10, {u0}
        v_add3_u32 {v_dw}, {u0}, {u2}, {t2}
        s_mul_i32 {t0}, {s_kh}, {56 * 16}
        s_add_u32 {t0}, {t0}, {t1}
        v_add_u32 {u0}, {t0}, {v_r8}
        v_lshlrev_b32 {u0}, 10, {u0}
        v_lshlrev_b32 {u1}, 5, {v_hh}
        v_xor_b32 {u1}, {u1}, {v_b64}
        v_add3_u32 {v_dd}, {u0}, {u1}, {t2}
        s_lshl_b32 {t3}, {s_m}, 8
        v_add3_u32 {v_dA}, {v_dA}, {u1}, {t3}
        s_lshr_b32 {t3}, {s_idx}, 4
        s_mul_i32 {t3}, {t3}, {(32 * 3584 << c.gbit) if c.rot & 2 else 0}
        s_sub_u32 {t2}, {32 * 3584 << c.gbit}, {t3}
        v_add_u32 {v_dA2}, {t2}, {v_dA}
        v_add_u32 {v_dA}, {t3}, {v_dA}"""
        addr_code += f"""
        s_mul_i32 {s_w3k}, {s_w}, 3072
        v_and_b32 {u0}, 3, {v_l}
        v_lshlrev_b32 {u0}, 3, {u0}
        v_bfe_u32 {u1}, {v_l}, 2, 2
        v_lshlrev_b32 {u1}, 6, {u1}
        v_add_u32 {u0}, {u0}, {u1}
        v_bfe_u32 {u1}, {v_l}, 4, 1
        v_lshlrev_b32 {u1}, 5, {u1}
        v_add_u32 {v_trn}, {u0}, {u1}
        s_lshl_b32 {t0}, {s_g}, 11
        s_and_b32 {t1}, {s_TB}, 3
        s_lshl_b32 {t1}, {t1}, 7
        s_add_u32 {t0}, {t0}, {t1}
        s_add_u32 {s_flb}, {t0}, {WS_FLAGS}
        s_lshl_b32 {t1}, {s_hg}, 3
        s_lshl_b32 {t2}, {s_kh}, 2
        s_add_u32 {t1}, {t1}, {t2}
        s_add_u32 {t1}, {t1}, {s_flb}
        v_mov_b32 {v_fl}, {t1}"""
        al = [l.strip() for l in addr_code.split("\n")]
        run(al)
        if c.rot & 1:
            e(f"s_lshr_b32 {s_rx[0]}, {s_idx}, 3\ns_lshl_b32 {s_rx[0]}, {s_rx[0]}, 14")
        else:
            e(f"s_mov_b32 {s_rx[0]}, 0")
        for k in range(1, 4):
            e(f"s_xor_b32 {s_rx[k]}, {s_rx[0]}, {16384 * k}")
        e(f"s_lshl_b32 {s_mo}, {s_rx[0]}, 1")
        parked = {}

        def park(name, reg):
            parked[name] = A.alloc(1)
            e(f"v_accvgpr_write_b32 {parked[name]}, {reg}")

        def unpark(name, reg, keep=False):
            t = f"v_accvgpr_read_b32 {reg}, {parked[name]}"
            return t

        def addr_of(L, name):
            run(L[:-1])
            park(name, u0)
        addr_of(mall(WO, 4), "m4"); addr_of(mall(WG, 14), "m14"); addr_of(touch3(WQ, 12, 1024), "t3q")
        w0, w1 = v_r8, v_b64
        e(f"""s_mul_i32 {t0}, {s_tb}, {32 * 272}
        s_add_u32 {t0}, {t0}, {16 * 272}
        v_and_b32 {u1}, 15, {v_l}
        v_mul_u32_u24 {u2}, 272, {u1}
        v_and_b32 {u0}, 48, {v_l}
        v_add_u32 {w1}, {u0}, {u2}
        v_add_u32 {w0}, {t0}, {w1}""")
        park("hm", w0); park("hhalo", w1)
        e(f"""v_lshlrev_b32 {w0}, 5, {u1}
        v_lshrrev_b32 {u2}, 4, {v_l}
        s_mul_i32 {t0}, {s_w}, 20
        v_add_u32 {u2}, {t0}, {u2}
        v_mul_u32_u24 {u2}, 272, {u2}
        s_lshr_b32 {t0}, {s_rx[0]}, 12
        v_xor_b32 {u3}, {t0}, {u1}
        v_lshl_add_u32 {w1}, {u3}, 4, {u2}""")
        park("cst", w0); park("hw", w1)
        e(f"""v_lshrrev_b32 {u0}, 4, {v_l}
        v_mul_u32_u24 {u0}, 3072, {u0}
        s_lshl_b32 {t1}, {s_tb}, 5
        v_xor_b32 {u2}, {t1}, {v_trn}
        s_lshl_b32 {t0}, {s_kh}, 8
        v_add3_u32 {w0}, {u2}, {u0}, {t0}
        s_and_b32 {t0}, s2, {NCOPY - 1}
        s_mul_i32 {t0}, {t0}, {GCOPY}
        s_add_u32 {t0}, {t0}, {WS_G}
        v_lshl_add_u32 {w1}, v0, 4, {t0}""")
        park("wq", w0); park("g1", w1)

        def deferred(f0, f1, f2, f3, f4):
            def pk(name, reg):
                parked[name] = A.alloc(1)
                return f"v_accvgpr_write_b32 {parked[name]}, {reg}"

            def t3(name, rows):
                return f"""s_lshl_b32 {t0}, {s_idx}, 2
                s_add_u32 {t0}, {t0}, {s_w}
                s_mul_i32 {t0}, {t0}, {rows * 1024}
                s_add_u32 {t0}, {t0}, 384
                v_lshl_add_u32 {f0}, {v_l}, 10, {t0}
                v_sub_u32 {f1}, {rows - 1}, {v_l}
                v_and_b32 {f1}, 0x80000000, {f1}
                v_or_b32 {f0}, {f0}, {f1}
                {pk(name, f0)}"""
            T = f"""s_and_b32 {t0}, s2, {NCOPY - 1}
            s_mul_i32 {t0}, {t0}, {GCOPY}
            s_lshl_b32 {t2}, {s_w}, 11
            s_lshl_b32 {t1}, {s_hg}, 8
            s_add_u32 {t1}, {t1}, {t0}
            s_add_u32 {t1}, {t1}, {t2}
            s_add_u32 {t1}, {t1}, {WS_G + 4096}
            v_and_b32 {f4}, 15, {v_l}
            v_lshl_add_u32 {f0}, {f4}, 4, {t1}
            {pk("g2", f0)}
            s_lshl_b32 {t0}, {s_g}, 6
            v_lshl_add_u32 {f0}, {f4}, 2, {t0}
            {pk("gx", f0)}
            {t3("t3o", 4)}
            {t3("t3d", 14)}
            s_sub_u32 {t1}, {s_TB}, {s_tb}
            s_lshl_b32 {t1}, {t1}, 5
            s_lshl_b32 {t2}, {s_w}, 4
            s_add_u32 {t1}, {t1}, {t2}
            v_lshrrev_b32 {f0}, 3, {v_l}
            v_add_u32 {f1}, {t1}, {f0}
            v_lshlrev_b32 {f1}, 10, {f1}
            v_and_b32 {f2}, 7, {v_l}
            v_lshlrev_b32 {f2}, 4, {f2}
            s_lshl_b32 {t1}, {s_hg}, 7
            v_add3_u32 {f1}, {f1}, {f2}, {t1}
            v_add_u32 {f0}, {t2}, {f0}
            v_mul_u32_u24 {f0}, 144, {f0}
            v_add_u32 {f0}, {f0}, {f2}
            {pk("xl", f1)}
            {pk("xw", f0)}
            s_lshl_b32 {t0}, {s_TB}, 5
            s_lshl_b32 {t1}, {s_hg}, 2
            s_add_u32 {t0}, {t0}, {t1}
            s_lshl_b32 {t1}, {s_kh}, 1
            s_add_u32 {t0}, {t0}, {t1}
            s_lshl_b32 {t0}, {t0}, 10
            s_add_u32 {s_tile}, {t0}, {WS_O}
            v_xor_b32 {f3}, {s_tb}, {v_hh}
            v_lshlrev_b32 {f0}, 9, {f3}
            v_bfe_u32 {f1}, {v_l}, 4, 1
            v_lshl_add_u32 {f0}, {f1}, 10, {f0}
            v_lshlrev_b32 {f1}, 4, {f4}
            v_add3_u32 {v_o}, {f0}, {f1}, {s_tile}
            s_lshl_b32 {t0}, {s_g}, 11
            s_add_u32 {t0}, {t0}, {WS_FLAGS}
            s_lshl_b32 {t1}, {s_w}, 9
            s_add_u32 {t0}, {t0}, {t1}
            v_lshl_add_u32 {f0}, {v_l}, 3, {t0}
            {pk("fpre", f0)}
            s_lshl_b32 {t0}, {s_TB}, 5
            v_add_u32 {f0}, {t0}, {v_t}
            v_lshlrev_b32 {f0}, 10, {f0}
            s_lshl_b32 {t0}, {s_hg}, 7
            s_lshl_b32 {t1}, {s_kh}, 6
            s_add_u32 {t0}, {t0}, {t1}
            v_lshlrev_b32 {f1}, 4, {v_hh}
            v_add3_u32 {f0}, {f0}, {f1}, {t0}
            {pk("xres", f0)}
            s_lshl_b32 {t0}, {s_g}, 2
            s_add_u32 {t0}, {t0}, {s_w}
            s_mul_i32 {t0}, {t0}, 112
            s_lshl_b32 {t1}, {s_m}, 3
            s_add_u32 {t0}, {t0}, {t1}
            s_lshl_b32 {t0}, {t0}, 10
            s_add_u32 {s_hh}, {t0}, {WS_HH}
            s_cmp_ge_u32 {s_m}, 14|s_cselect_b32 {s_hh}, 0x40000000, {s_hh}
            s_lshl_b32 {t0}, {s_tb}, 5
            s_add_u32 {t0}, {t0}, 2
            v_add_u32 {f2}, {t0}, {v_t}
            v_mul_u32_u24 {f0}, 144, {f2}
            v_mul_u32_u24 {f2}, 272, {f2}
            s_lshl_b32 {t1}, {s_kh}, 7
            s_lshl_b32 {t2}, {s_kh}, 6
            v_lshl_add_u32 {f0}, {f3}, 5, {f0}
            v_lshl_add_u32 {f2}, {f3}, 6, {f2}
            v_add_u32 {v_kr}, {t2}, {f0}
            v_add_u32 {v_vr}, {t1}, {f2}
            s_lshl_b32 {t0}, {s_tb}, 5
            s_add_u32 {t2}, {t2}, {t0}
            s_lshl_b32 {t1}, {t2}, 1
            v_mul_u32_u24 {f0}, 144, {f4}
            v_mul_u32_u24 {f2}, 272, {f4}
            v_and_b32 {f1}, 48, {v_l}
            v_add3_u32 {v_vh}, {f2}, {f1}, {t1}
            v_lshrrev_b32 {f1}, 1, {f1}
            v_add3_u32 {v_kh}, {f0}, {f1}, {t2}
            s_mul_i32 {t0}, {s_tb}, {32 * 144}
            s_add_u32 {t0}, {t0}, {16 * 144}
            v_add_u32 {v_kw[0]}, {t0}, {v_kh}
            s_mul_i32 {t0}, {s_tb}, {32 * 144 - 64}
            s_add_u32 {t0}, {t0}, {16 * 144 + 32}
            v_add_u32 {v_kw[1]}, {t0}, {v_kh}
            s_mul_i32 {t0}, {s_tb}, {32 * 272}
            s_add_u32 {t0}, {t0}, {16 * 272}
            v_add_u32 {v_vw[0]}, {t0}, {v_vh}
            s_mul_i32 {t0}, {s_tb}, {32 * 272 - 128}
            s_add_u32 {t0}, {t0}, {16 * 272 + 64}
            v_add_u32 {v_vw[1]}, {t0}, {v_vh}"""
            return [t.strip().replace("|", "\n") for t in T.split("\n") if t.strip()]
        V.release(v_r8, v_b64, v_c)
        run(xld2)
        late_ops2 = [lambda: run(late_ops)]
        self.stamp("iss")
        st = V.alloc(16)
        rm = V.alloc(4)

        def unpack_acc(i):
            L = []
            o = 8 * (i & 1)
            for ch in range(4):
                r = XN[i][ch]
                for j in range(3):
                    L.append(f"v_lshlrev_b32 {r[2 * j]}, 16, {r[4 + j]}")
                    L.append(f"v_and_b32 {r[2 * j + 1]}, 0xffff0000, {r[4 + j]}")
                L.append(f"v_lshlrev_b32 {r[6]}, 16, {r[7]}")
                L.append(f"v_and_b32 {r[7]}, 0xffff0000, {r[7]}")
                for j in range(4):
                    sm, sq = st.sub(o + 2 * (j & 1), 2), st.sub(o + 4 + 2 * (j & 1), 2)
                    p = r.sub(2 * j, 2)
                    if ch == 0 and j < 2:
                        L.append(f"v_pk_add_f32 {sm}, {p}, {r.sub(2 * j + 4, 2)}")
                        L.append(f"v_pk_mul_f32 {sq}, {p}, {p}")
                    else:
                        if ch:
                            L.append(f"v_pk_add_f32 {sm}, {sm}, {p}")
                        L.append(f"v_pk_fma_f32 {sq}, {p}, {p}, {sq}")
            return L

        def reduce_norm(i):
            o = 8 * (i & 1)
            sm, sq = st[o], st[o + 4]
            L = [f"v_pk_add_f32 {st.sub(o, 2)}, {st.sub(o, 2)}, {st.sub(o + 2, 2)}",
                 f"v_pk_add_f32 {st.sub(o + 4, 2)}, {st.sub(o + 4, 2)}, {st.sub(o + 6, 2)}",
                 f"v_add_f32 {sm}, {sm}, {st[o + 1]}", f"v_add_f32 {sq}, {sq}, {st[o + 5]}"]
            for ror in (8, 4, 2, 1):
                L.append(f"v_add_f32_dpp {sm}, {sm}, {sm} row_ror:{ror} row_mask:0xf bank_mask:0xf")
                L.append(f"v_add_f32_dpp {sq}, {sq}, {sq} row_ror:{ror} row_mask:0xf bank_mask:0xf")
            pr = rm.sub(2 * (i & 1), 2)
            L += self.finish_stats(sm, sq, pr[0], pr[1], 512)
            for ch in range(4):
                for j in range(4):
                    p = XN[i][ch].sub(2 * j, 2)
                    L.append(f"v_pk_fma_f32 {p}, {p}, {pr}, {pr} op_sel:[0,0,1] op_sel_hi:[1,0,1]")
            return L

        def ln_stage(i):
            a, b = (unpack_acc(i) if i < 5 else []), (reduce_norm(i - 1) if i else [])
            m = []
            while a or b:
                if a: m.append(a.pop(0))
                if a: m.append(a.pop(0))
                if b: m.append(b.pop(0))
            return m
        sv = xn_all.sub(160, 8)
        P = []
        P += [f"v_lshlrev_b32 {cv[i]}, 16, {cv[i]}" for i in range(4)]
        P += [f"v_mul_f32 {sv[2 * i]}, 0xbfb8aa3b, {cv[i]}" for i in range(4)]
        P += [f"v_exp_f32 {sv[2 * i]}, {sv[2 * i]}" for i in range(4)]
        P += [f"v_add_f32 {sv[2 * i]}, 1.0, {sv[2 * i]}" for i in range(4)]
        P += [f"v_rcp_f32 {sv[2 * i]}, {sv[2 * i]}" for i in range(4)]
        P += [f"v_mul_f32 {sv[2 * i]}, {cv[i]}, {sv[2 * i]}" for i in range(4)]
        P += [self.bf16r(sv[2 * i], sv[2 * i])[0] for i in range(4)] + [self.bf16r(sv[2 * i], sv[2 * i])[1] for i in range(4)]
        P.append(lambda: self.stamp("silu"))
        pa = xn_all.sub(168, 8)
        wf = xn_all.sub(176, 8)
        for i in range(4):
            if i == 1:
                P.append(lambda: self.stamp("w0"))
            for j in range(4):
                P.append(f"v_lshlrev_b32 {wf[2 * j]}, 16, {wmv[4 * i + j]}")
                P.append(f"v_and_b32 {wf[2 * j + 1]}, 0xffff0000, {wmv[4 * i + j]}")
            for j in range(4):
                if i == 0:
                    P.append(f"v_pk_mul_f32 {pa.sub(2 * j, 2)}, {wf.sub(2 * j, 2)}, {sv.sub(0, 2)} op_sel_hi:[1,0]")
                else:
                    P.append(f"v_pk_fma_f32 {pa.sub(2 * j, 2)}, {wf.sub(2 * j, 2)}, {sv.sub(2 * i, 2)}, {pa.sub(2 * j, 2)} op_sel_hi:[1,0,1]")
        P.append(lambda: self.stamp("w3"))
        P += [f"v_and_b32 {u0}, 7, {v_l}", f"v_lshlrev_b32 {u0}, 5, {u0}"]
        P += [f"v_permlane32_swap_b32 {pa[j]}, {pa[j + 4]}" for j in range(4)]
        P += [f"v_add_f32 {pa[j]}, {pa[j]}, {pa[j + 4]}" for j in range(4)]
        P += [f"v_lshrrev_b32 {u1}, 4, {v_l}"]
        P += [f"v_permlane16_swap_b32 {pa[j]}, {pa[j + 2]}" for j in range(2)]
        P += [f"v_add_f32 {pa[j]}, {pa[j]}, {pa[j + 2]}" for j in range(2)]
        P += [f"v_lshl_add_u32 {u0}, {u1}, 3, {u0}", f"s_lshl_b32 {t0}, {s_w}, 8"]
        P += [f"v_add_f32_dpp {pa[j]}, {pa[j]}, {pa[j]} row_ror:8 row_mask:0xf bank_mask:0xf" for j in range(2)]
        P += [f"v_add_u32 {u0}, {t0}, {u0}", f"ds_write_b64 {u0}, {pa.sub(0, 2)} offset:{L_PART}"]
        s_tb4 = [sa() for _ in range(4)]
        pre_txt = []
        rec = e.out
        n0 = len(e.out)
        keep = (e.vm_issued, e.vm_done, list(e.hist), e.n_ins)
        for _ in range(c.n_pre):
            m = len(e.out)
            assert self.dma_step()
            pre_txt.append("\n".join(o.text for o in e.out[m:]))
        del e.out[n0:]
        e.vm_issued, e.vm_done, e.hist, e.n_ins = keep
        for u in UQ:
            if u.tok:
                u.tok = 0

        def p0(bg, rate):
            bg = self.interleave(P, bg, rate)
            pub()
            return bg

        def pub():
            e.wait_all_lg()
            e(f"""s_mul_i32 {s_tag}, {s_tag}, 0x9E3779B1
            s_add_u32 {s_tag}, {s_tag}, 0x7F4A7C18
            s_and_b32 {s_tag}, {s_tag}, 0xFFFFFFF8
            v_mov_b32 {self.v_tag}, {s_tag}
            s_lshr_b32 {s_tb4[0]}, {s_tag}, 3
            s_lshr_b32 {s_tb4[1]}, {s_tag}, 10
            s_lshr_b32 {s_tb4[2]}, {s_tag}, 17
            s_lshr_b32 {s_tb4[3]}, {s_tag}, 24""")
            self.stamp("tag")
            e.wait(vm=tok_init)
            self.barrier()
            Lsk = e.newlabel("Lnot0")
            e(f"s_cmp_lg_u32 {s_w}, 0")
            e(f"s_cbranch_scc1 {Lsk}")
            e.begin_cond(allow_lg=True)
            e.optional += 1
            e(f"""v_and_b32 {u0}, 15, {v_l}
            v_lshlrev_b32 {u1}, 4, {u0}""")
            pw = wmv
            for k in range(4):
                e(f"ds_read_b128 {pw.sub(4 * k, 4)}, {u1} offset:{L_PART + 256 * k}")
            e(f"""v_lshrrev_b32 {u2}, 4, {v_l}
            v_mul_u32_u24 {u2}, {GCOPY}, {u2}
            s_lshl_b32 {t0}, {s_col0}, 8
            s_and_b32 {t1}, {s_idx}, 3
            s_mul_i32 {t1}, {t1}, {GQ}
            s_add_u32 {t0}, {t0}, {t1}
            s_add_u32 {t0}, {t0}, {WS_G}
            v_add3_u32 {u2}, {u2}, {u1}, {t0}
            v_mov_b32 {u0}, 0xff""")
            for h in range(2):
                e(f"v_pk_add_f32 {pw.sub(2 * h, 2)}, {pw.sub(2 * h, 2)}, {pw.sub(4 + 2 * h, 2)}")
                e(f"v_pk_add_f32 {pw.sub(8 + 2 * h, 2)}, {pw.sub(8 + 2 * h, 2)}, {pw.sub(12 + 2 * h, 2)}")
            for h in range(2):
                e(f"v_pk_add_f32 {pw.sub(2 * h, 2)}, {pw.sub(2 * h, 2)}, {pw.sub(8 + 2 * h, 2)}")
            for k in range(4):
                e(f"v_bfi_b32 {pw[k]}, {u0}, {s_tb4[k]}, {pw[k]}")
            e(f"s_cmp_ge_u32 {s_idx}, 24")
            Lnp = e.newlabel("Lnopub")
            e(f"s_cbranch_scc1 {Lnp}")
            e(f"buffer_store_dwordx4 {pw.sub(0, 4)}, {u2}, {WS}, 0 offen sc1")
            e.label(Lnp)
            e(f"""s_getreg_b32 {t0}, hwreg(HW_REG_XCC_ID)
            s_and_b32 {t0}, {t0}, 7
            s_or_b32 {t0}, {t0}, {s_tag}
            v_mov_b32 {u0}, {t0}
            s_lshl_b32 {t1}, {s_g}, 4
            s_add_u32 {t1}, {t1}, {s_m}
            s_lshl_b32 {t1}, {t1}, 2
            v_mov_b32 {u1}, {t1}
            s_mov_b64 exec, 1
            buffer_store_dword {u0}, {u1}, {WS}, 0 offen offset:{WS_XID} sc1
            s_mov_b64 exec, -1""")
            e.optional -= 1
            e.end_cond(Lsk)
            e.wait_all_lg()

        def t3q():
            if c.t3 & 1:
                e(unpark("t3q", u0))
                e(f"buffer_load_dword {a_dummy[0]}, {u0}, {WQ}, 0 offen", track=False)

        def ln(i, bg, rate):
            L = ln_stage(i)
            e(L[0])
            bg = self.interleave(L[1:], bg, rate)
            self.stamp(f"x{i}")
            return bg
        bg = list(xld)
        for i in range(c.nq_k):
            bg = ln(i, bg, c.x_rate0)
        bg = p0(bg, c.x_rate)
        self.stamp("pub")
        run(bg)
        bg = list(late_ops2) + [t3q] + list(pre_txt)
        for i in range(c.nq_k, 6):
            bg = ln(i, bg, c.pre_rate)
        run(bg)
        V.release(cv, wmv, v_x, v_wm)
        V.release(st, rm)
        v_cst, v_hw, v_hm, v_hhalo = V.alloc(), V.alloc(), V.alloc(), V.alloc()
        v_wq, v_w1 = V.alloc(3, align=1), V.alloc(3, align=1)
        run([unpark("cst", v_cst), unpark("hw", v_hw), unpark("hm", v_hm), unpark("hhalo", v_hhalo), unpark("wq", v_wq[0])])
        e(f"v_xor_b32 {v_w1[0]}, 32, {v_wq[0]}")
        for k in (1, 2):
            e(f"v_add_u32 {v_wq[k]}, {k * WIN}, {v_wq[0]}")
            e(f"v_add_u32 {v_w1[k]}, {k * WIN}, {v_w1[0]}")
        self.stamp("ln1")
        gq = V.alloc(16)
        s_q = [Reg('s', 3, 1), Reg('s', 0, 1), Reg('s', 1, 1)]
        for k in range(3):
            e(f"s_mov_b32 {s_q[k]}, {(k + 1) * GQ}")

        def g_loads(r, ad):
            return [f"buffer_load_dwordx4 {r.sub(4 * k, 4)}, {ad}, {WS}, {s_q[k - 1] if k else 0} offen sc1" for k in range(4)]

        def g_check(r, a, b):
            L = [f"v_xor_b32 {a}, {s_tb4[0]}, {r[0]}", f"v_xor_b32 {b}, {s_tb4[1]}, {r[1]}"]
            for k in range(2, 16):
                d = (a, b)[k & 1]
                L.append(f"v_bitop3_b32 {d}, {r[k]}, {s_tb4[k & 3]}, {d} bitop3:0xbe")
            L += [f"v_or_b32 {a}, {a}, {b}", f"v_and_b32 {a}, 0xff, {a}"]
            return L

        def g_sum(r, packed):
            L = [f"v_and_b32 {r[k]}, 0xffffff00, {r[k]}" for k in range(16)]
            for x, y in ((0, 4), (8, 12), (0, 8)):
                if packed:
                    L += [f"v_pk_add_f32 {r.sub(x + 2 * h, 2)}, {r.sub(x + 2 * h, 2)}, {r.sub(y + 2 * h, 2)}" for h in range(2)]
                else:
                    L += [f"v_add_f32 {r[x + h]}, {r[x + h]}, {r[y + h]}" for h in range(4)]
            L += [f"v_cvt_pk_bf16_f32 {r[0]}, {r[0]}, {r[1]}", f"v_cvt_pk_bf16_f32 {r[2]}, {r[2]}, {r[3]}"]
            return L
        run([unpark("g1", u1), f"v_lshlrev_b32 {u0}, 4, v0"])
        TO = L_TBL
        if c.h_full:
            TO = L_TBL - WIN
            v_hm2, v_hh2 = V.alloc(), V.alloc()
            e(f"""v_add_u32 {u0}, {WIN}, {u0}
            v_add_u32 {v_cst}, {WIN}, {v_cst}
            v_add_u32 {v_hm2}, {2 * HB}, {v_hm}
            v_add_u32 {v_hh2}, {2 * HB}, {v_hhalo}""")
        self.poll(g_loads(gq, u1), [], pre=g_check(gq, u2, u3) + [f"v_cmp_ne_u32 vcc, 0, {u2}"])
        self.stamp("mod")
        self.exp_delay("mod")
        self.bg_on(c.post_every, limit=[UQ[7]], stage=False)
        tv = V.alloc(4)

        def unp(d, a, b):
            return f"""v_lshlrev_b32 {d[0]}, 16, {a}
            v_and_b32 {d[1]}, 0xffff0000, {a}
            v_lshlrev_b32 {d[2]}, 16, {b}
            v_and_b32 {d[3]}, 0xffff0000, {b}"""
        run(g_sum(gq, True))
        e(unp(tv, gq[0], gq[2]))
        Lno = e.newlabel("Lnoa")
        e(f"s_cmp_lt_u32 {s_w}, 2")
        e(f"s_cbranch_scc1 {Lno}")
        e.begin_cond()
        e(f"""v_pk_add_f32 {tv.sub(0, 2)}, {tv.sub(0, 2)}, 1.0 op_sel_hi:[1,0]
        v_pk_add_f32 {tv.sub(2, 2)}, {tv.sub(2, 2)}, 1.0 op_sel_hi:[1,0]
        v_cvt_pk_bf16_f32 {gq[0]}, {tv[0]}, {tv[1]}
        v_cvt_pk_bf16_f32 {gq[2]}, {tv[2]}, {tv[3]}""")
        e(unp(tv, gq[0], gq[2]))
        e.end_cond(Lno)
        tok_tbl = e(f"ds_write_b128 {u0}, {tv} offset:{TO}")
        self.barrier(lg=tok_tbl)
        cst = V.alloc(16)
        cst1 = xn_all.sub(160, 16)

        def cst_reads(ch, r):
            return [f"ds_read_b128 {r.sub(0, 4)}, {v_cst} offset:{TO + 512 * ch}",
                    f"ds_read_b128 {r.sub(8, 4)}, {v_cst} offset:{TO + 2048 + 512 * ch}",
                    f"ds_read_b128 {r.sub(4, 4)}, {v_cst} offset:{TO + 512 * ch + 16}",
                    f"ds_read_b128 {r.sub(12, 4)}, {v_cst} offset:{TO + 2048 + 512 * ch + 16}"]

        def apply_valu(ch, i, r, packed):
            L = []
            for j in range(4):
                p = XN[i][ch].sub(2 * j, 2)
                if packed:
                    L.append(f"v_pk_fma_f32 {p}, {p}, {r.sub(8 + 2 * j, 2)}, {r.sub(2 * j, 2)}")
                else:
                    for h in range(2):
                        L.append(f"v_fma_f32 {p[h]}, {p[h]}, {r[8 + 2 * j + h]}, {r[2 * j + h]}")
            for j in range(4):
                L.append(f"v_cvt_pk_bf16_f32 {XN[i][ch][j]}, {XN[i][ch][2 * j]}, {XN[i][ch][2 * j + 1]}")
            return L

        wtok = {}

        def apply_write(ch, i):
            def f():
                if LH[ch] > 60000:
                    if i == 0:
                        e(f"v_add_u32 {v_hw}, {2 * HB}, {v_hw}")
                    wtok[ch] = e(f"ds_write_b128 {v_hw}, {XN[i][ch].sub(0, 4)} offset:{LH[ch] - 2 * HB + i * 4 * 272}")
                    return
                wtok[ch] = e(f"ds_write_b128 {v_hw}, {XN[i][ch].sub(0, 4)} offset:{LH[ch] + i * 4 * 272}")
            f.solo = True
            return f

        npre_ch = c.pre_chunks
        a_xr = A.alloc(8)

        def bgl(name, *loads):
            L = []
            for k, (t, trk) in enumerate(loads):
                L.append(lambda t=t, trk=trk, k=k: ((e(unpark(name, u0)) if name and k == 0 else None), e(t, track=trk)))
            return L
        tch = lambda srd: (f"buffer_load_dword {a_dummy[0]}, {u0}, {srd}, 0 offen", False)
        qhi = []

        def make_bg():
            pf = (bgl("m4", tch(WO)) + bgl("m14", tch(WG), tch(WU), tch(WD))) if c.mall_pf == 2 else []
            pf.append(lambda: e(f"s_cmp_ge_u32 {s_m}, 14\ns_cselect_b32 s18, 0, s18\ns_cselect_b32 s22, 0, s22"))
            if c.t3 & 2:
                pf += bgl("t3o", tch(WO))
            misc = bgl("xl", (f"buffer_load_dwordx4 {a_xr.sub(0, 4)}, {u0}, {X}, 0 offen", True),
                       (f"s_mov_b32 {t3}, 8192\nbuffer_load_dwordx4 {a_xr.sub(4, 4)}, {u0}, {X}, {t3} offen", True))
            if c.preread:
                misc += bgl(None, *[(f"buffer_load_dwordx4 {a_dummy}, {v_l16}, {WS}, {s_tile} offen offset:{1024 * k} sc1", False) for k in range(2)])
                misc += bgl("fpre", (f"buffer_load_dword {a_dummy[0]}, {u0}, {WS}, 0 offen sc1", False))
            if c.hh_fast == 2:
                misc += bgl("l128", (f"buffer_load_dword {a_dummy[0]}, {u0}, {WS}, {s_hh} offen sc1", False))
            if c.hh_fast == 1:
                misc += [lambda: (e(unpark("l128", u0)), e(f"v_or_b32 {u0}, 4096, {u0}"),
                                  e(f"buffer_load_dword {a_dummy[0]}, {u0}, {WS}, {s_hh} offen sc1", track=False))]
            def hh_init(k):
                def f():
                    e(f"s_add_u32 {t3}, {s_hh}, {(k >> 2) * 4096}")
                    hinit["tok"] = e(f"buffer_store_dwordx4 {a_ones}, {v_l16}, {WS}, {t3} offen offset:{1024 * (k & 3)} sc1")
                return f
            marks = [hh_init(k) for k in range(8) if c.sent & (1 << (k >> 2))]
            qhi.extend((pf + misc + marks) if c.pf_first else (misc + pf + marks))

        run(cst_reads(0, cst) + (cst_reads(1, cst1) if npre_ch > 1 else []))
        V.release(gq, tv)
        v_kh, v_vh, v_kr, v_vr, v_o = [V.alloc() for _ in range(5)]
        v_kw, v_vw = V.alloc(2, align=1), V.alloc(2, align=1)
        dfr = deferred(*[xn_all[16 + k] for k in range(5)])
        make_bg()
        assert c.pf_first and c.bg_n <= 5 and c.q_hi0 >= 12 and c.st_g2 >= 6 and not c.sent and not c.hh_fast
        nt = 0
        for ch in range(npre_ch):
            for i in range(5):
                if c.bg_early and nt % c.bg_early == 0 and qhi and nt // c.bg_early < c.bg_n:
                    qhi.pop(0)()
                nt += 1
                run(apply_valu(ch, i, (cst, cst1)[ch & 1], True))
                apply_write(ch, i)()
            if ch + 2 < npre_ch:
                run(cst_reads(ch + 2, (cst, cst1)[ch & 1]))
            elif npre_ch < 4 and ch == (npre_ch - 1) // 2 * 2:
                run(cst_reads(npre_ch, cst))
        if npre_ch < 4:
            for i in range(c.pre_tiles):
                run(apply_valu(npre_ch, i, cst, True))
        accQ, accS1, accS2, accH = [xn_all.sub(120 + 16 * k, 16) for k in range(4)]
        fr = [[A.alloc(4) for _ in range(9)] for _ in range(2)]
        steps = []
        for s in range(32):
            u, sl = s // 2, s % 2
            ch = s // 8
            f = fr[u & 1]

            def reads(u=u, sl=sl, ch=ch, f=f):
                L = []
                hb = LH[ch] - (0 if LH[ch] < 44000 else 2 * HB) + 64 * (u & 3)
                hm, hl_ = (v_hm, v_hhalo) if LH[ch] < 44000 else (v_hm2, v_hh2)
                for k, mat in enumerate((1, 2, 0)):
                    if sl == 0:
                        L.append(f"ds_read_b128 {f[k]}, {hm if k < 2 else hl_} offset:{hb + (16 * 272 if k == 1 else 0)}")
                    for rd in range(2):
                        wi, o = divmod(UQ[u].addr + mat * 1024 + rd * 512, WIN)
                        L.append(f"ds_read_b64_tr_b16 {f[3 + 3 * sl + k].sub(2 * rd, 2)}, {(v_wq, v_w1)[sl][wi]} offset:{o}")
                return L
            mf = []
            for k, acc in enumerate((accS1, accS2, accQ)):
                for a in range(3 if (sl == 0 and k < 2) else 2):
                    ac = acc.sub(8 * sl + 4 * a, 4) if a < 2 else accH.sub(4 * k, 4)
                    mf.append(f"v_mfma_f32_16x16x32_bf16 {ac}, {f[3 + 3 * sl + k]}, {f[a]}, {'0' if u == 0 else ac}")
            d = dict(reads=reads, mfmas=mf, units=[UQ[u]], slots=c.q_slots, fslots=c.q_fill, rscale=4 / 7)
            if s % c.q_span == 0:
                d["bar"] = True
                d["span"] = c.q_span
                if s % 8 == 0:
                    d["lg"] = (lambda ch=ch: wtok[max(ch, npre_ch - 1)])
            steps.append(d)
        if c.h_full:
            def region(a, n):
                u = Unit("reg", n, [])
                u.addr = a
                return u
            steps[0]["release"] = [region(L_TBL, 4096)] if npre_ch == 4 else []
            steps[12]["release"] = [region(LH[0], HB)]
            steps[20]["release"] = [region(LH[1], HB - 80 * 144)]
            if npre_ch < 4:
                steps[28]["release"] = [region(L_TBL, 4096)]
        mk = Mark()
        fill = list(dfr) + [mk]
        steps[c.q_hi0].setdefault("pre", []).append(lambda: self.drain_to(fill, mk))
        for ch in range(npre_ch, 4):
            gate, mark = Gate(), Mark()
            first = c.pre_tiles if ch == npre_ch else 0
            held = [apply_write(ch, i) for i in range(first)]
            for i in range(first, 5):
                fill += apply_valu(ch, i, cst, False)
                held.append(apply_write(ch, i))
                if i >= 1:
                    if gate not in fill:
                        fill.append(gate)
                    if i == 4 and ch + 1 < 4:
                        fill += cst_reads(ch + 1, cst)
                    fill += held
                    held = []
            fill += [mark]
            if ch == 1 or c.h_full:
                gate.open()
            else:
                steps[8 * (ch - 1) + 4]["postbar"] = gate.open
            steps[8 * ch]["prebar"] = (lambda mark=mark: self.drain_to(fill, mark))
        g2, gx, tw, tv = xn_all.sub(0, 16), V.alloc(2), V.alloc(4), V.alloc(4)
        assert npre_ch == 4
        ga2, gax = V.alloc(), V.alloc()
        g2ld = g_loads(g2, ga2) + [f"buffer_load_dword {gx[0]}, {gax}, {WS}, 0 offen offset:{WS_XID} sc1"]
        g2ck = g_check(g2, tw[0], tw[1]) + [f"v_and_b32 {gx[1]}, -8, {gx[0]}", f"v_xor_b32 {gx[1]}, {gx[1]}, {self.v_tag}",
                                            f"v_or_b32 {tw[0]}, {tw[0]}, {gx[1]}", f"v_cmp_ne_u32 vcc, 0, {tw[0]}"]

        def g2check():
            Ls, Lb = e.newlabel("Lretry"), e.newlabel("Lback")
            e(g2ck[-1])
            e(f"s_cbranch_vccnz {Ls}")
            e.label(Lb)
            self.ool.append(f"{Ls}:\n    s_mov_b32 {self.s_spin}, 0\n{Ls}_1:\n    s_add_u32 {self.s_spin}, {self.s_spin}, 1\n"
                            f"    s_cmp_gt_u32 {self.s_spin}, {c.spin}\n    s_cbranch_scc1 Lexit\n" + "".join(f"    {t}\n" for t in g2ld) +
                            "    s_waitcnt vmcnt(0)\n" + "".join(f"    {t}\n" for t in g2ck) + f"    s_cbranch_vccnz {Ls}_1\n    s_branch {Lb}\n")
        gG, gC = Gate(), Gate()
        steps[c.st_g2].setdefault("pre", []).append(gG.open)
        steps[c.st_g2 + 8].setdefault("pre", []).append(gC.open)
        fill += [gG, unpark("g2", ga2), unpark("gx", gax)] + g2ld + [gC] + g2ck[:-1] + [g2check] + g_sum(g2, False)
        if c.preread:
            fill += bgl(None, (f"buffer_load_dword {a_dummy[0]}, {v_l16}, {WS}, {s_st} offen sc1", False))
        fill += [t.strip() for t in unp(tw, g2[0], g2[2]).split("\n")]
        fill += [f"s_cmp_eq_u32 {s_w}, 2\ns_cselect_b32 {t0}, 1.0, 0"] + [f"v_add_f32 {tv[k]}, {t0}, {tw[k]}" for k in range(4)]
        fill += [f"v_cvt_pk_bf16_f32 {g2[0]}, {tv[0]}, {tv[1]}", f"v_cvt_pk_bf16_f32 {g2[2]}, {tv[2]}, {tv[3]}"]
        fill += [t.strip() for t in unp(tw, g2[0], g2[2]).split("\n")]
        fill += [f"v_and_b32 {gx[1]}, 15, {v_l}", f"s_lshl_b32 {t0}, {s_w}, 8", f"v_lshl_add_u32 {gx[1]}, {gx[1]}, 4, {t0}"]
        fill += [f"ds_write_b128 {gx[1]}, {tw} offset:{L_TBL2}",
                 f"s_getreg_b32 {t0}, hwreg(HW_REG_XCC_ID)", f"s_and_b32 {t0}, {t0}, 7", f"s_or_b32 {t0}, {t0}, {s_tag}",
                 f"v_cmp_ne_u32 vcc, {t0}, {gx[0]}\ns_nop 1\ns_cmp_eq_u64 vcc, 0\ns_cselect_b32 {self.s_mode}, {0 if c.force_slow else 1}, 0"]
        self.bg_off()
        self.loop_prologue(steps)
        self.stamp("p1s")
        self.lname = "Q"
        self.mfma_loop(steps, fill, lambda i, h: (c.q_hi if i >= c.q_hi0 else 0, c.q_dma if c.q_dma0 <= i < c.q_dma1 else 0, c.q_stage), hi=qhi)
        self.drain_to(fill, None)
        run(qhi)
        self.stamp("p1e")
        S.release(*s_tb4, s_col0, s_w3k)
        V.release(cst, v_cst, v_hw, v_hm, v_hhalo, v_wq, v_w1, gx, tw, tv, ga2, gax)
        if c.h_full:
            V.release(v_hm2, v_hh2)
        for f in fr:
            A.release(*f)
        lg = V.alloc(16)
        kp = xn_all.sub(0, 16)

        for sl in range(2):
            for a in range(2):
                e(f"ds_write_b128 {v_vw[sl]}, {accS2.sub(8 * sl + 4 * a, 4)} offset:{L_V + a * 16 * 272}")
                for h in range(2):
                    e(f"v_cvt_pk_bf16_f32 {kp[4 * sl + 2 * a + h]}, {accS1[8 * sl + 4 * a + 2 * h]}, {accS1[8 * sl + 4 * a + 2 * h + 1]}")
        e(f"ds_write_b128 {v_vh}, {accH.sub(4, 4)} offset:{L_V}")
        for h in range(2):
            e(f"v_cvt_pk_bf16_f32 {kp[8 + h]}, {accH[2 * h]}, {accH[2 * h + 1]}")
        qp = xn_all.sub(16, 8)
        for sl in range(2):
            for a in range(2):
                e(f"ds_write_b64 {v_kw[sl]}, {kp.sub(4 * sl + 2 * a, 2)} offset:{L_K + a * 16 * 144}")
                for h in range(2):
                    e(f"v_cvt_pk_bf16_f32 {qp[4 * sl + 2 * a + h]}, {accQ[8 * sl + 4 * a + 2 * h]}, {accQ[8 * sl + 4 * a + 2 * h + 1]}")
        e(f"ds_write_b64 {v_kh}, {kp.sub(8, 2)} offset:{L_K}")
        for j in range(4):
            e(f"v_permlane32_swap_b32 {qp[j]}, {qp[4 + j]}")
        for b in range(2):
            for h in range(2):
                e(f"v_permlane16_swap_b32 {qp[4 * b + h]}, {qp[4 * b + 2 + h]}")
        e._push(Ins("s_waitcnt lgkmcnt(0)"))
        e.lg_done = e.lg_issued
        self.barrier(ready=[] if c.uo_late else UO, release=UQ + ([region(LH[3], HB)] if c.h_full else []))
        self.stamp("kv")
        for k in range(c.exp_dirty):
            e(f"s_lshl_b32 {t0}, s2, 2\ns_add_u32 {t0}, {t0}, {s_w}\ns_mul_i32 {t0}, {t0}, {c.exp_dirty * 1024}\ns_add_u32 {t0}, {t0}, {0x1000000 + k * 1024}")
            e(f"buffer_store_dwordx4 {a_ones}, {v_l16}, {WS}, {t0} offen{c.exp_dfl.replace('_', ' ')}")
        self.bg_on(c.att_every, limit=[UG[c.n_dir - 1]], nmax=c.att_n)
        V.release(v_kh, v_vh, v_kw, v_vw)
        kb = [accS1.sub(0, 8), accS1.sub(8, 8), accS2.sub(0, 8), accS2.sub(8, 8), accH.sub(0, 8), accH.sub(8, 8), kp.sub(0, 8), kp.sub(8, 8)]
        vb = [xn_all.sub(24 + 16 * k, 16) for k in range(6)] + [accS1, accS2]

        def kread(wd):
            return [f"ds_read_b128 {kb[wd].sub(4 * h, 4)}, {v_kr} offset:{L_K + (14 - 2 * wd) * 144 + 16 * h}" for h in range(2)]

        def vread(wd):
            return [f"ds_read_b128 {vb[wd].sub(4 * dq, 4)}, {v_vr} offset:{L_V + (14 - 2 * wd) * 272 + 16 * dq}" for dq in range(4)]

        def qk(ws):
            L = []
            for j in range(8):
                for wd in ws:
                    L.append(f"v_dot2_f32_bf16 {lg[2 * wd]}, {qp[j]}, {kb[wd][j]}, {'0' if j == 0 else lg[2 * wd]}")
            return L
        for wd in range(7):
            run(kread(wd))
        self.interleave(qk((0, 1, 2, 3)), kread(7) + vread(0) + vread(1) + vread(2)[:2], 0.4)
        self.interleave(qk((4, 5, 6, 7)), vread(2)[2:] + vread(3) + vread(4) + vread(5)[:2], 0.4)
        Lnm = e.newlabel("Lnomask")
        e(f"s_cmp_lg_u32 {s_TB}, 0")
        e(f"s_cbranch_scc1 {Lnm}")
        e.begin_cond()
        e(f"v_mov_b32 {u0}, 0x{f2u(-4e9):08x}")
        for wd in range(1, 8):
            e(f"v_cmp_gt_u32 vcc, {2 * wd}, {v_t}")
            e(f"v_cndmask_b32 {lg[2 * wd]}, {lg[2 * wd]}, {u0}, vcc")
        e.end_cond(Lnm)
        mx = lg[1]
        SM = [f"s_mov_b32 {t0}, 0x{f2u(0.25 * math.log2(math.e)):08x}",
              f"v_max3_f32 {mx}, {lg[0]}, {lg[2]}, {lg[4]}",
              f"v_max3_f32 {lg[3]}, {lg[6]}, {lg[8]}, {lg[10]}",
              f"v_max3_f32 {mx}, {mx}, {lg[12]}, {lg[14]}",
              f"v_max_f32 {mx}, {mx}, {lg[3]}",
              f"v_mul_f32 {mx}, {t0}, {mx}"]
        SM += [f"v_fma_f32 {lg[2 * wd]}, {lg[2 * wd]}, {t0}, -{mx}" for wd in range(8)]
        SM += [f"v_exp_f32 {lg[2 * wd]}, {lg[2 * wd]}" for wd in range(8)]
        self.interleave(SM, vread(5)[2:] + vread(6) + vread(7), 0.6)
        ov = accQ
        SUM = f"""v_add_f32 {lg[1]}, {lg[0]}, {lg[2]}
        v_add_f32 {lg[3]}, {lg[4]}, {lg[6]}
        v_add_f32 {lg[5]}, {lg[8]}, {lg[10]}
        v_add_f32 {lg[7]}, {lg[12]}, {lg[14]}
        v_add_f32 {lg[1]}, {lg[1]}, {lg[3]}
        v_add_f32 {lg[5]}, {lg[5]}, {lg[7]}
        v_add_f32 {lg[1]}, {lg[1]}, {lg[5]}
        v_rcp_f32 {lg[1]}, {lg[1]}""".split("\n")
        PV = []
        for wd in range(8):
            for j in range(8):
                p = ov.sub(2 * j, 2)
                if wd == 0:
                    PV.append(f"v_pk_mul_f32 {p}, {vb[wd].sub(2 * j, 2)}, {lg.sub(0, 2)} op_sel_hi:[1,0]")
                else:
                    PV.append(f"v_pk_fma_f32 {p}, {vb[wd].sub(2 * j, 2)}, {lg.sub(2 * wd, 2)}, {p} op_sel_hi:[1,0,1]")
        self.interleave(PV, SUM, 0.25)
        ob = lg.sub(8, 8)
        for j in range(8):
            p = ov.sub(2 * j, 2)
            e(f"v_pk_mul_f32 {p}, {p}, {lg.sub(0, 2)} op_sel:[0,1] op_sel_hi:[1,1]")
        self.bg_off()
        for j in range(8):
            e(f"v_cvt_pk_bf16_f32 {ob[j]}, {ov[2 * j]}, {ov[2 * j + 1]}")
        self.stamp("att")
        tok = self.store2([f"buffer_store_dwordx4 {ob.sub(0, 4)}, {v_o}, {WS}, 0 offen" + "{f}",
                           f"buffer_store_dwordx4 {ob.sub(4, 4)}, {v_o}, {WS}, 0 offen offset:256" + "{f}"])
        V.release(xn_all, v_kr, v_vr, v_o)
        ga, gB, gs, gb = [V.alloc(8) for _ in range(4)]
        x1 = V.alloc(16)
        v_pf = V.alloc()
        v_s = [[V.alloc(3, align=1) for _ in range(2)] for _ in range(2)]
        v_act, v_red = V.alloc(), V.alloc()
        e(f"""v_and_b32 {u0}, 48, {v_l}
        s_lshl_b32 {t0}, {s_kh}, 7
        v_add_u32 {u0}, {t0}, {u0}""")
        for vec, r in ((0, ga), (1, gs), (2, gB), (3, gb)):
            for j in range(2):
                e(f"ds_read_b128 {r.sub(4 * j, 4)}, {u0} offset:{L_TBL2 + 256 * vec + 64 * j}")
        e(f"""v_and_b32 {u1}, 7, {v_l}
        v_lshlrev_b32 {u1}, 2, {u1}
        s_lshl_b32 {t0}, {s_kh}, 5
        s_add_u32 {t0}, {t0}, {s_flb}
        v_add_u32 {v_pf}, {t0}, {u1}
        s_lshr_b32 {s_rx[1]}, {s_mo}, 4""")

        def wbases(sh_hi, sh_lo):
            e(f"""v_bfe_u32 {u1}, {v_l}, 4, 1
            v_lshl_add_u32 {u0}, {u1}, {sh_lo}, {v_trn}
            v_lshl_add_u32 {u0}, {v_hh}, {sh_hi}, {u0}
            s_lshl_b32 {t0}, {s_kh}, 11
            s_lshl_b32 {t1}, {s_kh}, 8
            s_add_u32 {t2}, {t0}, {t1}
            v_add_u32 {v_s[0][0][0]}, {t2}, {u0}
            s_sub_u32 {t2}, {t0}, {t1}
            s_add_u32 {t2}, {t2}, 256
            v_add_u32 {v_s[1][0][0]}, {t2}, {u0}""")
            for sl in range(2):
                e(f"v_xor_b32 {v_s[sl][1][0]}, 32, {v_s[sl][0][0]}")
                for par in range(2):
                    for k in (1, 2):
                        e(f"v_add_u32 {v_s[sl][par][k]}, {k * WIN}, {v_s[sl][par][0]}")
        wbases(12, 10)
        e(f"""s_lshl_b32 {t0}, {s_TB}, 5
        s_lshl_b32 {t1}, {s_kh}, 4
        s_add_u32 {t0}, {t0}, {t1}
        s_lshl_b32 {t0}, {t0}, 10
        s_add_u32 {t0}, {t0}, {WS_O}
        v_add_u32 {v_act}, {t0}, {v_l16}
        v_add_u32 {v_red}, {s_w1k}, {v_l16}
        v_lshlrev_b32 {v_red}, 2, {v_red}
        v_mul_u32_u24 {u0}, 48, {v_l}
        v_sub_u32 {v_red}, {v_red}, {u0}""")
        e(f"""v_and_b32 {u1}, 15, {v_l}
        v_mul_u32_u24 {u1}, 144, {u1}
        s_mul_i32 {t0}, {s_tb}, {32 * 144}
        s_lshl_b32 {t1}, {s_kh}, 6
        s_add_u32 {t0}, {t0}, {t1}
        v_lshrrev_b32 {u2}, 4, {v_l}
        v_lshlrev_b32 {u2}, 3, {u2}
        v_add3_u32 {u2}, {u1}, {u2}, {t0}""")
        v_w16 = V.alloc(3, align=1)
        e(f"v_add_u32 {v_w16[0]}, {s_w1k}, {v_l16}")
        for k in (1, 2):
            e(f"v_add_u32 {v_w16[k]}, {k * WIN}, {v_w16[0]}")
        e(unpark("xw", u3))
        e.wait(vm=tok)
        self.flag_store(v_fl, F_O * 512)
        self.stamp("fo")
        V.release(lg)
        self.barrier(ready=UO)
        self.lds.add(L_RED + 16384, (L_V + HB if c.h_full else L_RING) - L_RED - 16384)
        xr = V.alloc(8)
        xs = Unit("xs", 64 * 144, [])
        xs.addr = L_RED + 16384
        assert any(iv[0] <= xs.addr and iv[1] >= xs.addr + xs.size for iv in self.lds.free)
        for iv in self.lds.free:
            if iv[0] <= xs.addr < iv[1]:
                hi_end = iv[1]
                iv[1] = xs.addr
                self.lds.free.append([xs.addr + xs.size, hi_end])
                break
        self.lds.free = sorted(iv for iv in self.lds.free if iv[1] > iv[0])
        e(f"ds_write_b128 {u3}, {a_xr.sub(0, 4)} offset:{xs.addr}")
        e(f"ds_write_b128 {u3}, {a_xr.sub(4, 4)} offset:{xs.addr + 8 * 144}")
        A.release(a_xr)
        done = [u for u in staged if u.next >= len(u.dmas)]
        for f in self.commit(done, v_w16):
            f()
        self.barrier()
        v_c1 = V.alloc()
        issO, chkO = self.opt_check(v_pf, F_O * 512, v_c1)
        if c.opt_o == 1:
            issO()
        for j in range(4):
            e(f"ds_read_b64 {xr.sub(2 * j, 2)}, {u2} offset:{xs.addr + (j >> 1) * 16 * 144 + (j & 1) * 32}")
        if c.opt_o == 2:
            issO()
        self.dma_all(limit=c.n_alpha)
        for j in range(8):
            e(f"v_lshlrev_b32 {x1[2 * j]}, 16, {xr[j]}")
            e(f"v_and_b32 {x1[2 * j + 1]}, 0xffff0000, {xr[j]}")
        V.release(xr)
        A.release(a_ones, *[r for n, r in parked.items() if n not in ("xres", "t3d")])
        fr = [[A.alloc(4) for _ in range(4)] for _ in range(3)]
        acc0, acc1 = V.alloc(16), V.alloc(16)

        def kloop(units, act, rdoff, nk, first=True, base=0):
            steps = []
            for i in range(nk // 2):
                f = fr[(base + i) % 3]

                def reads(i=i, f=f):
                    L = []
                    for sl in range(2):
                        for par in range(2):
                            for rd in range(2):
                                wi, o = divmod(units[i].addr + rd * rdoff, WIN)
                                L.append(f"ds_read_b64_tr_b16 {f[2 * sl + par].sub(2 * rd, 2)}, {v_s[sl][par][wi]} offset:{o}")
                    return L
                mf = []
                for a in range(2):
                    for sl, acc in ((1, acc1), (0, acc0)):
                        for par in range(2):
                            ac = acc.sub(8 * a + 4 * par, 4)
                            mf.append(f"v_mfma_f32_16x16x32_bf16 {ac}, {f[2 * sl + par]}, {act[2 * i + a]}, {'0' if i == 0 else ac}")
                steps.append(dict(reads=reads, mfmas=mf, units=[units[i]], slots=c.slots16, fslots=c.fslots16, rscale=0.5))
            return steps

        s_ao = sa()

        cur_ao = [None]

        def act_loads(regs, vaddr, offs):
            L = []
            for r, o in zip(regs, offs):
                def f(r=r, o=o):
                    if (c.exp_nohh and vaddr is not v_act) or (c.exp_noh2 and len(regs) == 32):
                        return
                    va = vaddr
                    if isinstance(o, tuple) and len(o) == 4:
                        e(f"s_xor_b32 {s_ao}, {o[0]}, {o[1]}")
                        cur_ao[0], o = None, 0
                    elif isinstance(o, tuple) and len(o) == 3:
                        e(f"s_lshr_b32 {s_ao}, {o[0]}, 4\ns_add_u32 {s_ao}, {s_ao}, {o[1]}")
                        cur_ao[0], o = None, 0
                    elif isinstance(o, tuple):
                        b, o = o
                        if b != cur_ao[0]:
                            e(f"s_lshr_b32 {s_ao}, {b}, 4")
                            cur_ao[0] = b
                    else:
                        if len(regs) == 32 and (o >> (11 + c.gbit)) & 1:
                            va = v_act2
                        b = o & ~4095
                        if b != cur_ao[0]:
                            e(f"s_mov_b32 {s_ao}, {b}")
                            cur_ao[0] = b
                    e(f"buffer_load_dwordx4 {r}, {va}, {CC if len(regs) == 32 else WS}, {s_ao} offen offset:{o & 4095}{c.act_fl}")
                L.append(f)
            return L

        actf = [A.alloc(4) for k in range(16)]
        steps = kloop(UO, actf, 512, 16)
        self.loop_prologue(steps)
        if c.opt_o:
            chkO()
        else:
            self.poll([f"buffer_load_dword {u1}, {v_pf}, {WS}, 0 offen offset:{F_O * 512} sc1"], [u1])
        V.release(v_c1)
        self.stamp("po")
        self.lname = "O"
        hl = act_loads(actf[:16], v_act, [(str(s_rx[1]), k * 1024, 0, 0) for k in range(16)])
        run(hl[:c.p2_lead])
        hi = hl[c.p2_lead:]
        for i in range(c.p2_lead // 2, 8):
            def f(n=14 - 2 * i):
                while len(hi) > n + c.n_beta:
                    hi.pop(0)()
            steps[i]["pre"] = [f]
        nb = [0]

        def beta():
            if nb[0] < c.n_beta:
                nb[0] += bool(self.stage_step())
        hi += [beta] * c.n_beta
        self.mfma_loop(steps, [], lambda i, h: (1, 0, 0), hi=hi)
        rest = [u for u in self.stq if u.next == 0]
        while self.stq and self.stq[0].next:
            if self.stq[0].next >= len(self.stq[0].dmas):
                self.stq.pop(0)
            else:
                self.stage_step()
        self.stq = []
        k = 0
        while k < len(self.queue) and (self.queue[k].addr is not None or self.queue[k] in UG[:c.n_dir]):
            k += 1
        self.queue[k:k] = rest
        staged = [u for u in staged if u not in rest]

        def reduce_pair():
            for j in range(4):
                e(f"ds_write_b128 {v_red}, {acc1.sub(4 * j, 4)} offset:{L_RED + 1024 * j}")
            e(f"v_xor_b32 {u0}, 8192, {v_red}")

        def reduce_read():
            for j in range(4):
                e(f"ds_read_b128 {acc1.sub(4 * j, 4)}, {u0} offset:{L_RED + 1024 * j}")
            for j in range(8):
                e(f"v_pk_add_f32 {acc0.sub(2 * j, 2)}, {acc0.sub(2 * j, 2)}, {acc1.sub(2 * j, 2)}")
        reduce_pair()
        self.barrier(release=UO + [xs])
        reduce_read()
        self.stamp("p2m")
        for j in range(8):
            e(f"v_pk_fma_f32 {x1.sub(2 * j, 2)}, {acc0.sub(2 * j, 2)}, {ga.sub(2 * (j & 3), 2)}, {x1.sub(2 * j, 2)}")
        sm, sq = acc1.sub(0, 4), acc1.sub(4, 4)
        for j in range(4):
            for a in range(2):
                p = x1.sub(8 * a + 2 * j, 2)
                if j == 0:
                    e(f"v_pk_add_f32 {sm.sub(2 * a, 2)}, {p}, {x1.sub(8 * a + 2, 2)}")
                    e(f"v_pk_mul_f32 {sq.sub(2 * a, 2)}, {p}, {p}")
                else:
                    if j >= 2:
                        e(f"v_pk_add_f32 {sm.sub(2 * a, 2)}, {sm.sub(2 * a, 2)}, {p}")
                    e(f"v_pk_fma_f32 {sq.sub(2 * a, 2)}, {p}, {p}, {sq.sub(2 * a, 2)}")
        gr = acc1[8]
        e(f"""v_add_f32 {sm[0]}, {sm[0]}, {sm[1]}
        v_add_f32 {sq[0]}, {sq[0]}, {sq[1]}
        v_add_f32 {sm[2]}, {sm[2]}, {sm[3]}
        v_add_f32 {sq[2]}, {sq[2]}, {sq[3]}
        s_lshl_b32 {t0}, {s_TB}, 12
        v_permlane32_swap_b32 {sm[0]}, {sq[0]}
        v_permlane32_swap_b32 {sm[2]}, {sq[2]}
        v_add_f32 {sm[0]}, {sm[0]}, {sq[0]}
        v_add_f32 {sm[2]}, {sm[2]}, {sq[2]}
        s_add_u32 {t0}, {t0}, {WS_STATS}
        v_permlane16_swap_b32 {sm[0]}, {sm[2]}
        v_add_f32 {gr}, {sm[0]}, {sm[2]}
        v_min_u32 {gr}, -2, {gr}""")
        self.store2([f"buffer_store_dword {gr}, {v_l16}, {WS}, {s_st} offen" + "{f}"])
        sg = V.alloc(16)
        def commit2():
            for f in self.commit(staged, v_w16):
                f()
            assert all(u.addr is not None for u in staged), "staged units left"
            V.release(v_w16)
        s_sta = sa()
        e(f"s_mov_b32 {s_sta}, {t0}")
        if c.rot & 8:
            e(f"""s_lshr_b32 {t0}, {s_idx}, 3
            s_lshl_b32 {t0}, {t0}, {c.rsh}
            s_lshl_b32 {t1}, {s_hg}, 1
            s_xor_b32 {t0}, {t0}, {t1}
            s_and_b32 {t1}, {t0}, 2
            s_lshl_b32 {s_rx[1]}, {t1}, 14
            s_and_b32 {t0}, {t0}, {4 if c.rsh else 0}
            s_lshl_b32 {t0}, {t0}, 15
            s_or_b32 {s_rx[0]}, {s_rx[1]}, {t0}""")
        else:
            e(f"s_mov_b32 {s_rx[0]}, 0\ns_mov_b32 {s_rx[1]}, 0")
        e(f"s_lshr_b32 {s_rx[2]}, {s_rx[0]}, 4\ns_lshr_b32 {s_rx[3]}, {s_rx[1]}, 4")
        cur_ao[0] = None
        self.cur_so = None
        assert all(u.next == 0 for u in UD)
        wbases(10, 9)
        v_ta = V.alloc(3, align=1)
        v_p3f, v_p3s, v_hha, v_chk, v_act2 = [V.alloc() for _ in range(5)]
        if c.p3_16:
            v_tb = V.alloc(3, align=1)
            e(f"""v_bfe_u32 {u2}, {v_l}, 4, 1
            v_lshl_add_u32 {v_ta[0]}, {u2}, 9, {v_trn}
            v_lshl_add_u32 {v_ta[0]}, {v_hh}, 10, {v_ta[0]}
            v_xor_b32 {v_tb[0]}, 32, {v_ta[0]}""")
            for k in (1, 2):
                e(f"v_add_u32 {v_ta[k]}, {k * WIN}, {v_ta[0]}")
                e(f"v_add_u32 {v_tb[k]}, {k * WIN}, {v_tb[0]}")
        else:
            e(f"""v_and_b32 {u0}, 3, {v_l}
            v_lshlrev_b32 {u0}, 3, {u0}
            v_bfe_u32 {u1}, {v_l}, 2, 2
            v_bfe_u32 {u2}, {v_l}, 4, 1
            v_lshlrev_b32 {u3}, 6, {u1}
            v_add_u32 {u3}, {u3}, {u0}
            v_mul_u32_u24 {v_ta[0]}, {4096 + 32}, {u2}
            v_lshlrev_b32 {v_ta[1]}, 9, {v_hh}
            v_add3_u32 {v_ta[0]}, {v_ta[0]}, {v_ta[1]}, {u3}""")
            for k in (1, 2):
                e(f"v_add_u32 {v_ta[k]}, {k * WIN}, {v_ta[0]}")
        e(f"""s_lshl_b32 {t0}, {s_g}, 2
        s_add_u32 {t0}, {t0}, {s_w}
        s_lshl_b32 {t1}, {t0}, 15
        s_add_u32 {t1}, {t1}, {WS_H2}
        s_lshr_b32 {t2}, {s_idx}, 4
        s_mul_i32 {t2}, {t2}, {(2048 << c.gbit) if c.rot & 2 else 0}
        v_add_u32 {v_act}, {t1}, {v_l16}
        v_subrev_u32 {v_act2}, {t2}, {v_act}
        v_add_u32 {v_act}, {t2}, {v_act}
        s_lshl_b32 {t0}, {s_g}, 11
        s_lshl_b32 {t1}, {s_w}, 7
        s_add_u32 {t0}, {t0}, {t1}
        s_add_u32 {t0}, {t0}, {WS_FLAGS}
        v_and_b32 {u0}, 15, {v_l}
        v_lshlrev_b32 {u0}, 2, {u0}
        v_add_u32 {v_p3f}, {t0}, {u0}
        s_lshl_b32 {t1}, {s_m}, 2
        s_add_u32 {t0}, {t0}, {t1}
        v_mov_b32 {v_p3s}, {t0}""")
        e(f"""s_mul_i32 {t0}, {s_TB}, 112
        s_mul_i32 {t1}, {s_kh}, 56
        s_add_u32 {t0}, {t0}, {t1}
        s_lshl_b32 {t0}, {t0}, 10
        s_add_u32 {t0}, {t0}, {WS_HH}
        v_add_u32 {v_hha}, {t0}, {v_l16}
        v_and_b32 {u1}, 7, {v_l}
        v_min_u32 {u1}, 6, {u1}
        v_lshlrev_b32 {u1}, 2, {u1}
        s_mul_i32 {t0}, {s_kh}, 28
        s_add_u32 {t0}, {t0}, {s_flb}
        v_add_u32 {v_pf}, {t0}, {u1}""")
        if not c.commit_late:
            commit2()
        tm = self.v_tmp
        pre = [f"v_max3_u32 {tm}, {sg[0]}, {sg[1]}, {sg[2]}", f"v_max3_u32 {u0}, {sg[3]}, {sg[4]}, {sg[5]}",
               f"v_max3_u32 {tm}, {tm}, {sg[6]}, {sg[7]}", f"v_max3_u32 {u0}, {u0}, {sg[8]}, {sg[9]}",
               f"v_max3_u32 {tm}, {tm}, {sg[10]}, {sg[11]}", f"v_max3_u32 {u0}, {u0}, {sg[12]}, {sg[13]}",
               f"v_max3_u32 {tm}, {tm}, {sg[14]}, {sg[15]}", f"v_max_u32 {tm}, {tm}, {u0}", f"v_cmp_eq_u32 vcc, -1, {tm}"]
        self.poll([f"buffer_load_dwordx4 {sg.sub(4 * k, 4)}, {v_l16}, {WS}, {s_sta} offen offset:{1024 * k} sc1" for k in range(4)], [], pre=pre)
        S.release(s_sta)
        self.stamp("pst")
        for k in range(4):
            e(f"v_pk_add_f32 {sg.sub(2 * k, 2)}, {sg.sub(2 * k, 2)}, {sg.sub(8 + 2 * k, 2)}")
        e(f"""v_pk_add_f32 {sg.sub(0, 2)}, {sg.sub(0, 2)}, {sg.sub(4, 2)}
        v_pk_add_f32 {sg.sub(2, 2)}, {sg.sub(2, 2)}, {sg.sub(6, 2)}
        v_pk_add_f32 {sg.sub(0, 2)}, {sg.sub(0, 2)}, {sg.sub(2, 2)}
        v_add_f32 {sg[0]}, {sg[0]}, {sg[1]}
        v_mov_b32 {sg[1]}, {sg[0]}
        v_permlane32_swap_b32 {sg[0]}, {sg[1]}""")
        pr = [sg.sub(2, 2), sg.sub(4, 2)]
        for t in self.finish_stats(sg[0], sg[1], pr[0][0], pr[0][1], 512):
            e(t)
        e(f"""v_mov_b32 {pr[1][0]}, {pr[0][0]}
        v_mov_b32 {pr[1][1]}, {pr[0][1]}
        v_permlane16_swap_b32 {pr[0][0]}, {pr[1][0]}
        v_permlane16_swap_b32 {pr[0][1]}, {pr[1][1]}""")
        for j in range(8):
            e(f"v_pk_fma_f32 {acc0.sub(2 * j, 2)}, {x1.sub(2 * j, 2)}, {pr[j >> 2]}, {pr[j >> 2]} op_sel:[0,0,1] op_sel_hi:[1,0,1]")
        for j in range(8):
            e(f"v_pk_fma_f32 {acc0.sub(2 * j, 2)}, {acc0.sub(2 * j, 2)}, {gB.sub(2 * (j & 3), 2)}, {gs.sub(2 * (j & 3), 2)}")
        for j in range(8):
            e(f"v_cvt_pk_bf16_f32 {acc1[j]}, {acc0[2 * j]}, {acc0[2 * j + 1]}")
        tok = self.store2([f"buffer_store_dwordx4 {acc1.sub(0, 4)}, {v_l16}, {WS}, {s_tile} offen" + "{f}",
                           f"buffer_store_dwordx4 {acc1.sub(4, 4)}, {v_l16}, {WS}, {s_tile} offen offset:1024" + "{f}"])
        V.release(sg, ga, gB, gs)
        def fh():
            e.wait(vm=tok)
            self.flag_store(v_fl, F_H * 512)
            self.stamp("fh")
        if c.fh_early == 1:
            fh()
        if c.commit_late:
            commit2()
        if c.fh_early == 2:
            fh()
        self.dma_all(limit=c.n_gamma)
        if not c.fh_early:
            fh()
        if c.stop == "p2":
            return self.finish()
        actf += [A.alloc(4) for k in range(16)]
        e("s_mov_b32 s40, s36\ns_mov_b32 s41, s37\ns_mov_b32 s42, s38")
        if c.idle_pf:
            Li = e.newlabel("Lbusy")
            e(f"s_cmp_lt_u32 {s_m}, 14")
            e(f"s_cbranch_scc1 {Li}")
            e.begin_cond()
            e(f"""s_and_b32 {t0}, {s_g}, 1
            s_lshl_b32 {t0}, {t0}, 1
            s_add_u32 {t0}, {t0}, {s_m}
            s_sub_u32 {t0}, {t0}, 14""")
            if c.idle_pf & 1:
                e(f"""s_lshl_b32 {t1}, {t0}, 12
                s_add_u32 {t1}, {t1}, {c.idle_off - 128}
                v_lshl_add_u32 {v_dA}, v0, 4, {t1}
                s_mov_b32 s16, s24
                s_mov_b32 s17, s25
                s_mov_b32 s18, s26
                s_add_u32 s20, s24, 16384
                s_addc_u32 s21, s25, 0
                s_sub_u32 s22, s26, 16384""")
            if c.idle_pf & 2:
                e(f"""s_lshl_b32 {t0}, {t0}, 2
                s_add_u32 {t0}, {t0}, {s_w}
                s_and_b32 {t1}, {t0}, 1
                s_lshl_b32 {t1}, {t1}, 15
                s_lshr_b32 {t0}, {t0}, 1
                s_lshr_b32 {t2}, {t0}, 2
                s_mul_i32 {t2}, {t2}, 3
                s_add_u32 {t0}, {t0}, {t2}
                s_lshl_b32 {t0}, {t0}, 17
                s_add_u32 {t0}, {t0}, {t1}
                v_add_u32 {v_act}, {t0}, {v_l16}
                s_mov_b32 s40, s24
                s_mov_b32 s41, s25
                s_mov_b32 s42, s26""")
            e.end_cond(Li)
        accA = [V.alloc(16) for _ in range(4)]
        accB = [V.alloc(16) for _ in range(4)]
        steps = []
        for ph, (UU, accs) in enumerate(((UA, accA), (UB, accB))):
            for s in range(32):
                f = fr[len(steps) % 3]

                def reads(s=s, f=f, UU=UU):
                    ad = UU[s // 2].addr + (s % 2) * 2048
                    wi, o = divmod(ad, WIN)
                    L = []
                    for cb in range(4):
                        for rd in range(2):
                            L.append(f"ds_read_b64_tr_b16 {f[cb].sub(2 * rd, 2)}, {v_ta[wi]} offset:{o + rd * 1024 + (cb >> 1) * 256 + (cb & 1) * 32}")
                    return L
                mf = [f"v_mfma_f32_32x32x16_bf16 {accs[cb]}, {f[cb]}, {actf[s]}, {'0' if s == 0 else accs[cb]}" for cb in range(4)]
                d = dict(reads=reads, mfmas=mf, units=[UU[s // 2]])
                if c.p3_16:
                    def reads16(s=s, f=f, UU=UU):
                        L = []
                        for par in range(2):
                            for mat in range(2):
                                for rd in range(2):
                                    wi, o = divmod(UU[s // 2].addr + (s % 2) * 256 + mat * 4128 + rd * 2048, WIN)
                                    L.append(f"ds_read_b64_tr_b16 {f[2 * par + mat].sub(2 * rd, 2)}, {(v_ta, v_tb)[par][wi]} offset:{o}")
                        return L
                    mf = []
                    for par in range(2):
                        for mat in range(2):
                            for a in range(2):
                                ac = accs[2 * (s % 2) + par].sub(8 * mat + 4 * a, 4)
                                mf.append(f"v_mfma_f32_16x16x32_bf16 {ac}, {f[2 * par + mat]}, {actf[(s & ~1) + a]}, {'0' if s < 2 else ac}")
                    d = dict(reads=reads16, mfmas=mf, units=[UU[s // 2]], slots=c.slots16, fslots=c.fslots16, rscale=0.5)
                if s % 4 == 0:
                    d["bar"], d["span"] = True, 4
                steps.append(d)
        red_unit = Unit("red", 16384, [])
        red_unit.addr = L_RED
        steps[0]["release"] = [red_unit]
        hx = [A.alloc(4) for _ in range(12)]
        actH = hx + [accA[k // 4].sub(4 * (k % 4), 4) for k in range(16)] + actf[:28]
        s4 = kloop(UD, actH, 4096, 56, base=64)
        for i in range(0, 28, 4):
            s4[i]["bar"], s4[i]["span"] = True, 4
        steps += s4
        stok = {}

        def glu(a0, a1, imm, key):
            L = [f"v_mul_f32 {acc[v]}, {acc[v]}, {acc[v + 8]}" for acc in (a0, a1) for v in range(8)]
            for a in range(2):
                L += [f"v_cvt_pk_bf16_f32 {a0[8 + 4 * a + 2 * b + h]}, {(a0, a1)[b][4 * a + 2 * h]}, {(a0, a1)[b][4 * a + 2 * h + 1]}"
                      for b in range(2) for h in range(2)]

                def st(a=a):
                    stok[key] = e(f"buffer_store_dwordx4 {a0.sub(8 + 4 * a, 4)}, {v_l16}, {WS}, {s_hh} offen offset:{imm + 1024 * a} sc1")
                L.append(st)
            return L
        gA, gFA, gB, gFB, gHA, gHB = [Gate() for _ in range(6)]
        fill = (bgl("t3d", tch(WD)) if c.t3 & 4 else []) + [gA]
        for i in range(2):
            fill += glu(accA[2 * i], accA[2 * i + 1], 2048 * i, "A")
        fill += [f"s_add_u32 {s_hh}, {s_hh}, 4096", gB]
        for i in range(2):
            fill += glu(accB[2 * i], accB[2 * i + 1], 2048 * i, "B")
        issA, chkA = self.opt_check(v_pf, F_A * 512, v_chk)
        issB, chkB = self.opt_check(v_pf, F_B * 512, v_chk)

        def hook(i, f):
            steps[i].setdefault("pre", []).append(f)
        hook(33, gA.open)
        if c.sent & 1:
            hook(c.st_ca, lambda: (self.drain_to(fill, gB), fill.insert(0, gB), gHA.open(), self.stamp("ca")))
        else:
            hook(c.st_fa, lambda: (self.drain_to(fill, gB), fill.insert(0, gB), e.wait(vm=stok["A"]), self.flag_store(v_p3s, F_A * 512), self.stamp("fa")))
            hook(c.st_ia, issA)
            hook(c.st_ca, lambda: (chkA(), gHA.open(), self.stamp("ca")))
        if c.burst_b:
            hook(64, lambda: (gB.open(), self.drain_to(fill, None)))
        else:
            hook(65, gB.open)
        if c.burst_a:
            hook(33, lambda: (self.drain_to(fill, gB), fill.insert(0, gB)))
        if c.wb_at:
            def wb():
                Lw = e.newlabel("Lnowb")
                e(f"s_lshl_b32 {t0}, {s_idx}, 2\ns_add_u32 {t0}, {t0}, {s_w}\ns_cmp_lg_u32 {t0}, {c.wb_who}")
                e(f"s_cbranch_scc1 {Lw}")
                e.optional += 1
                e("buffer_wbl2 sc1")
                e.optional -= 1
                e.label(Lw)
            hook(c.wb_at, wb)
        if c.sent & 2:
            hook(c.st_cb, lambda: (self.drain_to(fill, None), gHB.open(), self.stamp("cb")))
        else:
            hook(c.st_fb, lambda: (self.drain_to(fill, None), e.wait(vm=stok["B"]), self.flag_store(v_p3s, F_B * 512), self.stamp("fb")))
            hook(c.st_ib, issB)
            hook(c.st_cb, lambda: (chkB(), gHB.open(), self.stamp("cb")))
        hl = act_loads(actf, v_act, [1024 * k for k in range(32)])
        hi = hl[c.act_lead:] + [gHA] + act_loads(actH[:28], v_hha, [(str(s_rx[2 if fb < 48 else 3]), fb * 1024, 0, 0) for fb in fbA]) + [gHB]
        hb = act_loads(actH[28:], v_hha, [(str(s_rx[2 if fb < 48 else 3]), fb * 1024, 0, 0) for fb in fbB])
        hook(c.st_cb, lambda: run(hb[:c.lead_b]))
        hi += hb[c.lead_b:]

        def need(i, n):
            def f():
                while len(hi) > n:
                    t = hi.pop(0)
                    if isinstance(t, Gate):
                        assert t.is_open, f"gate closed at step {i}"
                    else:
                        t()
            hook(i, f)
        total = len(hi)
        pos = {}
        k = c.act_lead
        seq = list(range(c.act_lead, 32)) + [None] + list(range(64 * 2, 64 * 2 + 28)) + [None] + list(range(64 * 2 + 28 + c.lead_b, 64 * 2 + 56))
        for n, q in enumerate(seq):
            if q is not None:
                st_i = (q & ~1 if c.p3_16 else q) if q < 32 else q // 2
                need(st_i, total - n - 1)
        for i in range(28):
            if c.sent & (1 if i < 14 else 2):
                hook(64 + i, lambda i=i: self.verify([(actH[2 * i + h], 1024 * fbs[2 * i + h]) for h in range(2)], v_hha))
                steps[64 + i]["resv"] = 3 if 6 <= i < 14 else 4
        Lidle, Ljoin = e.newlabel("Lidle"), e.newlabel("Lp4")
        if c.skip_idle:
            self.dma_flush()
            e(f"s_cmp_ge_u32 {s_m}, 14")
            e(f"s_cbranch_scc1 {Lidle}")
            n_p3 = len(e.out)
        if c.opt_h:
            issH, chkH = self.opt_check(v_p3f, F_H * 512, v_chk)
            issH()
            self.loop_prologue(steps)
            chkH()
        else:
            self.loop_prologue(steps)
            self.poll([f"buffer_load_dword {u1}, {v_p3f}, {WS}, 0 offen offset:{F_H * 512} sc1"], [u1])
        self.stamp("ph")
        self.exp_delay("ph")
        self.lname = "G"
        run(hl[:c.act_lead])

        def g_rates(i, h):
            if any(p0 <= i < p1 for p0, p1 in c.pauses):
                return (c.g_hi[2] if i >= 64 else c.g_hi[i // 32], 0, 0)
            reg = min(i // 32, 2)
            if i >= c.st_cb:
                return (c.g_hi[2], c.g_end, c.g_end) if h else (0, c.g_dma[2], 0)
            return (c.g_hi[reg], c.g_mix[reg] if h else c.g_dma[reg], 0)
        self.mfma_loop(steps, fill, g_rates, rng=(0, 64), hi=hi)
        if c.skip_idle:
            body = [o.text for o in e.out[n_p3:] if isinstance(o, Ins)]
            alt, m0 = [], None
            for k, t in enumerate(body):
                if t.startswith("s_add_u32 m0") or (len(t.split()) > 1 and t.split()[1] == f"{self.s_so},"):
                    alt.append(t)
                elif t.endswith(" lds") and WD in t:
                    alt += ["s_nop 0", t]
            keep = []
            for k, t in enumerate(alt):
                if t.startswith("s_add_u32 m0") and any(u.startswith("s_add_u32 m0") for u in alt[k + 1:k + 3]) :
                    continue
                keep.append(t)
            alt = keep
            alt2 = [t for t in body if t.startswith(f"s_xor_b32 {s_ao},") or (t.startswith("buffer_load_dwordx4") and f" {v_hha}," in t)]
            rd = steps[64]["reads"]() + steps[65]["reads"]()
            Lw = Lidle + "_w"
            self.ool.append(f"{Lidle}:\n    s_waitcnt vmcnt(0) lgkmcnt(0)\n    s_barrier\n" + "".join(f"    {t}\n" for t in alt) +
                            f"    s_mov_b32 {self.s_spin}, 0\n{Lw}:\n    s_sleep 8\n    s_add_u32 {self.s_spin}, {self.s_spin}, 1\n    s_cmp_gt_u32 {self.s_spin}, {c.spin}\n"
                            f"    s_cbranch_scc1 Lexit\n    buffer_load_dword {v_chk}, {v_pf}, s[36:39], 0 offen offset:{F_A * 512} sc1\n    s_waitcnt vmcnt(0)\n"
                            f"    v_cmp_ne_u32 vcc, {s_tag}, {v_chk}\n    s_cbranch_vccnz {Lw}\n" + "".join(f"    {t}\n" for t in alt2) +
                            "    s_barrier\n" + "".join(f"    {t}\n" for t in rd) + f"    s_waitcnt vmcnt(0) lgkmcnt(0)\n    s_branch {Ljoin}\n")
            e.label(Ljoin)
        self.stamp("p3e")
        self.mfma_loop(steps, fill, g_rates, rng=(64, 92), hi=hi)
        self.stamp("p4e")
        self.barrier()
        reduce_pair()
        e(unpark("xres", u1))
        self.barrier()
        reduce_read()
        for j in range(8):
            e(f"v_pk_fma_f32 {x1.sub(2 * j, 2)}, {acc0.sub(2 * j, 2)}, {gb.sub(2 * (j & 3), 2)}, {x1.sub(2 * j, 2)}")
        for a in range(2):
            for par in range(2):
                for h in range(2):
                    e(f"v_cvt_pk_bf16_f32 {acc1[4 * par + 2 * a + h]}, {x1[8 * a + 4 * par + 2 * h]}, {x1[8 * a + 4 * par + 2 * h + 1]}")
        for par in range(2):
            for h in range(2):
                e(f"v_permlane16_swap_b32 {acc1[4 * par + h]}, {acc1[4 * par + 2 + h]}")
        e(f"buffer_store_dwordx4 {acc1.sub(0, 4)}, {u1}, {OUT}, 0 offen{c.out_fl.replace('_', ' ')}")
        e(f"buffer_store_dwordx4 {acc1.sub(4, 4)}, {u1}, {OUT}, 0 offen offset:32{c.out_fl.replace('_', ' ')}")
        Lnb = e.newlabel("Lnobump")
        e(f"s_or_b32 {t0}, s2, {s_w}")
        e(f"s_cmp_lg_u32 {t0}, 0")
        e(f"s_cbranch_scc1 {Lnb}")
        xi = acc0.sub(0, 4)
        self.poll([f"buffer_load_dwordx4 {xi}, {v_l16}, {WS}, 0 offen offset:{WS_XID} sc1"], [xi[k] for k in range(4)],
                  pre=[f"v_and_b32 {xi[k]}, -8, {xi[k]}" for k in range(4)])
        e(f"""v_mov_b32 {u0}, 0
        s_mov_b64 exec, 1
        buffer_store_dword {self.v_tag}, {u0}, {WS}, 0 offen offset:{WS_E} sc1
        s_mov_b64 exec, -1""")
        e.label(Lnb)
        return self.finish()

    def finish(self):
        e, c = self.e, self.c
        if c.stamps:
            self.stamp("end")
            e(f"s_memrealtime {self.rt1}")
            e.wait_all_lg()
            t = self.v_tmp
            e("s_mov_b64 exec, 1")
            e(f"v_lshrrev_b32 {t}, 6, v0")
            e(f"v_lshlrev_b32 {t}, 6, {t}")
            e(f"s_lshl_b32 s3, s2, 8")
            e(f"v_add_u32 {t}, s3, {t}")
            e(f"v_add_u32 {t}, {WS_STAMP}, {t}")
            e(f"v_mov_b32 {self.v_tag}, {self.rt0[0]}")
            e(f"buffer_store_dword {self.v_tag}, {t}, s[36:39], 0 offen offset:60")
            e(f"v_mov_b32 {self.v_tag}, {self.rt1[0]}")
            e(f"buffer_store_dword {self.v_tag}, {t}, s[36:39], 0 offen offset:56")
            for k in range(len(self.stamp_names)):
                r = self.stamp_regs[k]
                e(f"s_sub_u32 s3, {r[0]}, {self.rt0[0] if self.stamp_names[k][0] == 'r' and c.rt else self.stamp_regs[0][0]}")
                e(f"v_mov_b32 {self.v_tag}, s3")
                e(f"buffer_store_dword {self.v_tag}, {t}, s[36:39], 0 offen offset:{4 * k}")
        if c.dbg:
            e("s_memtime s[4:5]\ns_memrealtime s[6:7]")
            e.wait_all_lg()
            e(f"""s_sub_u32 s4, s4, {self.d0[0]}
            s_sub_u32 s5, s6, {self.d1[0]}
            v_mov_b32 v2, s4
            v_mov_b32 v3, s5
            s_and_b32 s8, s2, 7
            s_lshl_b32 s8, s8, 3
            v_mov_b32 v4, s8
            s_mov_b64 exec, 1
            global_store_dwordx2 v4, v[2:3], {self.dp}""")
        e.label("Lexit")
        e("s_endpgm")
        return e.text() + "".join(self.ool) + "Lcode_end:\n"


def kernel_file(body, hdr):
    k = NAME + "_kernel"
    return f"""{hdr}; @launch grid=(256,1,1) block=(256,1,1) lds=163840
.amdgcn_target "amdgcn-amd-amdhsa--gfx950"
.text
.globl {k}
.p2align 8
.type {k},@function
{k}:
{body}.section .rodata,"a"
.p2align 6
.amdhsa_kernel {k}
  .amdhsa_next_free_vgpr 512
  .amdhsa_next_free_sgpr 102
  .amdhsa_accum_offset 256
  .amdhsa_group_segment_fixed_size 0
  .amdhsa_kernarg_size 96
  .amdhsa_user_sgpr_count 2
  .amdhsa_user_sgpr_kernarg_segment_ptr 1
  .amdhsa_system_sgpr_workgroup_id_x 1
.end_amdhsa_kernel
"""


if __name__ == "__main__":
    ap = argparse.ArgumentParser()
    ap.add_argument("-o", default="k.s")
    ap.add_argument("--stop")
    ap.add_argument("--stamps")
    ap.add_argument("--log", action="store_true")
    ap.add_argument("--set", nargs="*", default=[])
    a = ap.parse_args()
    c = Cfg()
    c.stop = a.stop
    c.stamps = a.stamps.split(",") if a.stamps else None
    for kv in a.set:
        k, v = kv.split("=")
        setattr(c, k, eval(v))
    g = Gen(c)
    body = g.build()
    hdr = "; stamps: " + " ".join(g.stamp_names) + "\n" if c.stamps else ""
    open(a.o, "w").write(kernel_file(body, hdr))
    print("instrs", g.e.n_ins, "nops", g.e.nops, "barriers", g.nbar, "vgpr hi", g.V.hi, "agpr hi", g.A.hi, "sgpr hi", g.S.hi)
    if a.log:
        print("\n".join(g.log))
```

```python
import sys, math, argparse, struct
sys.path.insert(0, "gen")
from emit import *

NAME = "adaLN_cond__sliding_local_dilated__glu_gated_bilinear__prompt"

WS_E, WS_XID, WS_FLAGS, WS_G, WS_STATS = 0x0, 0x400, 0x1000, 0x10000, 0x80000
WS_O, WS_H2, WS_HH, WS_STAMP, WS_SIZE = 0x100000, 0x100000, 0x500000, 0xC00000, 0xD00000
GQ = 0x3000
GCOPY = 4 * GQ
NCOPY = 4
F_O, F_H, F_A, F_B = 0, 1, 2, 3
L_TBL2 = 0
L_PART = 1024
L_TBL = 2048
L_K = L_TBL
HB = 80 * 272
L_H0 = L_K + 80 * 144
L_V = L_H0
L_H1 = L_H0 + HB
L_RING = L_H1 + HB
L_END = 163840
L_RED = L_TBL
SLOTS = 5
WIN = 61440


def f2u(x):
    return struct.unpack("<I", struct.pack("<f", x))[0]


class Cfg:
    mimic = True
    stamps = None
    stop = None
    force_slow = False
    hh_sc1 = True
    preread = True
    spin = 1 << 16
    dma_every = 2
    pre_chunks = 4
    nx_first = 8
    nw_first = 0
    x_rate0 = 0.06
    x_rate = 1 / 12
    pre_rate = 1 / 14
    dma_hop1 = 8
    dma_hop2 = 8
    dma_hop3 = 8
    exp_nodma = False
    exp_skip = ''
    exp_nohh = False
    exp_noh2 = False
    act_fl = ' sc1'
    code_pf = True
    touch = 1
    tlb = 0
    touchq = 0
    mall_q = True
    t3 = 7
    n_pre = 15
    n_alpha, n_beta, n_gamma = 3, 8, 6
    lead_b = 12
    pauses = ()
    q_dma, q_dma0, q_stage = 0.75, 0, 0
    g_hi = (0.27, 0.3, 0.5)
    g_mix = (0.3, 0.15, 0.5)
    g_dma = (0.34, 0.4, 0.5)
    pre_tiles = 2
    pf_first = True
    opt_s = 2
    exp_half = False
    exp_dirty = 0
    exp_dfl = ''
    fh_early = 1
    opt_o = 1
    opt_h = 0
    p3_16 = True
    slots16 = 3
    q_slots = 4
    fslots16 = 2
    q_fill = 3
    rot = 11
    rsh = 1
    gbit = 2
    exp_stagger = ()
    skip_idle = True
    rt = False
    psleep = 0
    p2_lead = 6
    sent = 0
    commit_late = False
    att_n = 1000
    dbg = False
    out_fl = ''
    nq_k = 1
    w_first = 24
    mallq_early = False
    np0 = 4
    n_rate = 0.12
    st_g2 = 14
    code_pf0 = True
    nx_pre = 4
    idle_pf = 0
    idle_off = 65536
    burst_a = False
    burst_b = True
    g_end = 0.4
    bg_early = 1
    bg_n = 5
    q_dma1 = 26
    uo_late = True
    hh_fast = 0
    wb_at = 0
    wb_who = 60
    h_full = True
    q_span = 2
    tq2 = 9
    q_hi, q_hi0 = 0.3, 26
    solo_reads = 0
    mall_pf = 2
    dma_p1 = 2
    dma_p3 = 3
    dma_p4 = 2
    dma_att = 0
    act_lead = 8
    dma_p2 = 0
    n_dir, n_stage = 8, 4
    stage_p1 = 0
    att_every = 20
    post_every = 0
    hi3, mix3 = 3, 3
    hi4, mix4 = 2, 2
    st_fa, st_ia, st_ca = 47, 50, 53
    st_fb, st_ib, st_cb = 74, 76, 78


class Lds:
    def __init__(self):
        self.free = []

    def add(self, a, n):
        for iv in self.free:
            assert a + n <= iv[0] or a >= iv[1], "double free"
        self.free.append([a, a + n])
        self.free.sort()
        m = []
        for iv in self.free:
            if m and m[-1][1] == iv[0]:
                m[-1][1] = iv[1]
            else:
                m.append(iv)
        self.free = m

    def alloc(self, n, span=0):
        for iv in self.free:
            a = iv[0]
            if iv[1] - a >= n:
                iv[0] += n
                if iv[0] == iv[1]:
                    self.free.remove(iv)
                return a
        return None


class Gate:
    is_open = False

    def open(self):
        self.is_open = True


class Mark:
    pass


class Skip:
    def __init__(self, n):
        self.n = n


class Unit:
    def __init__(self, name, size, dmas):
        self.name, self.size, self.dmas = name, size, dmas
        self.addr = None
        self.next = 0
        self.tok = None
        self.ready = False
        self.released = False


class Gen:
    def __init__(self, cfg):
        self.c = cfg
        self.e = Emit()
        self.V = RegAlloc("v", 256, first=1)
        self.A = RegAlloc("a", 256)
        self.S = RegAlloc("s", 102, first=44)
        self.lds = Lds()
        self.queue = []
        self.stamp_names = []
        self.nbar = 0
        self.cur_so = None
        self.dq = []
        self.log = []
        self.ool = []
        self.stq = []
        self.cur_so2 = None
        self.cur_m0 = None
        self.lname = 'L'

    def dma_prepare(self):
        while self.queue and self.queue[0].next >= len(self.queue[0].dmas):
            self.queue.pop(0)
        if not self.queue:
            return []
        u = self.queue[0]
        if u.addr is None:
            u.addr = self.lds.alloc(u.size)
            if u.addr is None:
                return []
        srd, vreg, soff, imm, loff = u.dmas[u.next]
        u.next += 1
        e = self.e
        L = []
        m0v = (str(getattr(u, "wreg", self.s_w1k)), u.addr + loff - imm)
        if m0v != self.cur_m0:
            L.append(lambda: e(f"s_add_u32 m0, {m0v[0]}, {m0v[1]}"))
            self.cur_m0 = m0v
        if callable(soff):
            soff = soff()
        if soff and soff != self.cur_so:
            for t in self.so_code(self.s_so, soff):
                L.append(lambda t=t: e(t))
            self.cur_so = soff
        so = self.s_so if soff else 0
        im = f" offset:{imm}" if imm else ""

        if (self.c.exp_nodma and getattr(self, "in_loop", False)) or u.name[0] in self.c.exp_skip:
            u.tok = u.tok or 0
            return [lambda: None]

        def ld():
            u.tok = e(f"buffer_load_dwordx4 {vreg}, {srd}, {so} offen{im} lds")
            u.pending_piece = False
        u.pending_piece = True
        L.append(ld)
        return L

    def so_code(self, d, soff):
        if not isinstance(soff, tuple):
            return [f"s_mov_b32 {d}, {soff}"]
        r, m, k = soff
        if m == "x":
            return [f"s_xor_b32 {d}, {r}, {k}"]
        if m == 1:
            return [f"s_add_u32 {d}, {r}, {k}"]
        return [f"s_mul_i32 {d}, {r}, {m}"] + ([f"s_add_u32 {d}, {d}, {k}"] if k else [])

    def stage_prepare(self):
        while self.stq and self.stq[0].next >= len(self.stq[0].dmas):
            self.stq.pop(0)
        if not self.stq:
            return []
        u = self.stq[0]
        srd, vreg, soff, imm, loff = u.dmas[u.next]
        r = self.A.alloc(4)
        u.sregs = getattr(u, "sregs", []) + [(r, loff)]
        u.next += 1
        e = self.e
        L = []
        if soff != self.cur_so2:
            L.append(lambda: e(f"s_mov_b32 {self.s_so2}, {soff}"))
            self.cur_so2 = soff
        im = f" offset:{imm}" if imm else ""
        L.append(lambda: e(f"buffer_load_dwordx4 {r}, {vreg}, {srd}, {self.s_so2} offen{im}"))
        return L

    def stage_step(self):
        self.dma_flush()
        L = self.stage_prepare()
        for f in L:
            f()
        return bool(L)

    def commit(self, units, v_w16):
        L = []
        for u in units:
            if u.addr is not None:
                continue
            assert u.next >= len(u.dmas), "commit of a unit that is not fully staged"
            u.addr = self.lds.alloc(u.size)
            if u.addr is None:
                break
            for r, loff in u.sregs:
                def w(u=u, r=r, loff=loff):
                    wi, o = divmod(u.addr + loff, WIN)
                    u.ltok = self.e(f"ds_write_b128 {v_w16[wi]}, {r} offset:{o}")
                    self.A.release(r)
                L.append(w)
            u.staged = True
        return L

    def dma_flush(self):
        while self.dq:
            self.dq.pop(0)()

    def dma_step(self):
        self.dma_flush()
        L = self.dma_prepare()
        for f in L:
            f()
        return bool(L)

    def dma_all(self, limit=10 ** 9):
        n = 0
        while n < limit and self.dma_step():
            n += 1
        return n

    def barrier(self, ready=(), release=(), lg=sys.maxsize, tag=""):
        e = self.e
        ready = [u for u in ready if not u.ready]
        late = 0
        for u in ready:
            if getattr(u, "staged", False):
                u.ready = True
                lg = max(lg or 0, u.ltok)
        ready = [u for u in ready if not u.ready]
        for u in ready:
            if getattr(u, "pending_piece", False):
                self.dma_flush()
            while u.next < len(u.dmas):
                assert self.dma_step(), f"LDS ring deadlock at unit {u.name}"
                late += 1
        self.stamp(f"b{self.nbar}a")
        if ready:
            tk = max(u.tok for u in ready)
            self.log.append(f"bar {self.nbar} {tag}: ready {ready[0].name}..{ready[-1].name} late={late} younger_vm={e.vm_issued - tk} ins={e.n_ins}")
            e.wait(vm=tk)
        self.stamp(f"b{self.nbar}v")
        if lg is not None:
            e.wait(lg=min(lg, e.lg_issued))
        e("s_barrier")
        self.stamp(f"b{self.nbar}e")
        self.nbar += 1
        for u in ready:
            u.ready = True
        for u in release:
            if not u.released:
                u.released = True
                self.lds.add(u.addr, u.size)

    def stamp(self, name):
        if self.c.stamps and (name in self.c.stamps or self.c.stamps == "all" and len(self.stamp_names) < 15 or name in ("t0", "end")):
            r = self.stamp_regs[len(self.stamp_names)]
            self.e(f"s_memtime {r}")
            self.stamp_names.append(name)
            if self.c.rt and name not in ("t0", "end"):
                self.e(f"s_memrealtime {self.stamp_regs[len(self.stamp_names)]}")
                self.stamp_names.append("r" + name)

    def interleave(self, main, fill, ratio):
        acc = 0.0
        fill = list(fill)
        for m in main:
            m() if callable(m) else self.e(m)
            acc += ratio
            while acc >= 1.0 and fill:
                f = fill.pop(0)
                f() if callable(f) else self.e(f)
                acc -= 1.0
        return fill

    def bg_on(self, every, limit, stage=True, nmax=1000):
        e = self.e
        st = dict(n=0, busy=False)

        def hook():
            if st["busy"] or e.in_cond or e.hist[-1].op.startswith(("s_cmp", "s_cbranch")):
                return
            st["n"] += 1
            if st["n"] >= every and st.get("c", 0) < nmax:
                st["c"] = st.get("c", 0) + 1
                st["n"] = 0
                st["busy"] = True
                lim = limit[0]
                if not (lim.next < len(lim.dmas) and self.dma_step()) and stage:
                    self.stage_step()
                st["busy"] = False
        e.hook = hook if every else None

    def bg_off(self):
        self.e.hook = None

    def exp_delay(self, where):
        n = dict(self.c.exp_stagger).get(where, 0)
        if n:
            e = self.e
            L = e.newlabel("Lst")
            e("s_bitcmp1_b32 s2, 7")
            e(f"s_cbranch_scc0 {L}")
            for _ in range(n):
                e("s_sleep 8")
            e.label(L)

    def bf16r(self, d, s):
        return [f"v_cvt_pk_bf16_f32 {d}, {s}, {s}", f"v_and_b32 {d}, 0xffff0000, {d}"]

    def poll(self, loads, checks, pre=None):
        e = self.e
        self.dma_flush()
        L = e.newlabel("Lpoll")
        e(f"s_mov_b32 {self.s_spin}, 0")
        if self.c.psleep:
            L2 = e.newlabel("Lfirst")
            e(f"s_branch {L2}")
        e.label(L)
        if self.c.psleep:
            e(f"s_sleep {self.c.psleep}")
            e.label(L2)
        e(f"s_add_u32 {self.s_spin}, {self.s_spin}, 1")
        e(f"s_cmp_gt_u32 {self.s_spin}, {self.c.spin}")
        e("s_cbranch_scc1 Lexit")
        for t in loads:
            e(t)
        e.force_vm0()
        for t in pre or []:
            e(t)
        if not checks:
            pass
        elif len(checks) == 1:
            e(f"v_cmp_ne_u32 vcc, {self.s_tag}, {checks[0]}")
        else:
            t = self.v_tmp
            e(f"v_xor_b32 {t}, {checks[0]}, {self.v_tag}")
            rest = list(checks[1:])
            for r in rest:
                e(f"v_xor_b32 {r}, {r}, {self.v_tag}")
            while len(rest) >= 2:
                e(f"v_or3_b32 {t}, {t}, {rest.pop()}, {rest.pop()}")
            if rest:
                e(f"v_or_b32 {t}, {t}, {rest.pop()}")
            e(f"v_cmp_ne_u32 vcc, 0, {t}")
        e(f"s_cbranch_vccnz {L}")

    def store2(self, fmt_list):
        e = self.e
        Ls, Lj = e.newlabel("Lslow"), e.newlabel("Ljoin")
        e(f"s_cmp_eq_u32 {self.s_mode}, 0")
        e(f"s_cbranch_scc1 {Ls}")
        save = (e.vm_issued, e.vm_done, list(e.hist))
        n0 = len(e.out)
        tok = None
        for t in fmt_list:
            tok = e(t.format(f="")) or tok
        for o in e.out[n0:]:
            assert o.op != "s_waitcnt", "operand of mode-dependent store not ready"
        e(f"s_branch {Lj}")
        e.label(Ls)
        e.vm_issued, e.vm_done, e.hist = save
        for t in fmt_list:
            e(t.format(f=" sc1"))
        e.label(Lj)
        return tok

    def flag_store(self, vaddr, off):
        e = self.e
        e("s_mov_b64 exec, 1")
        self.store2([f"buffer_store_dword {self.v_tag}, {vaddr}, s[36:39], 0 offen offset:{off}" + "{f}"])
        e("s_mov_b64 exec, -1")

    def loop_prologue(self, steps, PD=2):
        for i in range(min(PD, len(steps))):
            self._bar_for(steps, i, -1)
            steps[i]["tok"] = [self.e(r) for r in steps[i]["reads"]()][-1]

    def _bar_for(self, steps, i, cur):
        st = steps[i]
        need = [u for u in st["units"] if not u.ready]
        if st.get("bar") or need:
            if st.get("prebar"):
                st["prebar"]()
            k = i
            ready = []
            for k in range(i, min(i + st.get("span", 1), len(steps))):
                ready += [u for u in steps[k]["units"] if u not in ready]
            live = {id(u) for s2 in steps[cur + 1:] for u in s2["units"]}
            dead = [u for s2 in steps[:cur + 1] for u in s2["units"] if id(u) not in live] + st.get("release", [])
            self.barrier(ready=ready, release=dead, lg=st["lg"]() if st.get("lg") else None, tag=f"step{i}")
            if st.get("postbar"):
                st["postbar"]()

    def mfma_loop(self, steps, fill, rates, PD=2, rng=None, hi=None):
        e = self.e
        cnt = 0
        self.in_loop = True
        a, b = rng or (0, len(steps))
        hi = hi if hi is not None else []
        cred = [0.0, 0.0, 0.0]
        for i in range(a, b):
            st = steps[i]
            nxt = steps[i + PD] if i + PD < len(steps) else None
            rq = []
            nm = len(st["mfmas"])
            self.stamp(f"{getattr(self, 'lname', 'L')}{i}")
            for j, mf in enumerate(st["mfmas"]):
                if j == 0:
                    for f in st.get("pre", []):
                        f()
                    vm = None
                    for m2 in st["mfmas"][:st.get("wspan", 2)]:
                        for r in Ins(m2).src:
                            t = e.pend.get(r)
                            if t and t[0] == "vm":
                                vm = max(vm or 0, t[1])
                    e.wait(vm=vm, lg=st["tok"])
                e(mf)
                cnt += 1
                n0 = e.n_ins
                if j == 0 and nxt:
                    self._bar_for(steps, i + PD, i)
                    rq = list(nxt["reads"]())
                while fill and (isinstance(fill[0], Mark) or (isinstance(fill[0], Gate) and fill[0].is_open)):
                    fill.pop(0)
                if fill and getattr(fill[0], "solo", False) and j < nm - 1 and e.n_ins == n0:
                    fill.pop(0)()
                    for _ in range(min(self.c.solo_reads, len(rq))):
                        nxt["tok"] = e(rq.pop(0))
                    continue
                k = math.ceil(len(rq) / (nm - j))
                for _ in range(k):
                    tk = e(rq.pop(0))
                    nxt["tok"] = tk
                budget = st.get("slots", SLOTS) - ((1 + (steps[i + 1].get("resv", 0) if i + 1 < len(steps) else 0)) if j == nm - 1 else 0)
                while hi and isinstance(hi[0], Gate) and hi[0].is_open:
                    hi.pop(0)
                hi_ok = bool(hi) and not isinstance(hi[0], Gate)
                hr, dr, sr = [x * st.get("rscale", 1.0) for x in rates(i, hi_ok)]
                cred[0] = min(cred[0] + hr, 1.9) if hi_ok else 0.0
                cred[1] = min(cred[1] + dr, 1.9)
                cred[2] = min(cred[2] + sr, 1.9)
                if hi_ok and cred[0] >= 0.999 and (e.n_ins - n0 < budget or cred[0] >= 1.5):
                    cred[0] -= 1.0
                    hi.pop(0)()
                elif not self.dq:
                    if cred[1] >= 0.999:
                        self.dq = self.dma_prepare()
                        if self.dq:
                            cred[1] -= 1.0
                    if not self.dq and cred[2] >= 0.999:
                        self.dq = self.stage_prepare()
                        if self.dq:
                            cred[2] -= 1.0
                while e.n_ins - n0 < budget and self.dq:
                    self.dq.pop(0)()
                if "fslots" in st:
                    budget -= st["slots"] - st["fslots"]
                while e.n_ins - n0 < budget and fill:
                    if isinstance(fill[0], Gate):
                        if not fill[0].is_open:
                            break
                        fill.pop(0)
                        continue
                    if isinstance(fill[0], Mark):
                        fill.pop(0)
                        continue
                    if isinstance(fill[0], Skip):
                        fill[0].n -= 1
                        if fill[0].n <= 0:
                            fill.pop(0)
                        break
                    if getattr(fill[0], "solo", False):
                        break
                    f = fill.pop(0)
                    f() if callable(f) else e(f)
        self.dma_flush()

    def verify(self, frags, vaddr):
        e = self.e
        tm, t2 = self.v_tmp, self.v_tmp2

        def chk():
            L = []
            src = []
            for k, (r, o) in enumerate(frags):
                if r.kind == "a":
                    d = (tm, t2)[k]
                    L.append(f"v_accvgpr_read_b32 {d}, {r[0]}")
                    src.append(d)
                else:
                    src.append(r[0])
            if len(src) == 2:
                L.append(f"v_max_u32 {tm}, {src[0]}, {src[1]}")
                src = [tm]
            L.append(f"v_cmp_eq_u32 vcc, -1, {src[0]}")
            return L
        Ls, Lb = e.newlabel("Lretry"), e.newlabel("Lback")
        for t in chk():
            e(t)
        e(f"s_cbranch_vccnz {Ls}")
        e.label(Lb)
        ld = "".join(f"    s_mov_b32 {self.s_rt}, {o}\n    buffer_load_dwordx4 {r}, {vaddr}, s[36:39], {self.s_rt} offen sc1\n" for r, o in frags)
        ck = "".join(f"    {t}\n" for t in chk())
        self.ool.append(f"""{Ls}:
    s_mov_b32 {self.s_spin}, 0
{Ls}_1:
    s_add_u32 {self.s_spin}, {self.s_spin}, 1
    s_cmp_gt_u32 {self.s_spin}, {self.c.spin}
    s_cbranch_scc1 Lexit
{ld}    s_waitcnt vmcnt(0)
{ck}    s_cbranch_vccnz {Ls}_1
    s_branch {Lb}
""")

    def opt_check(self, vaddr, off, reg):
        e = self.e
        box = {}

        def issue():
            box["tok"] = e(f"buffer_load_dword {reg}, {vaddr}, s[36:39], 0 offen offset:{off} sc1")

        def check():
            Ls, Lb = e.newlabel("Lretry"), e.newlabel("Lback")
            e(f"v_cmp_ne_u32 vcc, {self.s_tag}, {reg}")
            e(f"s_cbranch_vccnz {Ls}")
            e.label(Lb)
            self.ool.append(f"""{Ls}:
    s_mov_b32 {self.s_spin}, 0
{Ls}_1:
    s_add_u32 {self.s_spin}, {self.s_spin}, 1
    s_cmp_gt_u32 {self.s_spin}, {self.c.spin}
    s_cbranch_scc1 Lexit
    buffer_load_dword {reg}, {vaddr}, s[36:39], 0 offen offset:{off} sc1
    s_waitcnt vmcnt(0)
    v_cmp_ne_u32 vcc, {self.s_tag}, {reg}
    s_cbranch_vccnz {Ls}_1
    s_branch {Lb}
""")
        return issue, check

    def drain_to(self, fill, mark):
        if mark is not None and mark not in fill:
            return
        while fill:
            f = fill.pop(0)
            if f is mark:
                return
            if isinstance(f, Gate):
                assert f.is_open
            elif not isinstance(f, (Mark, Skip)):
                f() if callable(f) else self.e(f)

    def finish_stats(self, sm, sq, rho, nmr, n):
        L = [f"v_mul_f32 {sm}, 0x{f2u(1.0 / n):08x}, {sm}",
             f"v_mul_f32 {sq}, 0x{f2u(1.0 / n):08x}, {sq}",
             f"v_fma_f32 {sq}, -{sm}, {sm}, {sq}",
             f"v_max_f32 {sq}, 0, {sq}"]
        if self.c.mimic:
            L += self.bf16r(sq, sq)
            L += [f"v_add_f32 {sq}, 0x{f2u(1e-5):08x}, {sq}"]
            L += self.bf16r(sq, sq)
            L += [f"v_sqrt_f32 {sq}, {sq}"]
            L += self.bf16r(sm, sm)
            L += self.bf16r(sq, sq)
            L += [f"v_rcp_f32 {rho}, {sq}"]
        else:
            L += [f"v_add_f32 {sq}, 0x{f2u(1e-5):08x}, {sq}", f"v_rsq_f32 {rho}, {sq}"]
        L += [f"v_mul_f32_e64 {nmr}, -{sm}, {rho}"]
        return L

    def build(self):
        c, e, V, A, S = self.c, self.e, self.V, self.A, self.S
        global L_TBL, L_K, L_H0, L_V, L_H1, L_RING, L_RED
        if c.h_full:
            L_H0 = 2048
            L_H1 = L_H0 + HB
            L_V = L_H0 + 2 * HB
            L_K = L_V - 80 * 144
            L_TBL = L_H0 + 4 * HB
            L_RING = L_TBL + 4096
            L_RED = L_K
            LH = [L_H0 + k * HB for k in range(4)]
        else:
            LH = [L_H0, L_H1, L_H0, L_H1]
        X, WQ, WO, WG, WU, WD, WM, OUT, WS, CC = [f"s[{4 + 4 * i}:{7 + 4 * i}]" for i in range(10)]
        e("s_cmp_ge_u32 s2, 256")
        e("s_cbranch_scc1 Lexit")
        if c.stamps:
            self.stamp_regs = [S.alloc(2) for _ in range(min(14, len(c.stamps) * (2 if c.rt else 1) + 2))]
            self.rt0, self.rt1 = S.alloc(2), S.alloc(2)
            e(f's_memrealtime {self.rt0}')
        self.stamp("t0")
        if c.dbg:
            self.d0, self.d1, self.dp = S.alloc(2), S.alloc(2), S.alloc(2)
            e(f"s_memtime {self.d0}\ns_memrealtime {self.d1}\ns_load_dwordx2 {self.dp}, s[0:1], 80")
        srds = {0: (0, 2048 * 1024), 6: (64, 512 * 6144), 9: (56, 1024), 8: (88, WS_SIZE if not c.exp_dirty else 0x2000000), 1: (8, 512 * 3072), 2: (16, 512 * 1024),
                3: (32, 512 * 3584), 4: (40, 512 * 3584), 5: (48, 1792 * 1024), 7: (72, 2048 * 1024)}

        def srd_ptr(i):
            e(f"s_load_dwordx2 s[{4 + 4 * i}:{5 + 4 * i}], s[0:1], {srds[i][0]}")

        def srd_words(i):
            e(f"s_mov_b32 s{6 + 4 * i}, {srds[i][1]}")
            e(f"s_mov_b32 s{7 + 4 * i}, 0x20000")
        for i in (0, 6, 9, 8):
            srd_ptr(i)
        sa = lambda: S.alloc(1)
        s_w, s_tb, s_kh, s_g, s_m, s_hg, s_TB = [sa() for _ in range(7)]
        self.s_w1k, self.s_so, self.s_spin, self.s_tag, self.s_mode, self.s_so2 = [sa() for _ in range(6)]
        s_w1k, s_tag = self.s_w1k, self.s_tag
        t0, t1, t2, t3 = [sa() for _ in range(4)]
        s_idx, s_col0, s_flb, s_tile, s_hh = sa(), sa(), sa(), sa(), sa()
        v_l, v_t, v_hh = V.alloc(), V.alloc(), V.alloc()
        self.v_tmp, self.v_tmp2 = V.alloc(), V.alloc()
        self.s_rt = Reg('s', 3, 1)
        self.v_tag = V.alloc()
        u0, u1, u2, u3 = [V.alloc() for _ in range(4)]
        v_dq, v_dw, v_dd, v_dA = [V.alloc() for _ in range(4)]
        v_fl, v_l16, v_trn = V.alloc(), V.alloc(), V.alloc()
        a_dummy = A.alloc_top(4)
        hinit = {}
        v_c, v_wm, v_x = V.alloc(), V.alloc(), V.alloc()
        e(f"""s_and_b32 {t3}, s2, 7
        s_lshr_b32 {s_idx}, s2, 3
        s_lshr_b32 {t0}, {s_idx}, 3
        s_lshl_b32 {t0}, {t0}, 6
        s_lshl_b32 {t1}, {t3}, 8
        s_add_u32 {t0}, {t0}, {t1}
        s_sub_u32 {t0}, {t0}, 16
        v_lshrrev_b32 {u2}, 6, v0
        v_mul_u32_u24 {u0}, 20, {u2}
        v_bfe_u32 {u1}, v0, 4, 2
        v_add3_u32 {u0}, {u0}, {u1}, {t0}
        v_and_b32 {u1}, 15, v0
        v_lshlrev_b32 {u0}, 10, {u0}
        v_lshl_add_u32 {v_x}, {u1}, 4, {u0}""")
        srd_words(0)
        s_rx = [sa() for _ in range(4)]
        pre2 = f"""s_min_u32 {t0}, {s_idx}, 23
        s_lshr_b32 {t1}, {t0}, 2
        s_lshl_b32 {t1}, {t1}, 3
        s_add_u32 {s_col0}, {t1}, {t3}
        s_and_b32 {t0}, {t0}, 3
        s_lshl_b32 {t0}, {t0}, 7
        v_lshrrev_b32 {u0}, 3, v0
        v_add_u32 {u0}, {t0}, {u0}
        v_lshlrev_b32 {v_c}, 1, {u0}
        v_mul_u32_u24 {v_wm}, 6144, {u0}
        v_and_b32 {u1}, 7, v0
        v_lshlrev_b32 {u1}, 4, {u1}
        s_lshl_b32 {t0}, {s_col0}, 7
        v_add3_u32 {v_wm}, {v_wm}, {u1}, {t0}"""
        pre3 = f"""v_readfirstlane_b32 {s_w}, {u2}
        v_and_b32 {v_l}, 63, v0
        v_and_b32 {v_t}, 31, v0
        v_lshrrev_b32 {v_hh}, 5, {v_l}
        s_lshr_b32 {t0}, {s_idx}, 4
        s_lshl_b32 {s_g}, {t3}, 1
        s_add_u32 {s_g}, {s_g}, {t0}
        s_and_b32 {s_m}, {s_idx}, 15
        s_and_b32 {s_hg}, {s_m}, 7
        s_and_b32 {s_tb}, {s_w}, 1
        s_lshr_b32 {s_kh}, {s_w}, 1
        s_lshl_b32 {s_w1k}, {s_w}, 10
        s_lshl_b32 {s_TB}, {s_g}, 2
        s_lshr_b32 {t0}, {s_m}, 3
        s_lshl_b32 {t0}, {t0}, 1
        s_add_u32 {s_TB}, {s_TB}, {t0}
        s_add_u32 {s_TB}, {s_TB}, {s_tb}"""
        cv = V.alloc(4)
        wmv = V.alloc(16)
        XN = [[None] * 4 for _ in range(5)]
        xn_all = V.alloc_top(184)
        for i in range(5):
            for ch in range(4):
                XN[i][ch] = xn_all.sub((((ch + 3) % 4) * 5 + i) * 8, 8)
        def lines(srd, n, base_code, stride=128):
            return base_code + [f"v_mul_u32_u24 {u0}, {stride}, {v_l}", f"v_cmp_le_u32 vcc, {n}, {v_l}", f"v_add_u32 {u0}, {t0}, {u0}",
                                f"v_cndmask_b32 {u0}, {u0}, -1, vcc",
                                lambda: e(f"buffer_load_dword {a_dummy[0]}, {u0}, {srd}, 0 offen", track=False)]

        def mall(srd, n):
            return lines(srd, n, [f"s_lshl_b32 {t0}, s2, 2", f"s_add_u32 {t0}, {t0}, {s_w}", f"s_mul_i32 {t0}, {t0}, {n * 128}"])

        def touch3(srd, rows, pitch):
            return lines(srd, rows, [f"s_lshl_b32 {t0}, {s_idx}, 2", f"s_add_u32 {t0}, {t0}, {s_w}", f"s_mul_i32 {t0}, {t0}, {rows * pitch}",
                                     f"s_add_u32 {t0}, {t0}, 384"], stride=pitch)

        def run(L):
            for t in L:
                t() if callable(t) else e(t)
        xld = []
        for i in range(5):
            for ch in range(4):
                t = f"buffer_load_dwordx4 {XN[i][ch].sub(4, 4)}, {v_x}, {X}, 0 offen offset:{256 * ch}"
                if ch == 3 and i < 4:
                    t += f"\nv_add_u32 {v_x}, 4096, {v_x}"
                xld.append(t)
        e.wait_all_lg()
        self.stamp("ka")
        self.exp_delay("start")
        if c.touch:
            srd_words(6)
            e(f"""v_and_b32 {u1}, 63, v0
            v_mul_u32_u24 {u0}, 20, {u2}
            v_add3_u32 {u0}, {u0}, {u1}, {t0}
            v_lshlrev_b32 {u0}, 10, {u0}
            s_and_b32 {t1}, {s_idx}, 7
            s_lshl_b32 {t1}, {t1}, 7
            v_cmp_lt_u32 vcc, 19, {u1}
            v_add_u32 {u0}, {t1}, {u0}
            s_min_u32 {t0}, {s_idx}, 23
            v_cndmask_b32 {u0}, {u0}, -1, vcc""")
            e(f"buffer_load_dword {a_dummy[0]}, {u0}, {X}, 0 offen", track=False)
        if c.code_pf0:
            e(f"""s_getpc_b64 vcc
            v_and_b32 {u1}, 63, v0
            v_lshlrev_b32 {u1}, 6, {u1}""")
            e(f"global_load_dword {a_dummy[0]}, {u1}, vcc", track=False)
        for t in xld[:c.nx_pre]:
            e(t)
        xld2 = xld[c.nx_pre:c.nx_first]
        xld = xld[c.nx_first:]
        srd_words(6); srd_words(9)
        e(pre2)
        for i in range(4):
            e(f"buffer_load_ushort {cv[i]}, {v_c}, {CC}, 0 offen offset:{64 * i}")
        wld = [(f"s_mov_b32 {self.s_so}, {i * 32 * 6144}\n" if i else "") +
               f"buffer_load_dwordx4 {wmv.sub(4 * i, 4)}, {v_wm}, {WM}, {self.s_so if i else 0} offen" for i in range(4)]
        if c.w_first:
            e(f"""s_cmp_ge_u32 {s_idx}, {c.w_first}
            s_cselect_b32 s30, 0, s30""")
            run(wld)
        self.stamp("wis")
        e(f"s_load_dword {s_tag}, s[36:37], {WS_E}")
        for i in (1, 2, 3, 4, 5, 7):
            srd_ptr(i)
        for i in (8, 1, 2, 3, 4, 5, 7):
            srd_words(i)
        e(pre3)
        if c.tlb:
            e(f"v_lshlrev_b32 {u0}, 21, {v_l}")
            for srd in (WQ, WS, WO, WG, WU, WD, OUT):
                e(f"buffer_load_dword {a_dummy[0]}, {u0}, {srd}, 0 offen offset:2048", track=False)
        s_st = sa()
        a_stw = A.alloc(1)
        e(f"""s_lshl_b32 {t0}, {s_TB}, 1
        s_add_u32 {t0}, {t0}, {s_kh}
        s_lshl_b32 {t0}, {t0}, 10
        s_and_b32 {t1}, {s_hg}, 3
        s_lshl_b32 {t1}, {t1}, 2
        s_add_u32 {t0}, {t0}, {t1}
        s_add_u32 {s_st}, {t0}, {WS_STATS}
        v_lshlrev_b32 {v_l16}, 4, {v_l}
        s_lshl_b32 {t1}, {s_hg}, 2
        v_xor_b32 {u0}, {t1}, {v_l}
        v_lshlrev_b32 {u0}, 27, {u0}
        v_and_b32 {u0}, 0x80000000, {u0}
        v_or_b32 {u0}, {u0}, {v_l16}
        v_mov_b32 {u3}, -1
        v_accvgpr_write_b32 {a_stw}, {u0}""")
        tok_init = e(f"buffer_store_dword {u3}, {u0}, {WS}, {s_st} offen sc1")
        late_ops = []
        if c.code_pf:
            pc = 's[0:1]'
            e(f"""s_getpc_b64 {pc}
            s_lshl_b32 {t0}, {s_idx}, 2
            s_add_u32 {t0}, {t0}, {s_w}
            s_mul_i32 {t0}, {t0}, 320
            v_mul_u32_u24 {u0}, 5, {v_l}
            v_add_u32 {u0}, {t0}, {u0}
            v_and_b32 {u0}, -4, {u0}
            v_min_u32 {u0}, Lcode_end-Lcode_pf-4, {u0}""")
            e.label("Lcode_pf")
            e(f"global_load_dword {a_dummy[0]}, {u0}, {pc}", track=False)
        if c.mall_q:
            if c.mallq_early:
                run(mall(WQ, 12))
            else:
                late_ops += mall(WQ, 12)
        self.lds.add(L_RING, L_END - L_RING)
        UQ = [Unit(f"q{u}", 12288, [(WQ, v_dq, (str(s_rx[u & 3]), 6, (u // 4) * 393216), mt * 1024, mt * 1024) for mt in range(3)]) for u in range(16)]
        s_w3k = sa()
        for u in UQ:
            u.wreg = s_w3k
        s_mo = sa()
        UO = [Unit(f"o{i}", 8192, [(WO, v_dw, (str(s_mo), "x", (2 * i + h) * 16384), 0, 4096 * h) for h in range(2)]) for i in range(8)]
        v_dA2 = V.alloc()
        vA = lambda u: v_dA2 if (u >> c.gbit) & 1 else v_dA
        uo = lambda u: (u & ~(1 << c.gbit)) * 32 * 3584
        UA = [Unit(f"a{u}", 8192 + 64, [(WG, vA(u), uo(u), 0, 0), (WU, vA(u), uo(u), 0, 4096 + 32)]) for u in range(16)]
        UB = [Unit(f"b{u}", 8192 + 64, [(WG, vA(u), uo(u), 128, 0), (WU, vA(u), uo(u), 128, 4096 + 32)]) for u in range(16)]
        fbA = [8 * mm + cb for mm in range(7) for cb in range(4)]
        fbB = [8 * mm + 4 + cb for mm in range(7) for cb in range(4)]
        fbs = fbA + fbB
        UD = [Unit(f"d{i}", 8192, [(WD, v_dd, (str(s_rx[0 if fbs[2 * i] < 48 else 1]), "x", fbs[2 * i + h] * 16384), 0, 4096 * h) for h in range(2)])
              for i in range(28)]
        UG = UA + UB
        staged = UG[c.n_dir:c.n_dir + c.n_stage]
        self.stq = list(staged)
        self.queue = UQ + UO + UG[:c.n_dir] + UG[c.n_dir + c.n_stage:] + UD
        v_r8, v_b64 = V.alloc(), V.alloc()
        addr_code = f"""v_lshlrev_b32 {v_r8}, 2, {v_hh}
        v_bfe_u32 {u0}, {v_l}, 2, 2
        v_add_u32 {v_r8}, {v_r8}, {u0}
        v_bfe_u32 {u0}, {v_l}, 4, 1
        v_lshlrev_b32 {u0}, 6, {u0}
        v_and_b32 {u1}, 3, {v_l}
        v_lshlrev_b32 {u1}, 4, {u1}
        v_add_u32 {v_b64}, {u0}, {u1}
        s_lshl_b32 {t0}, {s_w}, 3
        v_add_u32 {u0}, {t0}, {v_r8}
        v_mul_u32_u24 {u1}, 3072, {u0}
        s_lshl_b32 {t2}, {s_hg}, 7
        s_lshl_b32 {t1}, {s_tb}, 5
        v_xor_b32 {u2}, {t1}, {v_b64}
        v_add3_u32 {v_dq}, {u1}, {u2}, {t2}
        v_mul_u32_u24 {v_dA}, 3584, {u0}
        s_lshl_b32 {t0}, {s_kh}, 8
        s_lshl_b32 {t1}, {s_tb}, 3
        s_add_u32 {t0}, {t0}, {t1}
        v_add_u32 {u0}, {t0}, {v_r8}
        v_lshlrev_b32 {u0}, 10, {u0}
        v_add3_u32 {v_dw}, {u0}, {u2}, {t2}
        s_mul_i32 {t0}, {s_kh}, {56 * 16}
        s_add_u32 {t0}, {t0}, {t1}
        v_add_u32 {u0}, {t0}, {v_r8}
        v_lshlrev_b32 {u0}, 10, {u0}
        v_lshlrev_b32 {u1}, 5, {v_hh}
        v_xor_b32 {u1}, {u1}, {v_b64}
        v_add3_u32 {v_dd}, {u0}, {u1}, {t2}
        s_lshl_b32 {t3}, {s_m}, 8
        v_add3_u32 {v_dA}, {v_dA}, {u1}, {t3}
        s_lshr_b32 {t3}, {s_idx}, 4
        s_mul_i32 {t3}, {t3}, {(32 * 3584 << c.gbit) if c.rot & 2 else 0}
        s_sub_u32 {t2}, {32 * 3584 << c.gbit}, {t3}
        v_add_u32 {v_dA2}, {t2}, {v_dA}
        v_add_u32 {v_dA}, {t3}, {v_dA}"""
        addr_code += f"""
        s_mul_i32 {s_w3k}, {s_w}, 3072
        v_and_b32 {u0}, 3, {v_l}
        v_lshlrev_b32 {u0}, 3, {u0}
        v_bfe_u32 {u1}, {v_l}, 2, 2
        v_lshlrev_b32 {u1}, 6, {u1}
        v_add_u32 {u0}, {u0}, {u1}
        v_bfe_u32 {u1}, {v_l}, 4, 1
        v_lshlrev_b32 {u1}, 5, {u1}
        v_add_u32 {v_trn}, {u0}, {u1}
        s_lshl_b32 {t0}, {s_g}, 11
        s_and_b32 {t1}, {s_TB}, 3
        s_lshl_b32 {t1}, {t1}, 7
        s_add_u32 {t0}, {t0}, {t1}
        s_add_u32 {s_flb}, {t0}, {WS_FLAGS}
        s_lshl_b32 {t1}, {s_hg}, 3
        s_lshl_b32 {t2}, {s_kh}, 2
        s_add_u32 {t1}, {t1}, {t2}
        s_add_u32 {t1}, {t1}, {s_flb}
        v_mov_b32 {v_fl}, {t1}"""
        al = [l.strip() for l in addr_code.split("\n")]
        run(al)
        if c.rot & 1:
            e(f"s_lshr_b32 {s_rx[0]}, {s_idx}, 3\ns_lshl_b32 {s_rx[0]}, {s_rx[0]}, 14")
        else:
            e(f"s_mov_b32 {s_rx[0]}, 0")
        for k in range(1, 4):
            e(f"s_xor_b32 {s_rx[k]}, {s_rx[0]}, {16384 * k}")
        e(f"s_lshl_b32 {s_mo}, {s_rx[0]}, 1")
        parked = {}

        def park(name, reg):
            parked[name] = A.alloc(1)
            e(f"v_accvgpr_write_b32 {parked[name]}, {reg}")

        def unpark(name, reg, keep=False):
            t = f"v_accvgpr_read_b32 {reg}, {parked[name]}"
            return t

        def addr_of(L, name):
            run(L[:-1])
            park(name, u0)
        addr_of(mall(WO, 4), "m4"); addr_of(mall(WG, 14), "m14"); addr_of(touch3(WQ, 12, 1024), "t3q")
        w0, w1 = v_r8, v_b64
        e(f"""s_mul_i32 {t0}, {s_tb}, {32 * 272}
        s_add_u32 {t0}, {t0}, {16 * 272}
        v_and_b32 {u1}, 15, {v_l}
        v_mul_u32_u24 {u2}, 272, {u1}
        v_add_u32 {u0}, 4, {u1}
        v_and_b32 {u0}, 8, {u0}
        v_lshlrev_b32 {u0}, 1, {u0}
        v_and_b32 {u3}, 48, {v_l}
        v_xor_b32 {u0}, {u0}, {u3}
        v_add_u32 {w1}, {u0}, {u2}
        v_add_u32 {w0}, {t0}, {w1}""")
        park("hm", w0); park("hhalo", w1)
        e(f"""v_lshlrev_b32 {w0}, 5, {u1}
        v_lshrrev_b32 {u2}, 4, {v_l}
        s_mul_i32 {t0}, {s_w}, 20
        v_add_u32 {u2}, {t0}, {u2}
        v_mul_u32_u24 {u2}, 272, {u2}
        s_lshr_b32 {t0}, {s_rx[0]}, 12
        v_xor_b32 {u3}, {t0}, {u1}""")
        park("cst", w0); park("hw", u2); park("hp", u3)
        e(f"""v_lshrrev_b32 {u0}, 4, {v_l}
        v_mul_u32_u24 {u0}, 3072, {u0}
        s_lshl_b32 {t1}, {s_tb}, 5
        v_xor_b32 {u2}, {t1}, {v_trn}
        s_lshl_b32 {t0}, {s_kh}, 8
        v_add3_u32 {w0}, {u2}, {u0}, {t0}
        s_and_b32 {t0}, s2, {NCOPY - 1}
        s_mul_i32 {t0}, {t0}, {GCOPY}
        s_add_u32 {t0}, {t0}, {WS_G}
        v_lshl_add_u32 {w1}, v0, 4, {t0}""")
        park("wq", w0); park("g1", w1)

        def deferred(f0, f1, f2, f3, f4):
            def pk(name, reg):
                parked[name] = A.alloc(1)
                return f"v_accvgpr_write_b32 {parked[name]}, {reg}"

            def t3(name, rows):
                return f"""s_lshl_b32 {t0}, {s_idx}, 2
                s_add_u32 {t0}, {t0}, {s_w}
                s_mul_i32 {t0}, {t0}, {rows * 1024}
                s_add_u32 {t0}, {t0}, 384
                v_lshl_add_u32 {f0}, {v_l}, 10, {t0}
                v_sub_u32 {f1}, {rows - 1}, {v_l}
                v_and_b32 {f1}, 0x80000000, {f1}
                v_or_b32 {f0}, {f0}, {f1}
                {pk(name, f0)}"""
            T = f"""s_and_b32 {t0}, s2, {NCOPY - 1}
            s_mul_i32 {t0}, {t0}, {GCOPY}
            s_lshl_b32 {t2}, {s_w}, 11
            s_lshl_b32 {t1}, {s_hg}, 8
            s_add_u32 {t1}, {t1}, {t0}
            s_add_u32 {t1}, {t1}, {t2}
            s_add_u32 {t1}, {t1}, {WS_G + 4096}
            v_and_b32 {f4}, 15, {v_l}
            v_lshl_add_u32 {f0}, {f4}, 4, {t1}
            {pk("g2", f0)}
            s_lshl_b32 {t0}, {s_g}, 6
            v_lshl_add_u32 {f0}, {f4}, 2, {t0}
            {pk("gx", f0)}
            {t3("t3o", 4)}
            {t3("t3d", 14)}
            s_sub_u32 {t1}, {s_TB}, {s_tb}
            s_lshl_b32 {t1}, {t1}, 5
            s_lshl_b32 {t2}, {s_w}, 4
            s_add_u32 {t1}, {t1}, {t2}
            v_lshrrev_b32 {f0}, 3, {v_l}
            v_add_u32 {f1}, {t1}, {f0}
            v_lshlrev_b32 {f1}, 10, {f1}
            v_and_b32 {f2}, 7, {v_l}
            v_lshlrev_b32 {f2}, 4, {f2}
            s_lshl_b32 {t1}, {s_hg}, 7
            v_add3_u32 {f1}, {f1}, {f2}, {t1}
            v_add_u32 {f0}, {t2}, {f0}
            v_mul_u32_u24 {f0}, 144, {f0}
            v_add_u32 {f0}, {f0}, {f2}
            {pk("xl", f1)}
            {pk("xw", f0)}
            s_lshl_b32 {t0}, {s_TB}, 5
            s_lshl_b32 {t1}, {s_hg}, 2
            s_add_u32 {t0}, {t0}, {t1}
            s_lshl_b32 {t1}, {s_kh}, 1
            s_add_u32 {t0}, {t0}, {t1}
            s_lshl_b32 {t0}, {t0}, 10
            s_add_u32 {s_tile}, {t0}, {WS_O}
            v_xor_b32 {f3}, {s_tb}, {v_hh}
            v_lshlrev_b32 {f0}, 9, {f3}
            v_bfe_u32 {f1}, {v_l}, 4, 1
            v_lshl_add_u32 {f0}, {f1}, 10, {f0}
            v_lshlrev_b32 {f1}, 4, {f4}
            v_add3_u32 {v_o}, {f0}, {f1}, {s_tile}
            s_lshl_b32 {t0}, {s_g}, 11
            s_add_u32 {t0}, {t0}, {WS_FLAGS}
            s_lshl_b32 {t1}, {s_w}, 9
            s_add_u32 {t0}, {t0}, {t1}
            v_lshl_add_u32 {f0}, {v_l}, 3, {t0}
            {pk("fpre", f0)}
            s_lshl_b32 {t0}, {s_TB}, 5
            s_lshl_b32 {t1}, {s_kh}, 4
            s_add_u32 {t0}, {t0}, {t1}
            v_add_u32 {f0}, {t0}, {f4}
            v_lshlrev_b32 {f0}, 10, {f0}
            v_and_b32 {f1}, 16, {v_l}
            v_lshl_add_u32 {f0}, {f1}, 1, {f0}
            s_lshl_b32 {t0}, {s_hg}, 7
            v_lshlrev_b32 {f1}, 4, {v_hh}
            v_add3_u32 {f0}, {f0}, {f1}, {t0}
            {pk("xres", f0)}
            s_lshl_b32 {t0}, {s_g}, 2
            s_add_u32 {t0}, {t0}, {s_w}
            s_mul_i32 {t0}, {t0}, 112
            s_lshl_b32 {t1}, {s_m}, 3
            s_add_u32 {t0}, {t0}, {t1}
            s_lshl_b32 {t0}, {t0}, 10
            s_add_u32 {s_hh}, {t0}, {WS_HH}
            s_cmp_ge_u32 {s_m}, 14|s_cselect_b32 {s_hh}, 0x40000000, {s_hh}
            s_lshl_b32 {t0}, {s_tb}, 5
            s_add_u32 {t0}, {t0}, 2
            v_add_u32 {f2}, {t0}, {v_t}
            v_mul_u32_u24 {f0}, 144, {f2}
            v_mul_u32_u24 {f2}, 272, {f2}
            s_lshl_b32 {t1}, {s_kh}, 7
            s_lshl_b32 {t2}, {s_kh}, 6
            v_lshl_add_u32 {f0}, {f3}, 5, {f0}
            v_lshl_add_u32 {f2}, {f3}, 6, {f2}
            v_add_u32 {v_kr}, {t2}, {f0}
            v_add_u32 {v_vr}, {t1}, {f2}
            s_lshl_b32 {t0}, {s_tb}, 5
            s_add_u32 {t2}, {t2}, {t0}
            s_lshl_b32 {t1}, {t2}, 1
            v_mul_u32_u24 {f0}, 144, {f4}
            v_mul_u32_u24 {f2}, 272, {f4}
            v_and_b32 {f1}, 48, {v_l}
            v_add3_u32 {v_vh}, {f2}, {f1}, {t1}
            v_lshrrev_b32 {f1}, 1, {f1}
            v_add3_u32 {v_kh}, {f0}, {f1}, {t2}
            s_mul_i32 {t0}, {s_tb}, {32 * 144}
            s_add_u32 {t0}, {t0}, {16 * 144}
            v_add_u32 {v_kw[0]}, {t0}, {v_kh}
            s_mul_i32 {t0}, {s_tb}, {32 * 144 - 64}
            s_add_u32 {t0}, {t0}, {16 * 144 + 32}
            v_add_u32 {v_kw[1]}, {t0}, {v_kh}
            s_mul_i32 {t0}, {s_tb}, {32 * 272}
            s_add_u32 {t0}, {t0}, {16 * 272}
            v_add_u32 {v_vw[0]}, {t0}, {v_vh}
            s_mul_i32 {t0}, {s_tb}, {32 * 272 - 128}
            s_add_u32 {t0}, {t0}, {16 * 272 + 64}
            v_add_u32 {v_vw[1]}, {t0}, {v_vh}"""
            return [t.strip().replace("|", "\n") for t in T.split("\n") if t.strip()]
        V.release(v_r8, v_b64, v_c)
        run(xld2)
        late_ops2 = [lambda: run(late_ops)]
        self.stamp("iss")
        st = V.alloc(16)
        rm = V.alloc(4)

        def unpack_acc(i):
            L = []
            o = 8 * (i & 1)
            for ch in range(4):
                r = XN[i][ch]
                for j in range(3):
                    L.append(f"v_lshlrev_b32 {r[2 * j]}, 16, {r[4 + j]}")
                    L.append(f"v_and_b32 {r[2 * j + 1]}, 0xffff0000, {r[4 + j]}")
                L.append(f"v_lshlrev_b32 {r[6]}, 16, {r[7]}")
                L.append(f"v_and_b32 {r[7]}, 0xffff0000, {r[7]}")
                for j in range(4):
                    sm, sq = st.sub(o + 2 * (j & 1), 2), st.sub(o + 4 + 2 * (j & 1), 2)
                    p = r.sub(2 * j, 2)
                    if ch == 0 and j < 2:
                        L.append(f"v_pk_add_f32 {sm}, {p}, {r.sub(2 * j + 4, 2)}")
                        L.append(f"v_pk_mul_f32 {sq}, {p}, {p}")
                    else:
                        if ch:
                            L.append(f"v_pk_add_f32 {sm}, {sm}, {p}")
                        L.append(f"v_pk_fma_f32 {sq}, {p}, {p}, {sq}")
            return L

        def reduce_norm(i):
            o = 8 * (i & 1)
            sm, sq = st[o], st[o + 4]
            L = [f"v_pk_add_f32 {st.sub(o, 2)}, {st.sub(o, 2)}, {st.sub(o + 2, 2)}",
                 f"v_pk_add_f32 {st.sub(o + 4, 2)}, {st.sub(o + 4, 2)}, {st.sub(o + 6, 2)}",
                 f"v_add_f32 {sm}, {sm}, {st[o + 1]}", f"v_add_f32 {sq}, {sq}, {st[o + 5]}"]
            for ror in (8, 4, 2, 1):
                L.append(f"v_add_f32_dpp {sm}, {sm}, {sm} row_ror:{ror} row_mask:0xf bank_mask:0xf")
                L.append(f"v_add_f32_dpp {sq}, {sq}, {sq} row_ror:{ror} row_mask:0xf bank_mask:0xf")
            pr = rm.sub(2 * (i & 1), 2)
            L += self.finish_stats(sm, sq, pr[0], pr[1], 512)
            for ch in range(4):
                for j in range(4):
                    p = XN[i][ch].sub(2 * j, 2)
                    L.append(f"v_pk_fma_f32 {p}, {p}, {pr}, {pr} op_sel:[0,0,1] op_sel_hi:[1,0,1]")
            return L

        def ln_stage(i):
            a, b = (unpack_acc(i) if i < 5 else []), (reduce_norm(i - 1) if i else [])
            m = []
            while a or b:
                if a: m.append(a.pop(0))
                if a: m.append(a.pop(0))
                if b: m.append(b.pop(0))
            return m
        sv = xn_all.sub(160, 8)
        P = []
        P += [f"v_lshlrev_b32 {cv[i]}, 16, {cv[i]}" for i in range(4)]
        P += [f"v_mul_f32 {sv[2 * i]}, 0xbfb8aa3b, {cv[i]}" for i in range(4)]
        P += [f"v_exp_f32 {sv[2 * i]}, {sv[2 * i]}" for i in range(4)]
        P += [f"v_add_f32 {sv[2 * i]}, 1.0, {sv[2 * i]}" for i in range(4)]
        P += [f"v_rcp_f32 {sv[2 * i]}, {sv[2 * i]}" for i in range(4)]
        P += [f"v_mul_f32 {sv[2 * i]}, {cv[i]}, {sv[2 * i]}" for i in range(4)]
        P += [self.bf16r(sv[2 * i], sv[2 * i])[0] for i in range(4)] + [self.bf16r(sv[2 * i], sv[2 * i])[1] for i in range(4)]
        P.append(lambda: self.stamp("silu"))
        pa = xn_all.sub(168, 8)
        wf = xn_all.sub(176, 8)
        for i in range(4):
            if i == 1:
                P.append(lambda: self.stamp("w0"))
            for j in range(4):
                P.append(f"v_lshlrev_b32 {wf[2 * j]}, 16, {wmv[4 * i + j]}")
                P.append(f"v_and_b32 {wf[2 * j + 1]}, 0xffff0000, {wmv[4 * i + j]}")
            for j in range(4):
                if i == 0:
                    P.append(f"v_pk_mul_f32 {pa.sub(2 * j, 2)}, {wf.sub(2 * j, 2)}, {sv.sub(0, 2)} op_sel_hi:[1,0]")
                else:
                    P.append(f"v_pk_fma_f32 {pa.sub(2 * j, 2)}, {wf.sub(2 * j, 2)}, {sv.sub(2 * i, 2)}, {pa.sub(2 * j, 2)} op_sel_hi:[1,0,1]")
        P.append(lambda: self.stamp("w3"))
        P += [f"v_and_b32 {u0}, 7, {v_l}", f"v_lshlrev_b32 {u0}, 5, {u0}"]
        P += [f"v_permlane32_swap_b32 {pa[j]}, {pa[j + 4]}" for j in range(4)]
        P += [f"v_add_f32 {pa[j]}, {pa[j]}, {pa[j + 4]}" for j in range(4)]
        P += [f"v_lshrrev_b32 {u1}, 4, {v_l}"]
        P += [f"v_permlane16_swap_b32 {pa[j]}, {pa[j + 2]}" for j in range(2)]
        P += [f"v_add_f32 {pa[j]}, {pa[j]}, {pa[j + 2]}" for j in range(2)]
        P += [f"v_lshl_add_u32 {u0}, {u1}, 3, {u0}", f"s_lshl_b32 {t0}, {s_w}, 8"]
        P += [f"v_add_f32_dpp {pa[j]}, {pa[j]}, {pa[j]} row_ror:8 row_mask:0xf bank_mask:0xf" for j in range(2)]
        P += [f"v_add_u32 {u0}, {t0}, {u0}", f"ds_write_b64 {u0}, {pa.sub(0, 2)} offset:{L_PART}"]
        s_tb4 = [sa() for _ in range(4)]
        pre_txt = []
        rec = e.out
        n0 = len(e.out)
        keep = (e.vm_issued, e.vm_done, list(e.hist), e.n_ins)
        for _ in range(c.n_pre):
            m = len(e.out)
            assert self.dma_step()
            pre_txt.append("\n".join(o.text for o in e.out[m:]))
        del e.out[n0:]
        e.vm_issued, e.vm_done, e.hist, e.n_ins = keep
        for u in UQ:
            if u.tok:
                u.tok = 0

        def p0(bg, rate):
            bg = self.interleave(P, bg, rate)
            pub()
            return bg

        def pub():
            e.wait_all_lg()
            e(f"""s_mul_i32 {s_tag}, {s_tag}, 0x9E3779B1
            s_add_u32 {s_tag}, {s_tag}, 0x7F4A7C18
            s_and_b32 {s_tag}, {s_tag}, 0xFFFFFFF8
            v_mov_b32 {self.v_tag}, {s_tag}
            s_lshr_b32 {s_tb4[0]}, {s_tag}, 3
            s_lshr_b32 {s_tb4[1]}, {s_tag}, 10
            s_lshr_b32 {s_tb4[2]}, {s_tag}, 17
            s_lshr_b32 {s_tb4[3]}, {s_tag}, 24""")
            self.stamp("tag")
            e.wait(vm=tok_init)
            self.barrier()
            Lsk = e.newlabel("Lnot0")
            e(f"s_cmp_lg_u32 {s_w}, 0")
            e(f"s_cbranch_scc1 {Lsk}")
            e.begin_cond(allow_lg=True)
            e.optional += 1
            e(f"""v_and_b32 {u0}, 15, {v_l}
            v_lshlrev_b32 {u1}, 4, {u0}""")
            pw = wmv
            for k in range(4):
                e(f"ds_read_b128 {pw.sub(4 * k, 4)}, {u1} offset:{L_PART + 256 * k}")
            e(f"""v_lshrrev_b32 {u2}, 4, {v_l}
            v_mul_u32_u24 {u2}, {GCOPY}, {u2}
            s_lshl_b32 {t0}, {s_col0}, 8
            s_and_b32 {t1}, {s_idx}, 3
            s_mul_i32 {t1}, {t1}, {GQ}
            s_add_u32 {t0}, {t0}, {t1}
            s_add_u32 {t0}, {t0}, {WS_G}
            v_add3_u32 {u2}, {u2}, {u1}, {t0}
            v_mov_b32 {u0}, 0xff""")
            for h in range(2):
                e(f"v_pk_add_f32 {pw.sub(2 * h, 2)}, {pw.sub(2 * h, 2)}, {pw.sub(4 + 2 * h, 2)}")
                e(f"v_pk_add_f32 {pw.sub(8 + 2 * h, 2)}, {pw.sub(8 + 2 * h, 2)}, {pw.sub(12 + 2 * h, 2)}")
            for h in range(2):
                e(f"v_pk_add_f32 {pw.sub(2 * h, 2)}, {pw.sub(2 * h, 2)}, {pw.sub(8 + 2 * h, 2)}")
            for k in range(4):
                e(f"v_bfi_b32 {pw[k]}, {u0}, {s_tb4[k]}, {pw[k]}")
            e(f"s_cmp_ge_u32 {s_idx}, 24")
            Lnp = e.newlabel("Lnopub")
            e(f"s_cbranch_scc1 {Lnp}")
            e(f"buffer_store_dwordx4 {pw.sub(0, 4)}, {u2}, {WS}, 0 offen sc1")
            e.label(Lnp)
            e(f"""s_getreg_b32 {t0}, hwreg(HW_REG_XCC_ID)
            s_and_b32 {t0}, {t0}, 7
            s_or_b32 {t0}, {t0}, {s_tag}
            v_mov_b32 {u0}, {t0}
            s_lshl_b32 {t1}, {s_g}, 4
            s_add_u32 {t1}, {t1}, {s_m}
            s_lshl_b32 {t1}, {t1}, 2
            v_mov_b32 {u1}, {t1}
            s_mov_b64 exec, 1
            buffer_store_dword {u0}, {u1}, {WS}, 0 offen offset:{WS_XID} sc1
            s_mov_b64 exec, -1""")
            e.optional -= 1
            e.end_cond(Lsk)
            e.wait_all_lg()

        def t3q():
            if c.t3 & 1:
                e(unpark("t3q", u0))
                e(f"buffer_load_dword {a_dummy[0]}, {u0}, {WQ}, 0 offen", track=False)

        def ln(i, bg, rate):
            L = ln_stage(i)
            e(L[0])
            bg = self.interleave(L[1:], bg, rate)
            self.stamp(f"x{i}")
            return bg
        bg = list(xld)
        for i in range(c.nq_k):
            bg = ln(i, bg, c.x_rate0)
        bg = p0(bg, c.x_rate)
        self.stamp("pub")
        run(bg)
        bg = list(late_ops2) + [t3q] + list(pre_txt)
        for i in range(c.nq_k, 6):
            bg = ln(i, bg, c.pre_rate)
        run(bg)
        V.release(cv, wmv, v_x, v_wm)
        V.release(st, rm)
        v_cst, v_hm, v_hhalo = V.alloc(), V.alloc(), V.alloc()
        v_hw = V.alloc(4, align=1)
        v_wq, v_w1 = V.alloc(3, align=1), V.alloc(3, align=1)
        run([unpark("cst", v_cst), unpark("hw", u0), unpark("hp", u1), unpark("hm", v_hm), unpark("hhalo", v_hhalo), unpark("wq", v_wq[0])])
        for i in range(4):
            e(f"""s_add_u32 {t0}, {s_w}, {i + 1}
            s_bfe_u32 {t0}, {t0}, 0x10001
            v_xor_b32 {u2}, {t0}, {u1}
            v_lshl_add_u32 {v_hw[i]}, {u2}, 4, {u0}""")
        e(f"v_xor_b32 {v_w1[0]}, 32, {v_wq[0]}")
        for k in (1, 2):
            e(f"v_add_u32 {v_wq[k]}, {k * WIN}, {v_wq[0]}")
            e(f"v_add_u32 {v_w1[k]}, {k * WIN}, {v_w1[0]}")
        self.stamp("ln1")
        gq = V.alloc(16)
        s_q = [Reg('s', 3, 1), Reg('s', 0, 1), Reg('s', 1, 1)]
        for k in range(3):
            e(f"s_mov_b32 {s_q[k]}, {(k + 1) * GQ}")

        def g_loads(r, ad):
            return [f"buffer_load_dwordx4 {r.sub(4 * k, 4)}, {ad}, {WS}, {s_q[k - 1] if k else 0} offen sc1" for k in range(4)]

        def g_check(r, a, b):
            L = [f"v_xor_b32 {a}, {s_tb4[0]}, {r[0]}", f"v_xor_b32 {b}, {s_tb4[1]}, {r[1]}"]
            for k in range(2, 16):
                d = (a, b)[k & 1]
                L.append(f"v_bitop3_b32 {d}, {r[k]}, {s_tb4[k & 3]}, {d} bitop3:0xbe")
            L += [f"v_or_b32 {a}, {a}, {b}", f"v_and_b32 {a}, 0xff, {a}"]
            return L

        def g_sum(r, packed):
            L = [f"v_and_b32 {r[k]}, 0xffffff00, {r[k]}" for k in range(16)]
            for x, y in ((0, 4), (8, 12), (0, 8)):
                if packed:
                    L += [f"v_pk_add_f32 {r.sub(x + 2 * h, 2)}, {r.sub(x + 2 * h, 2)}, {r.sub(y + 2 * h, 2)}" for h in range(2)]
                else:
                    L += [f"v_add_f32 {r[x + h]}, {r[x + h]}, {r[y + h]}" for h in range(4)]
            L += [f"v_cvt_pk_bf16_f32 {r[0]}, {r[0]}, {r[1]}", f"v_cvt_pk_bf16_f32 {r[2]}, {r[2]}, {r[3]}"]
            return L
        run([unpark("g1", u1), f"v_lshlrev_b32 {u0}, 4, v0"])
        TO = L_TBL
        if c.h_full:
            TO = L_TBL - WIN
            v_hm2, v_hh2 = V.alloc(), V.alloc()
            e(f"""v_add_u32 {u0}, {WIN}, {u0}
            v_add_u32 {v_cst}, {WIN}, {v_cst}
            v_add_u32 {v_hm2}, {2 * HB}, {v_hm}
            v_add_u32 {v_hh2}, {2 * HB}, {v_hhalo}""")
        self.poll(g_loads(gq, u1), [], pre=g_check(gq, u2, u3) + [f"v_cmp_ne_u32 vcc, 0, {u2}"])
        self.stamp("mod")
        self.exp_delay("mod")
        self.bg_on(c.post_every, limit=[UQ[7]], stage=False)
        tv = V.alloc(4)

        def unp(d, a, b):
            return f"""v_lshlrev_b32 {d[0]}, 16, {a}
            v_and_b32 {d[1]}, 0xffff0000, {a}
            v_lshlrev_b32 {d[2]}, 16, {b}
            v_and_b32 {d[3]}, 0xffff0000, {b}"""
        run(g_sum(gq, True))
        e(unp(tv, gq[0], gq[2]))
        Lno = e.newlabel("Lnoa")
        e(f"s_cmp_lt_u32 {s_w}, 2")
        e(f"s_cbranch_scc1 {Lno}")
        e.begin_cond()
        e(f"""v_pk_add_f32 {tv.sub(0, 2)}, {tv.sub(0, 2)}, 1.0 op_sel_hi:[1,0]
        v_pk_add_f32 {tv.sub(2, 2)}, {tv.sub(2, 2)}, 1.0 op_sel_hi:[1,0]
        v_cvt_pk_bf16_f32 {gq[0]}, {tv[0]}, {tv[1]}
        v_cvt_pk_bf16_f32 {gq[2]}, {tv[2]}, {tv[3]}""")
        e(unp(tv, gq[0], gq[2]))
        e.end_cond(Lno)
        tok_tbl = e(f"ds_write_b128 {u0}, {tv} offset:{TO}")
        self.barrier(lg=tok_tbl)
        cst = V.alloc(16)
        cst1 = xn_all.sub(160, 16)

        def cst_reads(ch, r):
            return [f"ds_read_b128 {r.sub(0, 4)}, {v_cst} offset:{TO + 512 * ch}",
                    f"ds_read_b128 {r.sub(8, 4)}, {v_cst} offset:{TO + 2048 + 512 * ch}",
                    f"ds_read_b128 {r.sub(4, 4)}, {v_cst} offset:{TO + 512 * ch + 16}",
                    f"ds_read_b128 {r.sub(12, 4)}, {v_cst} offset:{TO + 2048 + 512 * ch + 16}"]

        def apply_valu(ch, i, r, packed):
            L = []
            for j in range(4):
                p = XN[i][ch].sub(2 * j, 2)
                if packed:
                    L.append(f"v_pk_fma_f32 {p}, {p}, {r.sub(8 + 2 * j, 2)}, {r.sub(2 * j, 2)}")
                else:
                    for h in range(2):
                        L.append(f"v_fma_f32 {p[h]}, {p[h]}, {r[8 + 2 * j + h]}, {r[2 * j + h]}")
            for j in range(4):
                L.append(f"v_cvt_pk_bf16_f32 {XN[i][ch][j]}, {XN[i][ch][2 * j]}, {XN[i][ch][2 * j + 1]}")
            return L

        wtok = {}

        def apply_write(ch, i):
            def f():
                if LH[ch] > 60000:
                    if i < 4:
                        e(f"v_add_u32 {v_hw[i]}, {2 * HB}, {v_hw[i]}")
                    wtok[ch] = e(f"ds_write_b128 {v_hw[i & 3]}, {XN[i][ch].sub(0, 4)} offset:{LH[ch] - 2 * HB + i * 4 * 272}")
                    return
                wtok[ch] = e(f"ds_write_b128 {v_hw[i & 3]}, {XN[i][ch].sub(0, 4)} offset:{LH[ch] + i * 4 * 272}")
            f.solo = True
            return f

        npre_ch = c.pre_chunks
        a_xr = A.alloc(8)

        def bgl(name, *loads):
            L = []
            for k, (t, trk) in enumerate(loads):
                L.append(lambda t=t, trk=trk, k=k: ((e(unpark(name, u0)) if name and k == 0 else None), e(t, track=trk)))
            return L
        tch = lambda srd: (f"buffer_load_dword {a_dummy[0]}, {u0}, {srd}, 0 offen", False)
        qhi = []

        def make_bg():
            pf = (bgl("m4", tch(WO)) + bgl("m14", tch(WG), tch(WU), tch(WD))) if c.mall_pf == 2 else []
            pf.append(lambda: e(f"s_cmp_ge_u32 {s_m}, 14\ns_cselect_b32 s18, 0, s18\ns_cselect_b32 s22, 0, s22"))
            if c.t3 & 2:
                pf += bgl("t3o", tch(WO))
            misc = bgl("xl", (f"buffer_load_dwordx4 {a_xr.sub(0, 4)}, {u0}, {X}, 0 offen", True),
                       (f"s_mov_b32 {t3}, 8192\nbuffer_load_dwordx4 {a_xr.sub(4, 4)}, {u0}, {X}, {t3} offen", True))
            if c.preread:
                misc += bgl(None, *[(f"buffer_load_dwordx4 {a_dummy}, {v_l16}, {WS}, {s_tile} offen offset:{1024 * k} sc1", False) for k in range(2)])
                misc += bgl("fpre", (f"buffer_load_dword {a_dummy[0]}, {u0}, {WS}, 0 offen sc1", False))
            if c.hh_fast == 2:
                misc += bgl("l128", (f"buffer_load_dword {a_dummy[0]}, {u0}, {WS}, {s_hh} offen sc1", False))
            if c.hh_fast == 1:
                misc += [lambda: (e(unpark("l128", u0)), e(f"v_or_b32 {u0}, 4096, {u0}"),
                                  e(f"buffer_load_dword {a_dummy[0]}, {u0}, {WS}, {s_hh} offen sc1", track=False))]
            def hh_init(k):
                def f():
                    e(f"s_add_u32 {t3}, {s_hh}, {(k >> 2) * 4096}")
                    hinit["tok"] = e(f"buffer_store_dwordx4 {a_ones}, {v_l16}, {WS}, {t3} offen offset:{1024 * (k & 3)} sc1")
                return f
            marks = [hh_init(k) for k in range(8) if c.sent & (1 << (k >> 2))]
            qhi.extend((pf + misc + marks) if c.pf_first else (misc + pf + marks))

        run(cst_reads(0, cst) + (cst_reads(1, cst1) if npre_ch > 1 else []))
        V.release(gq, tv)
        v_kh, v_vh, v_kr, v_vr, v_o = [V.alloc() for _ in range(5)]
        v_kw, v_vw = V.alloc(2, align=1), V.alloc(2, align=1)
        dfr = deferred(*[xn_all[16 + k] for k in range(5)])
        make_bg()
        assert c.pf_first and c.bg_n <= 5 and c.q_hi0 >= 12 and c.st_g2 >= 6 and not c.sent and not c.hh_fast
        nt = 0
        for ch in range(npre_ch):
            for i in range(5):
                if c.bg_early and nt % c.bg_early == 0 and qhi and nt // c.bg_early < c.bg_n:
                    qhi.pop(0)()
                nt += 1
                run(apply_valu(ch, i, (cst, cst1)[ch & 1], True))
                apply_write(ch, i)()
            if ch + 2 < npre_ch:
                run(cst_reads(ch + 2, (cst, cst1)[ch & 1]))
            elif npre_ch < 4 and ch == (npre_ch - 1) // 2 * 2:
                run(cst_reads(npre_ch, cst))
        if npre_ch < 4:
            for i in range(c.pre_tiles):
                run(apply_valu(npre_ch, i, cst, True))
        accQ, accS1, accS2, accH = [xn_all.sub(120 + 16 * k, 16) for k in range(4)]
        fr = [[A.alloc(4) for _ in range(9)] for _ in range(2)]
        steps = []
        for s in range(32):
            u, sl = s // 2, s % 2
            ch = s // 8
            f = fr[u & 1]

            def reads(u=u, sl=sl, ch=ch, f=f):
                L = []
                hb = LH[ch] - (0 if LH[ch] < 44000 else 2 * HB) + 64 * (u & 3)
                hm, hl_ = (v_hm, v_hhalo) if LH[ch] < 44000 else (v_hm2, v_hh2)
                for k, mat in enumerate((1, 2, 0)):
                    if sl == 0:
                        L.append(f"ds_read_b128 {f[k]}, {hm if k < 2 else hl_} offset:{hb + (16 * 272 if k == 1 else 0)}")
                    for rd in range(2):
                        wi, o = divmod(UQ[u].addr + mat * 1024 + rd * 512, WIN)
                        L.append(f"ds_read_b64_tr_b16 {f[3 + 3 * sl + k].sub(2 * rd, 2)}, {(v_wq, v_w1)[sl][wi]} offset:{o}")
                return L
            mf = []
            for k, acc in enumerate((accS1, accS2, accQ)):
                for a in range(3 if (sl == 0 and k < 2) else 2):
                    ac = acc.sub(8 * sl + 4 * a, 4) if a < 2 else accH.sub(4 * k, 4)
                    mf.append(f"v_mfma_f32_16x16x32_bf16 {ac}, {f[3 + 3 * sl + k]}, {f[a]}, {'0' if u == 0 else ac}")
            d = dict(reads=reads, mfmas=mf, units=[UQ[u]], slots=c.q_slots, fslots=c.q_fill, rscale=4 / 7)
            if s % c.q_span == 0:
                d["bar"] = True
                d["span"] = c.q_span
                if s % 8 == 0:
                    d["lg"] = (lambda ch=ch: wtok[max(ch, npre_ch - 1)])
            steps.append(d)
        if c.h_full:
            def region(a, n):
                u = Unit("reg", n, [])
                u.addr = a
                return u
            steps[0]["release"] = [region(L_TBL, 4096)] if npre_ch == 4 else []
            steps[12]["release"] = [region(LH[0], HB)]
            steps[20]["release"] = [region(LH[1], HB - 80 * 144)]
            if npre_ch < 4:
                steps[28]["release"] = [region(L_TBL, 4096)]
        mk = Mark()
        fill = list(dfr) + [mk]
        steps[c.q_hi0].setdefault("pre", []).append(lambda: self.drain_to(fill, mk))
        for ch in range(npre_ch, 4):
            gate, mark = Gate(), Mark()
            first = c.pre_tiles if ch == npre_ch else 0
            held = [apply_write(ch, i) for i in range(first)]
            for i in range(first, 5):
                fill += apply_valu(ch, i, cst, False)
                held.append(apply_write(ch, i))
                if i >= 1:
                    if gate not in fill:
                        fill.append(gate)
                    if i == 4 and ch + 1 < 4:
                        fill += cst_reads(ch + 1, cst)
                    fill += held
                    held = []
            fill += [mark]
            if ch == 1 or c.h_full:
                gate.open()
            else:
                steps[8 * (ch - 1) + 4]["postbar"] = gate.open
            steps[8 * ch]["prebar"] = (lambda mark=mark: self.drain_to(fill, mark))
        g2, gx, tw, tv = xn_all.sub(0, 16), V.alloc(2), V.alloc(4), V.alloc(4)
        assert npre_ch == 4
        ga2, gax = V.alloc(), V.alloc()
        g2ld = g_loads(g2, ga2) + [f"buffer_load_dword {gx[0]}, {gax}, {WS}, 0 offen offset:{WS_XID} sc1"]
        g2ck = g_check(g2, tw[0], tw[1]) + [f"v_and_b32 {gx[1]}, -8, {gx[0]}", f"v_xor_b32 {gx[1]}, {gx[1]}, {self.v_tag}",
                                            f"v_or_b32 {tw[0]}, {tw[0]}, {gx[1]}", f"v_cmp_ne_u32 vcc, 0, {tw[0]}"]

        def g2check():
            Ls, Lb = e.newlabel("Lretry"), e.newlabel("Lback")
            e(g2ck[-1])
            e(f"s_cbranch_vccnz {Ls}")
            e.label(Lb)
            self.ool.append(f"{Ls}:\n    s_mov_b32 {self.s_spin}, 0\n{Ls}_1:\n    s_add_u32 {self.s_spin}, {self.s_spin}, 1\n"
                            f"    s_cmp_gt_u32 {self.s_spin}, {c.spin}\n    s_cbranch_scc1 Lexit\n" + "".join(f"    {t}\n" for t in g2ld) +
                            "    s_waitcnt vmcnt(0)\n" + "".join(f"    {t}\n" for t in g2ck) + f"    s_cbranch_vccnz {Ls}_1\n    s_branch {Lb}\n")
        gG, gC = Gate(), Gate()
        steps[c.st_g2].setdefault("pre", []).append(gG.open)
        steps[c.st_g2 + 8].setdefault("pre", []).append(gC.open)
        fill += [gG, unpark("g2", ga2), unpark("gx", gax)] + g2ld + [gC] + g2ck[:-1] + [g2check] + g_sum(g2, False)
        if c.preread:
            fill += bgl(None, (f"buffer_load_dword {a_dummy[0]}, {v_l16}, {WS}, {s_st} offen sc1", False))
        fill += [t.strip() for t in unp(tw, g2[0], g2[2]).split("\n")]
        fill += [f"s_cmp_eq_u32 {s_w}, 2\ns_cselect_b32 {t0}, 1.0, 0"] + [f"v_add_f32 {tv[k]}, {t0}, {tw[k]}" for k in range(4)]
        fill += [f"v_cvt_pk_bf16_f32 {g2[0]}, {tv[0]}, {tv[1]}", f"v_cvt_pk_bf16_f32 {g2[2]}, {tv[2]}, {tv[3]}"]
        fill += [t.strip() for t in unp(tw, g2[0], g2[2]).split("\n")]
        fill += [f"v_and_b32 {gx[1]}, 15, {v_l}", f"s_lshl_b32 {t0}, {s_w}, 8", f"v_lshl_add_u32 {gx[1]}, {gx[1]}, 4, {t0}"]
        fill += [f"ds_write_b128 {gx[1]}, {tw} offset:{L_TBL2}",
                 f"s_getreg_b32 {t0}, hwreg(HW_REG_XCC_ID)", f"s_and_b32 {t0}, {t0}, 7", f"s_or_b32 {t0}, {t0}, {s_tag}",
                 f"v_cmp_ne_u32 vcc, {t0}, {gx[0]}\ns_nop 1\ns_cmp_eq_u64 vcc, 0\ns_cselect_b32 {self.s_mode}, {0 if c.force_slow else 1}, 0"]
        self.bg_off()
        self.loop_prologue(steps)
        self.stamp("p1s")
        self.lname = "Q"
        self.mfma_loop(steps, fill, lambda i, h: (c.q_hi if i >= c.q_hi0 else 0, c.q_dma if c.q_dma0 <= i < c.q_dma1 else 0, c.q_stage), hi=qhi)
        self.drain_to(fill, None)
        run(qhi)
        self.stamp("p1e")
        S.release(*s_tb4, s_col0, s_w3k)
        V.release(cst, v_cst, v_hw, v_hm, v_hhalo, v_wq, v_w1, gx, tw, tv, ga2, gax)
        if c.h_full:
            V.release(v_hm2, v_hh2)
        for f in fr:
            A.release(*f)
        lg = V.alloc(16)
        kp = xn_all.sub(0, 16)

        for sl in range(2):
            for a in range(2):
                e(f"ds_write_b128 {v_vw[sl]}, {accS2.sub(8 * sl + 4 * a, 4)} offset:{L_V + a * 16 * 272}")
                for h in range(2):
                    e(f"v_cvt_pk_bf16_f32 {kp[4 * sl + 2 * a + h]}, {accS1[8 * sl + 4 * a + 2 * h]}, {accS1[8 * sl + 4 * a + 2 * h + 1]}")
        e(f"ds_write_b128 {v_vh}, {accH.sub(4, 4)} offset:{L_V}")
        for h in range(2):
            e(f"v_cvt_pk_bf16_f32 {kp[8 + h]}, {accH[2 * h]}, {accH[2 * h + 1]}")
        qp = xn_all.sub(16, 8)
        for sl in range(2):
            for a in range(2):
                e(f"ds_write_b64 {v_kw[sl]}, {kp.sub(4 * sl + 2 * a, 2)} offset:{L_K + a * 16 * 144}")
                for h in range(2):
                    e(f"v_cvt_pk_bf16_f32 {qp[4 * sl + 2 * a + h]}, {accQ[8 * sl + 4 * a + 2 * h]}, {accQ[8 * sl + 4 * a + 2 * h + 1]}")
        e(f"ds_write_b64 {v_kh}, {kp.sub(8, 2)} offset:{L_K}")
        for j in range(4):
            e(f"v_permlane32_swap_b32 {qp[j]}, {qp[4 + j]}")
        for b in range(2):
            for h in range(2):
                e(f"v_permlane16_swap_b32 {qp[4 * b + h]}, {qp[4 * b + 2 + h]}")
        e._push(Ins("s_waitcnt lgkmcnt(0)"))
        e.lg_done = e.lg_issued
        self.barrier(ready=[] if c.uo_late else UO, release=UQ + ([region(LH[3], HB)] if c.h_full else []))
        self.stamp("kv")
        for k in range(c.exp_dirty):
            e(f"s_lshl_b32 {t0}, s2, 2\ns_add_u32 {t0}, {t0}, {s_w}\ns_mul_i32 {t0}, {t0}, {c.exp_dirty * 1024}\ns_add_u32 {t0}, {t0}, {0x1000000 + k * 1024}")
            e(f"buffer_store_dwordx4 {a_ones}, {v_l16}, {WS}, {t0} offen{c.exp_dfl.replace('_', ' ')}")
        self.bg_on(c.att_every, limit=[UG[c.n_dir - 1]], nmax=c.att_n)
        V.release(v_kh, v_vh, v_kw, v_vw)
        kb = [accS1.sub(0, 8), accS1.sub(8, 8), accS2.sub(0, 8), accS2.sub(8, 8), accH.sub(0, 8), accH.sub(8, 8), kp.sub(0, 8), kp.sub(8, 8)]
        vb = [xn_all.sub(24 + 16 * k, 16) for k in range(6)] + [accS1, accS2]

        def kread(wd):
            return [f"ds_read_b128 {kb[wd].sub(4 * h, 4)}, {v_kr} offset:{L_K + (14 - 2 * wd) * 144 + 16 * h}" for h in range(2)]

        def vread(wd):
            return [f"ds_read_b128 {vb[wd].sub(4 * dq, 4)}, {v_vr} offset:{L_V + (14 - 2 * wd) * 272 + 16 * dq}" for dq in range(4)]

        def qk(ws):
            L = []
            for j in range(8):
                for wd in ws:
                    L.append(f"v_dot2_f32_bf16 {lg[2 * wd]}, {qp[j]}, {kb[wd][j]}, {'0' if j == 0 else lg[2 * wd]}")
            return L
        for wd in range(7):
            run(kread(wd))
        self.interleave(qk((0, 1, 2, 3)), kread(7) + vread(0) + vread(1) + vread(2)[:2], 0.4)
        self.interleave(qk((4, 5, 6, 7)), vread(2)[2:] + vread(3) + vread(4) + vread(5)[:2], 0.4)
        Lnm = e.newlabel("Lnomask")
        e(f"s_cmp_lg_u32 {s_TB}, 0")
        e(f"s_cbranch_scc1 {Lnm}")
        e.begin_cond()
        e(f"v_mov_b32 {u0}, 0x{f2u(-4e9):08x}")
        for wd in range(1, 8):
            e(f"v_cmp_gt_u32 vcc, {2 * wd}, {v_t}")
            e(f"v_cndmask_b32 {lg[2 * wd]}, {lg[2 * wd]}, {u0}, vcc")
        e.end_cond(Lnm)
        mx = lg[1]
        SM = [f"s_mov_b32 {t0}, 0x{f2u(0.25 * math.log2(math.e)):08x}",
              f"v_max3_f32 {mx}, {lg[0]}, {lg[2]}, {lg[4]}",
              f"v_max3_f32 {lg[3]}, {lg[6]}, {lg[8]}, {lg[10]}",
              f"v_max3_f32 {mx}, {mx}, {lg[12]}, {lg[14]}",
              f"v_max_f32 {mx}, {mx}, {lg[3]}",
              f"v_mul_f32 {mx}, {t0}, {mx}"]
        SM += [f"v_fma_f32 {lg[2 * wd]}, {lg[2 * wd]}, {t0}, -{mx}" for wd in range(8)]
        SM += [f"v_exp_f32 {lg[2 * wd]}, {lg[2 * wd]}" for wd in range(8)]
        self.interleave(SM, vread(5)[2:] + vread(6) + vread(7), 0.6)
        ov = accQ
        SUM = f"""v_add_f32 {lg[1]}, {lg[0]}, {lg[2]}
        v_add_f32 {lg[3]}, {lg[4]}, {lg[6]}
        v_add_f32 {lg[5]}, {lg[8]}, {lg[10]}
        v_add_f32 {lg[7]}, {lg[12]}, {lg[14]}
        v_add_f32 {lg[1]}, {lg[1]}, {lg[3]}
        v_add_f32 {lg[5]}, {lg[5]}, {lg[7]}
        v_add_f32 {lg[1]}, {lg[1]}, {lg[5]}
        v_rcp_f32 {lg[1]}, {lg[1]}""".split("\n")
        PV = []
        for wd in range(8):
            for j in range(8):
                p = ov.sub(2 * j, 2)
                if wd == 0:
                    PV.append(f"v_pk_mul_f32 {p}, {vb[wd].sub(2 * j, 2)}, {lg.sub(0, 2)} op_sel_hi:[1,0]")
                else:
                    PV.append(f"v_pk_fma_f32 {p}, {vb[wd].sub(2 * j, 2)}, {lg.sub(2 * wd, 2)}, {p} op_sel_hi:[1,0,1]")
        self.interleave(PV, SUM, 0.25)
        ob = lg.sub(8, 8)
        for j in range(8):
            p = ov.sub(2 * j, 2)
            e(f"v_pk_mul_f32 {p}, {p}, {lg.sub(0, 2)} op_sel:[0,1] op_sel_hi:[1,1]")
        self.bg_off()
        for j in range(8):
            e(f"v_cvt_pk_bf16_f32 {ob[j]}, {ov[2 * j]}, {ov[2 * j + 1]}")
        self.stamp("att")
        tok = self.store2([f"buffer_store_dwordx4 {ob.sub(0, 4)}, {v_o}, {WS}, 0 offen" + "{f}",
                           f"buffer_store_dwordx4 {ob.sub(4, 4)}, {v_o}, {WS}, 0 offen offset:256" + "{f}"])
        V.release(xn_all, v_kr, v_vr, v_o)
        ga, gB, gs, gb = [V.alloc(16) for _ in range(4)]
        x1 = V.alloc(16)
        v_pf = V.alloc()
        v_s = [V.alloc(3, align=1) for _ in range(2)]
        v_act, v_red = V.alloc(), V.alloc()
        e(f"v_and_b32 {u0}, 48, {v_l}")
        for vec, r in ((0, ga), (1, gs), (2, gB), (3, gb)):
            for j in range(4):
                e(f"ds_read_b128 {r.sub(4 * j, 4)}, {u0} offset:{L_TBL2 + 256 * vec + 64 * j}")
        e(f"""v_and_b32 {u1}, 15, {v_l}
        v_lshl_add_u32 {v_pf}, {u1}, 2, {s_flb}
        s_lshr_b32 {s_rx[1]}, {s_mo}, 4""")

        def wbases(sh_hi, sh_lo, with_kh):
            e(f"""v_bfe_u32 {u1}, {v_l}, 4, 1
            v_lshl_add_u32 {u0}, {u1}, {sh_lo}, {v_trn}
            v_lshl_add_u32 {v_s[0][0]}, {v_hh}, {sh_hi}, {u0}""")
            if with_kh:
                e(f"s_lshl_b32 {t0}, {s_kh}, 11\nv_add_u32 {v_s[0][0]}, {t0}, {v_s[0][0]}")
            e(f"v_xor_b32 {v_s[1][0]}, 32, {v_s[0][0]}")
            for par in range(2):
                for k in (1, 2):
                    e(f"v_add_u32 {v_s[par][k]}, {k * WIN}, {v_s[par][0]}")
        wbases(12, 10, False)
        e(f"""s_lshl_b32 {t0}, {s_TB}, 5
        s_add_u32 {t0}, {t0}, {s_kh}
        s_lshl_b32 {t0}, {t0}, 10
        s_add_u32 {t0}, {t0}, {WS_O}
        s_lshl_b32 {t1}, {s_hg}, 12
        s_add_u32 {s_tile}, {t0}, {t1}
        v_add_u32 {v_act}, {t0}, {v_l16}
        v_add_u32 {v_red}, {s_w1k}, {v_l16}
        v_lshlrev_b32 {v_red}, 2, {v_red}
        v_mul_u32_u24 {u0}, 48, {v_l}
        v_sub_u32 {v_red}, {v_red}, {u0}""")
        e(f"""v_and_b32 {u1}, 15, {v_l}
        v_mul_u32_u24 {u1}, 144, {u1}
        s_mul_i32 {t0}, {s_tb}, {32 * 144}
        s_mul_i32 {t1}, {s_kh}, {16 * 144}
        s_add_u32 {t0}, {t0}, {t1}
        v_lshrrev_b32 {u2}, 4, {v_l}
        v_lshlrev_b32 {u2}, 3, {u2}
        v_add3_u32 {u2}, {u1}, {u2}, {t0}""")
        v_w16 = V.alloc(3, align=1)
        e(f"v_add_u32 {v_w16[0]}, {s_w1k}, {v_l16}")
        for k in (1, 2):
            e(f"v_add_u32 {v_w16[k]}, {k * WIN}, {v_w16[0]}")
        e(unpark("xw", u3))
        e.wait(vm=tok)
        self.flag_store(v_fl, F_O * 512)
        self.stamp("fo")
        V.release(lg)
        self.barrier(ready=UO)
        self.lds.add(L_RED, L_V + HB - L_RED)
        xr = V.alloc(8)
        xs = Unit("xs", 64 * 144, [])
        xs.addr = L_RED + 16384
        assert any(iv[0] <= xs.addr and iv[1] >= xs.addr + xs.size for iv in self.lds.free)
        for iv in self.lds.free:
            if iv[0] <= xs.addr < iv[1]:
                hi_end = iv[1]
                iv[1] = xs.addr
                self.lds.free.append([xs.addr + xs.size, hi_end])
                break
        self.lds.free = sorted(iv for iv in self.lds.free if iv[1] > iv[0])
        e(f"ds_write_b128 {u3}, {a_xr.sub(0, 4)} offset:{xs.addr}")
        e(f"ds_write_b128 {u3}, {a_xr.sub(4, 4)} offset:{xs.addr + 8 * 144}")
        A.release(a_xr)
        done = [u for u in staged if u.next >= len(u.dmas)]
        for f in self.commit(done, v_w16):
            f()
        self.barrier()
        v_c1 = V.alloc()
        issO, chkO = self.opt_check(v_pf, F_O * 512, v_c1)
        if c.opt_o == 1:
            issO()
        for j in range(4):
            e(f"ds_read_b64 {xr.sub(2 * j, 2)}, {u2} offset:{xs.addr + j * 32}")
        if c.opt_o == 2:
            issO()
        self.dma_all(limit=c.n_alpha)
        for j in range(8):
            e(f"v_lshlrev_b32 {x1[2 * j]}, 16, {xr[j]}")
            e(f"v_and_b32 {x1[2 * j + 1]}, 0xffff0000, {xr[j]}")
        V.release(xr)
        A.release(*[r for n, r in parked.items() if n not in ("xres", "t3d")])
        fr = [[A.alloc(4) for _ in range(4)] for _ in range(3)]
        acc0, acc1 = V.alloc(16), V.alloc(16)

        def kloop(units, act, rdoff, nk, first=True, base=0):
            steps = []
            for i in range(nk if first else nk // 2):
                f = fr[(base + i) % 3]
                un, ko = (units[i % 8], (i // 8) * 2048) if first else (units[i], 0)

                def reads(f=f, un=un, ko=ko):
                    L = []
                    for cb in range(4):
                        for rd in range(2):
                            wi, o = divmod(un.addr + ko + rd * rdoff + (cb >> 1) * 256, WIN)
                            L.append(f"ds_read_b64_tr_b16 {f[cb].sub(2 * rd, 2)}, {v_s[cb & 1][wi]} offset:{o}")
                    return L
                mf = []
                for a, acc in (((0, acc0),) if first else ((1, acc1), (0, acc0))):
                    for cb in range(4):
                        ac = acc.sub(4 * cb, 4)
                        mf.append(f"v_mfma_f32_16x16x32_bf16 {ac}, {f[cb]}, {act[i] if first else act[2 * i + a]}, {'0' if i == 0 else ac}")
                steps.append(dict(reads=reads, mfmas=mf, units=[un], slots=c.slots16, fslots=c.fslots16, rscale=0.5, wspan=8))
            return steps

        s_ao = sa()

        cur_ao = [None]

        def act_loads(regs, vaddr, offs):
            L = []
            for r, o in zip(regs, offs):
                def f(r=r, o=o):
                    if (c.exp_nohh and vaddr is not v_act) or (c.exp_noh2 and len(regs) == 32):
                        return
                    if c.exp_half and len(regs) == 28 and (o[1] >> 10) & 1:
                        return
                    va = vaddr
                    if isinstance(o, tuple) and len(o) == 4:
                        e(f"s_xor_b32 {s_ao}, {o[0]}, {o[1]}")
                        cur_ao[0], o = None, 0
                    elif isinstance(o, tuple) and len(o) == 3:
                        e(f"s_lshr_b32 {s_ao}, {o[0]}, 4\ns_add_u32 {s_ao}, {s_ao}, {o[1]}")
                        cur_ao[0], o = None, 0
                    elif isinstance(o, tuple):
                        b, o = o
                        if b != cur_ao[0]:
                            e(f"s_lshr_b32 {s_ao}, {b}, 4")
                            cur_ao[0] = b
                    else:
                        if len(regs) == 32 and (o >> (11 + c.gbit)) & 1:
                            va = v_act2
                        b = o & ~4095
                        if b != cur_ao[0]:
                            e(f"s_mov_b32 {s_ao}, {b}")
                            cur_ao[0] = b
                    e(f"buffer_load_dwordx4 {r}, {va}, {CC if len(regs) == 32 else WS}, {s_ao} offen offset:{o & 4095}{c.act_fl}")
                L.append(f)
            return L

        actf = [A.alloc(4) for k in range(16)]
        steps = kloop(UO, actf, 512, 16)
        self.loop_prologue(steps)
        if c.opt_o:
            chkO()
        else:
            self.poll([f"buffer_load_dword {u1}, {v_pf}, {WS}, 0 offen offset:{F_O * 512} sc1"], [u1])
        V.release(v_c1)
        self.stamp("po")
        self.lname = "O"
        hl = act_loads(actf[:16], v_act, [(str(s_rx[1]), k * 2048, 0, 0) for k in range(16)])
        run(hl[:c.p2_lead])
        hi = hl[c.p2_lead:]
        for i in range(c.p2_lead, 16):
            def f(n=15 - i):
                while len(hi) > n + c.n_beta:
                    hi.pop(0)()
            steps[i]["pre"] = [f]
        nb = [0]

        def beta():
            if nb[0] < c.n_beta:
                nb[0] += bool(self.stage_step())
        hi += [beta] * c.n_beta
        self.mfma_loop(steps, [], lambda i, h: (1, 0, 0), hi=hi)
        rest = [u for u in self.stq if u.next == 0]
        while self.stq and self.stq[0].next:
            if self.stq[0].next >= len(self.stq[0].dmas):
                self.stq.pop(0)
            else:
                self.stage_step()
        self.stq = []
        k = 0
        while k < len(self.queue) and (self.queue[k].addr is not None or self.queue[k] in UG[:c.n_dir]):
            k += 1
        self.queue[k:k] = rest
        staged = [u for u in staged if u not in rest]

        self.stamp("p2m")
        for j in range(8):
            e(f"v_pk_fma_f32 {x1.sub(2 * j, 2)}, {acc0.sub(2 * j, 2)}, {ga.sub(2 * j, 2)}, {x1.sub(2 * j, 2)}")
        sm, sq = acc1.sub(0, 4), acc1.sub(4, 4)
        e(f"v_accvgpr_read_b32 {u3}, {a_stw}")
        for j in range(8):
            p = x1.sub(2 * j, 2)
            a, b = sm.sub(2 * (j & 1), 2), sq.sub(2 * (j & 1), 2)
            if j < 2:
                e(f"v_pk_add_f32 {a}, {p}, {x1.sub(2 * j + 4, 2)}")
                e(f"v_pk_mul_f32 {b}, {p}, {p}")
            else:
                if j >= 4:
                    e(f"v_pk_add_f32 {a}, {a}, {p}")
                e(f"v_pk_fma_f32 {b}, {p}, {p}, {b}")
        gr = acc1[8]
        e(f"""v_pk_add_f32 {sm.sub(0, 2)}, {sm.sub(0, 2)}, {sm.sub(2, 2)}
        v_pk_add_f32 {sq.sub(0, 2)}, {sq.sub(0, 2)}, {sq.sub(2, 2)}
        s_and_b32 {t0}, {s_st}, -1024
        v_add_f32 {sm[0]}, {sm[0]}, {sm[1]}
        v_add_f32 {sq[0]}, {sq[0]}, {sq[1]}
        v_permlane32_swap_b32 {sm[0]}, {sq[0]}
        v_add_f32 {sm[0]}, {sm[0]}, {sq[0]}
        v_mov_b32 {sm[1]}, {sm[0]}
        v_permlane16_swap_b32 {sm[0]}, {sm[1]}
        v_add_f32 {gr}, {sm[0]}, {sm[1]}
        v_min_u32 {gr}, -2, {gr}""")
        self.store2([f"buffer_store_dword {gr}, {u3}, {WS}, {s_st} offen" + "{f}"])
        A.release(a_stw)
        self.barrier(release=UO + [xs])
        sg = V.alloc(8)

        def reduce_pair():
            for j in range(4):
                e(f"ds_write_b128 {v_red}, {acc1.sub(4 * j, 4)} offset:{L_RED + 1024 * j}")
            e(f"v_xor_b32 {u0}, 8192, {v_red}")

        def reduce_read():
            for j in range(4):
                e(f"ds_read_b128 {acc1.sub(4 * j, 4)}, {u0} offset:{L_RED + 1024 * j}")
            for j in range(8):
                e(f"v_pk_add_f32 {acc0.sub(2 * j, 2)}, {acc0.sub(2 * j, 2)}, {acc1.sub(2 * j, 2)}")

        def commit2():
            for f in self.commit(staged, v_w16):
                f()
            assert all(u.addr is not None for u in staged), "staged units left"
            V.release(v_w16)
        s_sta = sa()
        e(f"s_mov_b32 {s_sta}, {t0}")
        if c.rot & 8:
            e(f"""s_lshr_b32 {t0}, {s_idx}, 3
            s_lshl_b32 {t0}, {t0}, {c.rsh}
            s_lshl_b32 {t1}, {s_hg}, 1
            s_xor_b32 {t0}, {t0}, {t1}
            s_and_b32 {t1}, {t0}, 2
            s_lshl_b32 {s_rx[1]}, {t1}, 14
            s_and_b32 {t0}, {t0}, {4 if c.rsh else 0}
            s_lshl_b32 {t0}, {t0}, 15
            s_or_b32 {s_rx[0]}, {s_rx[1]}, {t0}""")
        else:
            e(f"s_mov_b32 {s_rx[0]}, 0\ns_mov_b32 {s_rx[1]}, 0")
        e(f"""s_lshl_b32 {t0}, {s_kh}, 10
        s_lshr_b32 {s_rx[2]}, {s_rx[0]}, 4
        s_lshr_b32 {s_rx[3]}, {s_rx[1]}, 4
        s_or_b32 {s_rx[2]}, {s_rx[2]}, {t0}
        s_or_b32 {s_rx[3]}, {s_rx[3]}, {t0}""")
        cur_ao[0] = None
        self.cur_so = None
        assert all(u.next == 0 for u in UD)
        wbases(10, 9, True)
        if c.opt_s == 1:
            e(f"buffer_load_dwordx4 {sg.sub(0, 4)}, {v_l16}, {WS}, {s_sta} offen sc1")
        v_ta = V.alloc(3, align=1)
        v_p3f, v_p3s, v_hha, v_chk, v_act2 = [V.alloc() for _ in range(5)]
        if c.p3_16:
            v_tb = V.alloc(3, align=1)
            e(f"""v_bfe_u32 {u2}, {v_l}, 4, 1
            v_lshl_add_u32 {v_ta[0]}, {u2}, 9, {v_trn}
            v_lshl_add_u32 {v_ta[0]}, {v_hh}, 10, {v_ta[0]}
            v_xor_b32 {v_tb[0]}, 32, {v_ta[0]}""")
            for k in (1, 2):
                e(f"v_add_u32 {v_ta[k]}, {k * WIN}, {v_ta[0]}")
                e(f"v_add_u32 {v_tb[k]}, {k * WIN}, {v_tb[0]}")
        else:
            e(f"""v_and_b32 {u0}, 3, {v_l}
            v_lshlrev_b32 {u0}, 3, {u0}
            v_bfe_u32 {u1}, {v_l}, 2, 2
            v_bfe_u32 {u2}, {v_l}, 4, 1
            v_lshlrev_b32 {u3}, 6, {u1}
            v_add_u32 {u3}, {u3}, {u0}
            v_mul_u32_u24 {v_ta[0]}, {4096 + 32}, {u2}
            v_lshlrev_b32 {v_ta[1]}, 9, {v_hh}
            v_add3_u32 {v_ta[0]}, {v_ta[0]}, {v_ta[1]}, {u3}""")
            for k in (1, 2):
                e(f"v_add_u32 {v_ta[k]}, {k * WIN}, {v_ta[0]}")
        e(f"""s_lshl_b32 {t0}, {s_g}, 2
        s_add_u32 {t0}, {t0}, {s_w}
        s_lshl_b32 {t1}, {t0}, 15
        s_add_u32 {t1}, {t1}, {WS_H2}
        s_lshr_b32 {t2}, {s_idx}, 4
        s_mul_i32 {t2}, {t2}, {(2048 << c.gbit) if c.rot & 2 else 0}
        v_add_u32 {v_act}, {t1}, {v_l16}
        v_subrev_u32 {v_act2}, {t2}, {v_act}
        v_add_u32 {v_act}, {t2}, {v_act}
        s_lshl_b32 {t0}, {s_g}, 11
        s_lshl_b32 {t1}, {s_w}, 7
        s_add_u32 {t0}, {t0}, {t1}
        s_add_u32 {t0}, {t0}, {WS_FLAGS}
        v_and_b32 {u0}, 15, {v_l}
        v_lshlrev_b32 {u0}, 2, {u0}
        v_add_u32 {v_p3f}, {t0}, {u0}
        s_lshl_b32 {t1}, {s_m}, 2
        s_add_u32 {t0}, {t0}, {t1}
        v_mov_b32 {v_p3s}, {t0}""")
        e(f"""s_mul_i32 {t0}, {s_TB}, 112
        s_mul_i32 {t1}, {s_kh}, 56
        s_add_u32 {t0}, {t0}, {t1}
        s_lshl_b32 {t0}, {t0}, 10
        s_add_u32 {t0}, {t0}, {WS_HH}
        v_add_u32 {v_hha}, {t0}, {v_l16}
        v_and_b32 {u1}, 7, {v_l}
        v_min_u32 {u1}, 6, {u1}
        v_lshlrev_b32 {u1}, 2, {u1}
        s_mul_i32 {t0}, {s_kh}, 28
        s_add_u32 {t0}, {t0}, {s_flb}
        v_add_u32 {v_pf}, {t0}, {u1}""")
        tm = self.v_tmp
        pre = [f"v_max3_u32 {tm}, {sg[0]}, {sg[1]}, {sg[2]}", f"v_max_u32 {tm}, {tm}, {sg[3]}", f"v_cmp_eq_u32 vcc, -1, {tm}"]
        sld = f"buffer_load_dwordx4 {sg.sub(0, 4)}, {v_l16}, {WS}, {s_sta} offen sc1"
        if c.opt_s == 2:
            e(sld)
        if not c.commit_late:
            commit2()
        if c.opt_s:
            Ls, Lb = e.newlabel("Lretry"), e.newlabel("Lback")
            run(pre)
            e(f"s_cbranch_vccnz {Ls}")
            e.label(Lb)
            self.ool.append(f"{Ls}:\n    s_mov_b32 {self.s_spin}, 0\n{Ls}_1:\n    s_add_u32 {self.s_spin}, {self.s_spin}, 1\n"
                            f"    s_cmp_gt_u32 {self.s_spin}, {c.spin}\n    s_cbranch_scc1 Lexit\n    {sld}\n    s_waitcnt vmcnt(0)\n" +
                            "".join(f"    {t}\n" for t in pre) + f"    s_cbranch_vccnz {Ls}_1\n    s_branch {Lb}\n")
        else:
            self.poll([sld], [], pre=pre)
        S.release(s_sta)
        self.stamp("pst")
        e(f"""v_pk_add_f32 {sg.sub(0, 2)}, {sg.sub(0, 2)}, {sg.sub(2, 2)}
        v_add_f32 {sg[0]}, {sg[0]}, {sg[1]}
        v_mov_b32 {sg[1]}, {sg[0]}
        v_permlane16_swap_b32 {sg[0]}, {sg[1]}
        v_add_f32 {sg[0]}, {sg[0]}, {sg[1]}
        v_mov_b32 {sg[1]}, {sg[0]}
        v_permlane32_swap_b32 {sg[0]}, {sg[1]}""")
        pr = sg.sub(2, 2)
        for t in self.finish_stats(sg[0], sg[1], pr[0], pr[1], 512):
            e(t)
        for j in range(8):
            e(f"v_pk_fma_f32 {acc0.sub(2 * j, 2)}, {x1.sub(2 * j, 2)}, {pr}, {pr} op_sel:[0,0,1] op_sel_hi:[1,0,1]")
        for j in range(8):
            e(f"v_pk_fma_f32 {acc0.sub(2 * j, 2)}, {acc0.sub(2 * j, 2)}, {gB.sub(2 * j, 2)}, {gs.sub(2 * j, 2)}")
        for j in range(8):
            e(f"v_cvt_pk_bf16_f32 {acc1[j]}, {acc0[2 * j]}, {acc0[2 * j + 1]}")
        tok = self.store2([f"buffer_store_dwordx4 {acc1.sub(0, 4)}, {v_l16}, {WS}, {s_tile} offen" + "{f}",
                           f"buffer_store_dwordx4 {acc1.sub(4, 4)}, {v_l16}, {WS}, {s_tile} offen offset:2048" + "{f}"])
        V.release(sg, ga, gB, gs)
        def fh():
            e.wait(vm=tok)
            self.flag_store(v_fl, F_H * 512)
            self.stamp("fh")
        if c.fh_early == 1:
            fh()
        if c.commit_late:
            commit2()
        if c.fh_early == 2:
            fh()
        self.dma_all(limit=c.n_gamma)
        if not c.fh_early:
            fh()
        if c.stop == "p2":
            return self.finish()
        actf += [A.alloc(4) for k in range(16)]
        e("s_mov_b32 s40, s36\ns_mov_b32 s41, s37\ns_mov_b32 s42, s38")
        if c.idle_pf:
            Li = e.newlabel("Lbusy")
            e(f"s_cmp_lt_u32 {s_m}, 14")
            e(f"s_cbranch_scc1 {Li}")
            e.begin_cond()
            e(f"""s_and_b32 {t0}, {s_g}, 1
            s_lshl_b32 {t0}, {t0}, 1
            s_add_u32 {t0}, {t0}, {s_m}
            s_sub_u32 {t0}, {t0}, 14""")
            if c.idle_pf & 1:
                e(f"""s_lshl_b32 {t1}, {t0}, 12
                s_add_u32 {t1}, {t1}, {c.idle_off - 128}
                v_lshl_add_u32 {v_dA}, v0, 4, {t1}
                s_mov_b32 s16, s24
                s_mov_b32 s17, s25
                s_mov_b32 s18, s26
                s_add_u32 s20, s24, 16384
                s_addc_u32 s21, s25, 0
                s_sub_u32 s22, s26, 16384""")
            if c.idle_pf & 2:
                e(f"""s_lshl_b32 {t0}, {t0}, 2
                s_add_u32 {t0}, {t0}, {s_w}
                s_and_b32 {t1}, {t0}, 1
                s_lshl_b32 {t1}, {t1}, 15
                s_lshr_b32 {t0}, {t0}, 1
                s_lshr_b32 {t2}, {t0}, 2
                s_mul_i32 {t2}, {t2}, 3
                s_add_u32 {t0}, {t0}, {t2}
                s_lshl_b32 {t0}, {t0}, 17
                s_add_u32 {t0}, {t0}, {t1}
                v_add_u32 {v_act}, {t0}, {v_l16}
                s_mov_b32 s40, s24
                s_mov_b32 s41, s25
                s_mov_b32 s42, s26""")
            e.end_cond(Li)
        accA = [V.alloc(16) for _ in range(4)]
        accB = [V.alloc(16) for _ in range(4)]
        steps = []
        for ph, (UU, accs) in enumerate(((UA, accA), (UB, accB))):
            for s in range(32):
                f = fr[len(steps) % 3]

                def reads(s=s, f=f, UU=UU):
                    ad = UU[s // 2].addr + (s % 2) * 2048
                    wi, o = divmod(ad, WIN)
                    L = []
                    for cb in range(4):
                        for rd in range(2):
                            L.append(f"ds_read_b64_tr_b16 {f[cb].sub(2 * rd, 2)}, {v_ta[wi]} offset:{o + rd * 1024 + (cb >> 1) * 256 + (cb & 1) * 32}")
                    return L
                mf = [f"v_mfma_f32_32x32x16_bf16 {accs[cb]}, {f[cb]}, {actf[s]}, {'0' if s == 0 else accs[cb]}" for cb in range(4)]
                d = dict(reads=reads, mfmas=mf, units=[UU[s // 2]])
                if c.p3_16:
                    def reads16(s=s, f=f, UU=UU):
                        L = []
                        for par in range(2):
                            for mat in range(2):
                                for rd in range(2):
                                    wi, o = divmod(UU[s // 2].addr + (s % 2) * 256 + mat * 4128 + rd * 2048, WIN)
                                    L.append(f"ds_read_b64_tr_b16 {f[2 * par + mat].sub(2 * rd, 2)}, {(v_ta, v_tb)[par][wi]} offset:{o}")
                        return L
                    mf = []
                    for par in range(2):
                        for mat in range(2):
                            for a in range(2):
                                ac = accs[2 * (s % 2) + par].sub(8 * mat + 4 * a, 4)
                                mf.append(f"v_mfma_f32_16x16x32_bf16 {ac}, {f[2 * par + mat]}, {actf[(s & ~1) + a]}, {'0' if s < 2 else ac}")
                    d = dict(reads=reads16, mfmas=mf, units=[UU[s // 2]], slots=c.slots16, fslots=c.fslots16, rscale=0.5)
                if s % 4 == 0:
                    d["bar"], d["span"] = True, 4
                steps.append(d)
        hx = [A.alloc(4) for _ in range(12)]
        actH = hx + [accA[k // 4].sub(4 * (k % 4), 4) for k in range(16)] + actf[:28]
        s4 = kloop(UD, actH, 4096, 56, first=False, base=64)
        for i in range(0, 28, 4):
            s4[i]["bar"], s4[i]["span"] = True, 4
        steps += s4
        stok = {}

        def glu(a0, a1, imm, key):
            L = [f"v_mul_f32 {acc[v]}, {acc[v]}, {acc[v + 8]}" for acc in (a0, a1) for v in range(8)]
            for a in range(2):
                L += [f"v_cvt_pk_bf16_f32 {a0[8 + 4 * a + 2 * b + h]}, {(a0, a1)[b][4 * a + 2 * h]}, {(a0, a1)[b][4 * a + 2 * h + 1]}"
                      for b in range(2) for h in range(2)]

                def st(a=a):
                    stok[key] = e(f"buffer_store_dwordx4 {a0.sub(8 + 4 * a, 4)}, {v_l16}, {WS}, {s_hh} offen offset:{imm + 1024 * a} sc1")
                L.append(st)
            return L
        gA, gFA, gB, gFB, gHA, gHB = [Gate() for _ in range(6)]
        fill = (bgl("t3d", tch(WD)) if c.t3 & 4 else []) + [gA]
        for i in range(2):
            fill += glu(accA[2 * i], accA[2 * i + 1], 2048 * i, "A")
        fill += [f"s_add_u32 {s_hh}, {s_hh}, 4096", gB]
        for i in range(2):
            fill += glu(accB[2 * i], accB[2 * i + 1], 2048 * i, "B")
        issA, chkA = self.opt_check(v_pf, F_A * 512, v_chk)
        issB, chkB = self.opt_check(v_pf, F_B * 512, v_chk)

        def hook(i, f):
            steps[i].setdefault("pre", []).append(f)
        hook(33, gA.open)
        if c.sent & 1:
            hook(c.st_ca, lambda: (self.drain_to(fill, gB), fill.insert(0, gB), gHA.open(), self.stamp("ca")))
        else:
            hook(c.st_fa, lambda: (self.drain_to(fill, gB), fill.insert(0, gB), e.wait(vm=stok["A"]), self.flag_store(v_p3s, F_A * 512), self.stamp("fa")))
            hook(c.st_ia, issA)
            hook(c.st_ca, lambda: (chkA(), gHA.open(), self.stamp("ca")))
        if c.burst_b:
            hook(64, lambda: (gB.open(), self.drain_to(fill, None)))
        else:
            hook(65, gB.open)
        if c.burst_a:
            hook(33, lambda: (self.drain_to(fill, gB), fill.insert(0, gB)))
        if c.wb_at:
            def wb():
                Lw = e.newlabel("Lnowb")
                e(f"s_lshl_b32 {t0}, {s_idx}, 2\ns_add_u32 {t0}, {t0}, {s_w}\ns_cmp_lg_u32 {t0}, {c.wb_who}")
                e(f"s_cbranch_scc1 {Lw}")
                e.optional += 1
                e("buffer_wbl2 sc1")
                e.optional -= 1
                e.label(Lw)
            hook(c.wb_at, wb)
        if c.sent & 2:
            hook(c.st_cb, lambda: (self.drain_to(fill, None), gHB.open(), self.stamp("cb")))
        else:
            hook(c.st_fb, lambda: (self.drain_to(fill, None), e.wait(vm=stok["B"]), self.flag_store(v_p3s, F_B * 512), self.stamp("fb")))
            hook(c.st_ib, issB)
            hook(c.st_cb, lambda: (chkB(), gHB.open(), self.stamp("cb")))
        hl = act_loads(actf, v_act, [1024 * k for k in range(32)])
        hi = hl[c.act_lead:] + [gHA] + act_loads(actH[:28], v_hha, [(str(s_rx[2 if fb < 48 else 3]), fb * 1024, 0, 0) for fb in fbA]) + [gHB]
        hb = act_loads(actH[28:], v_hha, [(str(s_rx[2 if fb < 48 else 3]), fb * 1024, 0, 0) for fb in fbB])
        hook(c.st_cb, lambda: run(hb[:c.lead_b]))
        hi += hb[c.lead_b:]

        def need(i, n):
            def f():
                while len(hi) > n:
                    t = hi.pop(0)
                    if isinstance(t, Gate):
                        assert t.is_open, f"gate closed at step {i}"
                    else:
                        t()
            hook(i, f)
        total = len(hi)
        pos = {}
        k = c.act_lead
        seq = list(range(c.act_lead, 32)) + [None] + list(range(64 * 2, 64 * 2 + 28)) + [None] + list(range(64 * 2 + 28 + c.lead_b, 64 * 2 + 56))
        for n, q in enumerate(seq):
            if q is not None:
                st_i = (q & ~1 if c.p3_16 else q) if q < 32 else q // 2
                need(st_i, total - n - 1)
        for i in range(28):
            if c.sent & (1 if i < 14 else 2):
                hook(64 + i, lambda i=i: self.verify([(actH[2 * i + h], 1024 * fbs[2 * i + h]) for h in range(2)], v_hha))
                steps[64 + i]["resv"] = 3 if 6 <= i < 14 else 4
        Lidle, Ljoin = e.newlabel("Lidle"), e.newlabel("Lp4")
        if c.skip_idle:
            self.dma_flush()
            e(f"s_cmp_ge_u32 {s_m}, 14")
            e(f"s_cbranch_scc1 {Lidle}")
            n_p3 = len(e.out)
        if c.opt_h:
            issH, chkH = self.opt_check(v_p3f, F_H * 512, v_chk)
            issH()
            self.loop_prologue(steps)
            chkH()
        else:
            self.loop_prologue(steps)
            self.poll([f"buffer_load_dword {u1}, {v_p3f}, {WS}, 0 offen offset:{F_H * 512} sc1"], [u1])
        self.stamp("ph")
        self.exp_delay("ph")
        self.lname = "G"
        run(hl[:c.act_lead])

        def g_rates(i, h):
            if any(p0 <= i < p1 for p0, p1 in c.pauses):
                return (c.g_hi[2] if i >= 64 else c.g_hi[i // 32], 0, 0)
            reg = min(i // 32, 2)
            if i >= c.st_cb:
                return (c.g_hi[2], c.g_end, c.g_end) if h else (0, c.g_dma[2], 0)
            return (c.g_hi[reg], c.g_mix[reg] if h else c.g_dma[reg], 0)
        self.mfma_loop(steps, fill, g_rates, rng=(0, 64), hi=hi)
        if c.skip_idle:
            body = [o.text for o in e.out[n_p3:] if isinstance(o, Ins)]
            alt, m0 = [], None
            for k, t in enumerate(body):
                if t.startswith("s_add_u32 m0") or (len(t.split()) > 1 and t.split()[1] == f"{self.s_so},"):
                    alt.append(t)
                elif t.endswith(" lds") and WD in t:
                    alt += ["s_nop 0", t]
            keep = []
            for k, t in enumerate(alt):
                if t.startswith("s_add_u32 m0") and any(u.startswith("s_add_u32 m0") for u in alt[k + 1:k + 3]) :
                    continue
                keep.append(t)
            alt = keep
            alt2 = [t for t in body if t.startswith(f"s_xor_b32 {s_ao},") or (t.startswith("buffer_load_dwordx4") and f" {v_hha}," in t)]
            rd = steps[64]["reads"]() + steps[65]["reads"]()
            Lw = Lidle + "_w"
            self.ool.append(f"{Lidle}:\n    s_waitcnt vmcnt(0) lgkmcnt(0)\n    s_barrier\n" + "".join(f"    {t}\n" for t in alt) +
                            f"    s_mov_b32 {self.s_spin}, 0\n{Lw}:\n    s_sleep 8\n    s_add_u32 {self.s_spin}, {self.s_spin}, 1\n    s_cmp_gt_u32 {self.s_spin}, {c.spin}\n"
                            f"    s_cbranch_scc1 Lexit\n    buffer_load_dword {v_chk}, {v_pf}, s[36:39], 0 offen offset:{F_A * 512} sc1\n    s_waitcnt vmcnt(0)\n"
                            f"    v_cmp_ne_u32 vcc, {s_tag}, {v_chk}\n    s_cbranch_vccnz {Lw}\n" + "".join(f"    {t}\n" for t in alt2) +
                            "    s_barrier\n" + "".join(f"    {t}\n" for t in rd) + f"    s_waitcnt vmcnt(0) lgkmcnt(0)\n    s_branch {Ljoin}\n")
            e.label(Ljoin)
        self.stamp("p3e")
        self.mfma_loop(steps, fill, g_rates, rng=(64, 92), hi=hi)
        self.stamp("p4e")
        self.barrier()
        reduce_pair()
        e(unpark("xres", u1))
        self.barrier()
        reduce_read()
        for j in range(8):
            e(f"v_pk_fma_f32 {x1.sub(2 * j, 2)}, {acc0.sub(2 * j, 2)}, {gb.sub(2 * j, 2)}, {x1.sub(2 * j, 2)}")
        for j in range(8):
            e(f"v_cvt_pk_bf16_f32 {acc1[j]}, {x1[2 * j]}, {x1[2 * j + 1]}")
        for a, b in ((0, 2), (1, 3), (4, 6), (5, 7)):
            e(f"v_permlane16_swap_b32 {acc1[a]}, {acc1[b]}")
        e(f"buffer_store_dwordx4 {acc1.sub(0, 4)}, {u1}, {OUT}, 0 offen")
        e(f"buffer_store_dwordx4 {acc1.sub(4, 4)}, {u1}, {OUT}, 0 offen offset:64")
        Lnb = e.newlabel("Lnobump")
        e(f"s_or_b32 {t0}, s2, {s_w}")
        e(f"s_cmp_lg_u32 {t0}, 0")
        e(f"s_cbranch_scc1 {Lnb}")
        xi = acc0.sub(0, 4)
        self.poll([f"buffer_load_dwordx4 {xi}, {v_l16}, {WS}, 0 offen offset:{WS_XID} sc1"], [xi[k] for k in range(4)],
                  pre=[f"v_and_b32 {xi[k]}, -8, {xi[k]}" for k in range(4)])
        e(f"""v_mov_b32 {u0}, 0
        s_mov_b64 exec, 1
        buffer_store_dword {self.v_tag}, {u0}, {WS}, 0 offen offset:{WS_E} sc1
        s_mov_b64 exec, -1""")
        e.label(Lnb)
        return self.finish()

    def finish(self):
        e, c = self.e, self.c
        if c.stamps:
            self.stamp("end")
            e(f"s_memrealtime {self.rt1}")
            e.wait_all_lg()
            t = self.v_tmp
            e("s_mov_b64 exec, 1")
            e(f"v_lshrrev_b32 {t}, 6, v0")
            e(f"v_lshlrev_b32 {t}, 6, {t}")
            e(f"s_lshl_b32 s3, s2, 8")
            e(f"v_add_u32 {t}, s3, {t}")
            e(f"v_add_u32 {t}, {WS_STAMP}, {t}")
            e(f"v_mov_b32 {self.v_tag}, {self.rt0[0]}")
            e(f"buffer_store_dword {self.v_tag}, {t}, s[36:39], 0 offen offset:60")
            e(f"v_mov_b32 {self.v_tag}, {self.rt1[0]}")
            e(f"buffer_store_dword {self.v_tag}, {t}, s[36:39], 0 offen offset:56")
            for k in range(len(self.stamp_names)):
                r = self.stamp_regs[k]
                e(f"s_sub_u32 s3, {r[0]}, {self.rt0[0] if self.stamp_names[k][0] == 'r' and c.rt else self.stamp_regs[0][0]}")
                e(f"v_mov_b32 {self.v_tag}, s3")
                e(f"buffer_store_dword {self.v_tag}, {t}, s[36:39], 0 offen offset:{4 * k}")
        if c.dbg:
            e("s_memtime s[4:5]\ns_memrealtime s[6:7]")
            e.wait_all_lg()
            e(f"""s_sub_u32 s4, s4, {self.d0[0]}
            s_sub_u32 s5, s6, {self.d1[0]}
            v_mov_b32 v2, s4
            v_mov_b32 v3, s5
            s_and_b32 s8, s2, 7
            s_lshl_b32 s8, s8, 3
            v_mov_b32 v4, s8
            s_mov_b64 exec, 1
            global_store_dwordx2 v4, v[2:3], {self.dp}""")
        e.label("Lexit")
        e("s_endpgm")
        return e.text() + "".join(self.ool) + "Lcode_end:\n"


def kernel_file(body, hdr):
    k = NAME + "_kernel"
    return f"""{hdr}; @launch grid=(256,1,1) block=(256,1,1) lds=163840
.amdgcn_target "amdgcn-amd-amdhsa--gfx950"
.text
.globl {k}
.p2align 8
.type {k},@function
{k}:
{body}.section .rodata,"a"
.p2align 6
.amdhsa_kernel {k}
  .amdhsa_next_free_vgpr 512
  .amdhsa_next_free_sgpr 102
  .amdhsa_accum_offset 256
  .amdhsa_group_segment_fixed_size 0
  .amdhsa_kernarg_size 96
  .amdhsa_user_sgpr_count 2
  .amdhsa_user_sgpr_kernarg_segment_ptr 1
  .amdhsa_system_sgpr_workgroup_id_x 1
.end_amdhsa_kernel
"""


if __name__ == "__main__":
    ap = argparse.ArgumentParser()
    ap.add_argument("-o", default="k.s")
    ap.add_argument("--stop")
    ap.add_argument("--stamps")
    ap.add_argument("--log", action="store_true")
    ap.add_argument("--set", nargs="*", default=[])
    a = ap.parse_args()
    c = Cfg()
    c.stop = a.stop
    c.stamps = a.stamps.split(",") if a.stamps else None
    for kv in a.set:
        k, v = kv.split("=")
        setattr(c, k, eval(v))
    g = Gen(c)
    body = g.build()
    hdr = "; stamps: " + " ".join(g.stamp_names) + "\n" if c.stamps else ""
    open(a.o, "w").write(kernel_file(body, hdr))
    print("instrs", g.e.n_ins, "nops", g.e.nops, "barriers", g.nbar, "vgpr hi", g.V.hi, "agpr hi", g.A.hi, "sgpr hi", g.S.hi)
    if a.log:
        print("\n".join(g.log))
```
